```python
import torch

def _softmax(x, axis=-1):
    return torch.softmax(x, dim=axis)

def _gelu(x):
    return torch.nn.functional.gelu(x, approximate='tanh')

def _silu(x):
    return torch.nn.functional.silu(x)

def _sigmoid(x):
    return torch.sigmoid(x)

def _layernorm(x, axis=-1, eps=1e-05):
    m = x.mean(dim=axis, keepdim=True)
    v = x.var(dim=axis, keepdim=True, unbiased=False)
    return (x - m) / torch.sqrt(v + eps)

def _scatter_add(tgt, idx, src, axis=0):
    return tgt.clone().index_add_(axis, idx, src)

def _segment_sum(src, seg, n):
    out = torch.zeros((n,) + src.shape[1:], dtype=src.dtype)
    return out.index_add_(0, seg, src)

def _pad(x, pw):
    flat = tuple((v for pair in reversed(pw) for v in pair))
    return torch.nn.functional.pad(x, flat)
kernel_name = 'recurrent_scan__softmax_full_mha__mixer_gmlp__prompt'

def setup_inputs():

    _w = lambda a: (lambda t: t.to(torch.bfloat16) if t.is_floating_point() else t)(torch.as_tensor(a))

    def _A_setup():
        B, S, D = (1, 2048, 640)
        return {'x': _w((lambda *s: torch.randn(*s, dtype=torch.bfloat16) * 0.05)(B, S, D)), 'wqkv': _w((lambda *s: torch.randn(*s, dtype=torch.bfloat16) * 0.05)(D, 3 * D)), 'wo': _w((lambda *s: torch.randn(*s, dtype=torch.bfloat16) * 0.05)(D, D))}
    _A_in = _A_setup()

    def _B_setup():
        B, S, D, F = (1, 2048, 640, 1728)
        Fh = F // 2
        return {'x': _w((lambda *s: torch.randn(*s, dtype=torch.bfloat16) * 0.05)(B, S, D)), 'w_in': _w((lambda *s: torch.randn(*s, dtype=torch.bfloat16) * 1.6)(D, 2 * Fh)), 'w_sp': _w(0.01 * (lambda *s: torch.randn(*s, dtype=torch.bfloat16) * 1.6)(S, S)), 'b_sp': _w(1.0 + 0.01 * (lambda *s: torch.randn(*s, dtype=torch.bfloat16) * 0.05)(S)), 'w_out': _w((lambda *s: torch.randn(*s, dtype=torch.bfloat16) * 0.05)(Fh, D))}
    _B_in = _B_setup()
    return {'A_x': _A_in['x'], 'A_wqkv': _A_in['wqkv'], 'A_wo': _A_in['wo'], 'B_x': _B_in['x'], 'B_w_in': _B_in['w_in'], 'B_w_sp': _B_in['w_sp'], 'B_b_sp': _B_in['b_sp'], 'B_w_out': _B_in['w_out']}

def reference(A_x, A_wqkv, A_wo, B_x, B_w_in, B_w_sp, B_b_sp, B_w_out):

    def _A_ref(x, wqkv, wo):
        B, S, D = x.shape
        H = 32
        Dh = D // H
        qkv = (lambda x, *d: x.permute(*d))((x @ wqkv).reshape(B, S, 3, H, Dh), 2, 0, 3, 1, 4)
        q, k, v = (qkv[0], qkv[1], qkv[2])
        scale = Dh ** (-0.5)
        scores = torch.einsum('bhqd,bhkd->bhqk', q, k) * scale
        p = _softmax(scores, axis=-1)
        o = torch.einsum('bhqk,bhkd->bhqd', p, v)
        return (lambda x, *d: x.permute(*d))(o, 0, 2, 1, 3).reshape(B, S, D) @ wo

    def _B_ref(x, w_in, w_sp, b_sp, w_out):
        B, S, D = x.shape
        F = w_in.shape[-1]
        Fh = F // 2
        z = _gelu(torch.einsum('bsd,df->bsf', x, w_in))
        z1 = z[..., :Fh].clone()
        z2 = _layernorm(z[..., Fh:], axis=-1)
        g = torch.einsum('ts,bsf->btf', w_sp, z2) + b_sp[None, :, None]
        return torch.einsum('bsf,fd->bsd', z1 * g, w_out)
    x = A_x
    xn = _layernorm(x, axis=-1)
    s = _A_ref(xn, A_wqkv, A_wo)
    g = _silu(_B_ref(xn, B_w_in, B_w_sp, B_b_sp, B_w_out))
    return x + s * g
```

```python
class Wait:
    def __init__(s, vm, lg): s.vm, s.lg = vm, lg
    def text(s):
        p = []
        if s.vm is not None: p.append(f"vmcnt({s.vm})")
        if s.lg is not None: p.append(f"lgkmcnt({s.lg})")
        return ("s_waitcnt " + " ".join(p)) if p else None
    def merge(s, o):
        f = lambda a, b: b if a is None else (a if b is None else min(a, b))
        s.vm, s.lg = f(s.vm, o.vm), f(s.lg, o.lg)

class Asm:
    def __init__(s):
        s.L = []; s.vm = []; s.lg = []; s.nv = 1; s.na = 0; s.ns = 4
    def __call__(s, t):
        for x in t.strip().split("\n"):
            x = x.strip()
            if x: s.L.append(x)
    def vmem(s, t, tag=None): s(t); s.vm.append(tag)
    def ds(s, t, tag=None): s(t); s.lg.append(tag)
    def need(s, vm=(), lg=(), alt=None):
        def cnt(q, tags, mx):
            idx = [i for i, t in enumerate(q) if t in tags]
            if not idx: return None
            i = max(idx); n = len(q) - 1 - i
            n = min(n, mx); del q[:len(q) - n]
            return n
        w = Wait(cnt(s.vm, vm, 63), cnt(s.lg, lg, 15)); s.L.append(w); return w
    def drain(s, vm=True, lg=True):
        s.L.append(Wait(0 if vm else None, 0 if lg else None))
        if vm: s.vm = []
        if lg: s.lg = []
    def loop(s, body, n=2):
        st = len(s.L); body(0); first = s.L[st:]
        for it in range(1, n):
            s.L = s.L[:st]; body(it); cur = s.L[st:]
            assert len(cur) == len(first)
            for a, b in zip(first, cur):
                if isinstance(a, Wait): a.merge(b)
                else: assert a == b, (a, b)
        s.L = s.L[:st] + first
    def v(s, n=1, al=None):
        al = al or (2 if n > 1 else 1)
        s.nv = (s.nv + al - 1) // al * al; r = s.nv; s.nv += n; assert s.nv <= 256; return r
    def a(s, n=1):
        s.na = (s.na + 1) // 2 * 2; r = s.na; s.na += n; assert s.na <= 256; return r
    def sg(s, n=1):
        al = 4 if n >= 4 else n
        s.ns = (s.ns + al - 1) // al * al; r = s.ns; s.ns += n; assert s.ns <= 100; return r
    def text(s):
        o = []
        for x in s.L:
            if isinstance(x, Wait): x = x.text()
            if x is None: continue
            o.append(x if x.endswith(":") else "  " + x)
        return "\n".join(o)
def V(r, n=1): return f"v{r}" if n == 1 else f"v[{r}:{r+n-1}]"
def A(r, n=1): return f"a{r}" if n == 1 else f"a[{r}:{r+n-1}]"
def S(r, n=1): return f"s{r}" if n == 1 else f"s[{r}:{r+n-1}]"

WS_QK, WS_VT, WS_Z1, WS_Z2, WS_O, WS_H, WS_WT, WS_ST = 0, 0x540000, 0x800000, 0xC10000, 0, 0x800000, 0x1000000, 0x7C0000
OOB = 0x7ff00000

def srd(a, d, base, off, size):
    if off == 0: a(f"s_mov_b32 s{d}, s{base}\ns_mov_b32 s{d+1}, s{base+1}")
    else: a(f"s_add_u32 s{d}, s{base}, {off}\ns_addc_u32 s{d+1}, s{base+1}, 0")
    a(f"s_mov_b32 s{d+2}, {size}\ns_mov_b32 s{d+3}, 0x20000")

def head(a, name, nkb=1):
    a(f"""s_cmp_ge_u32 s2, 256
    s_cbranch_scc1 {name}_end
    s_getpc_b64 s[96:97]
    {name}_pc:
    v_lshlrev_b32 v253, 6, v0""")
    for i in range(nkb):
        a(f"v_min_u32 v254, {name}_end-{name}_pc, v253")
        a.vmem(f"global_load_dword v255, v254, s[96:97]", 'pf')
        if i + 1 < nkb: a("v_add_u32 v253, 0x4000, v253")

import os
PROF = int(os.environ.get("PROF", "0"))
WS_PROF = 0x1A00000
def stamp(a, i, real=False):
    real = real or os.environ.get('RT')
    if PROF: a(f"s_mem{'real' if real else ''}time s[{70+2*i}:{71+2*i}]")
def stamp0(a):
    if PROF: a("s_memrealtime s[68:69]\ns_memtime s[70:71]")
def stamp_out(a, kid, n):
    if not PROF: return
    a(f"""s_memtime s[{70+2*n}:{71+2*n}]
    s_memrealtime s[66:67]
    s_load_dwordx2 s[98:99], s[0:1], 80
    v_lshrrev_b32 v253, 6, v0
    v_lshlrev_b32 v253, 6, v253
    s_lshl_b32 s94, s2, 8
    s_add_u32 s94, s94, {WS_PROF + kid*65536}
    v_add_u32 v253, s94, v253
    s_waitcnt lgkmcnt(0)""")
    for i, r in enumerate([68, 66] + [70 + 2*j for j in range(n + 1)]):
        a(f"v_mov_b32 v254, s{r}\nglobal_store_dword v253, v254, s[98:99] offset:{4*i}")
    a("s_waitcnt vmcnt(0)")

WT = os.environ.get("WT", " sc0 sc1")
```

```python
from asm import *
import struct
LDS1 = 163840
XB = 98304
F = lambda x: hex(struct.unpack("<I", struct.pack("<f", x))[0])
PRE = int(os.environ.get("K1PRE", "3")); RATE = 2.5
def k1():
    a = Asm(); N = "k1"
    head(a, N, 2); stamp0(a)
    pX, pQ, pI, pD, pWS, pWo, pWout = [a.sg(2) for _ in range(7)]
    for p, o in ((pX, 0), (pQ, 8), (pI, 32), (pD, 72), (pWS, 80), (pWo, 16), (pWout, 56)): a(f"s_load_dwordx2 {S(p,2)}, s[0:1], {o}")
    rX, rWA, rWB, rS, rD = [a.sg(4) for _ in range(5)]
    sw, srb, scg, b0, b1, t0, t1, t2, t3, oX, oW, mX, mW, sblk, scs, spin = [a.sg() for _ in range(16)]
    acc = [a.v(16) for _ in range(8)]
    aW = [[[a.v() for _ in range(4)] for jp in range(2)] for hh in range(2)]
    aX = [a.v() for _ in range(4)]; gX = [a.v() for _ in range(4)]; gW = [[a.v() for _ in range(4)] for ph in range(2)]
    sel = a.v(4); cs = [[a.v(4), a.v(4)] for ph in range(2)]; sx = a.v(4); sq = [a.v(4), a.v(4)]
    xe = a.v(2); we = [a.v(2) for _ in range(4)]
    ln, l16, c1, c2, ir, rr, s1, s2, gS, aC, aTw, aTr, gD = [a.v() for _ in range(13)]
    T = a.v(16, 4); P = a.v(14, 4)
    xf = [a.a(4) for _ in range(40)]; Wf = [a.a(4) for _ in range(8)]
    a(f"""v_lshrrev_b32 v{T}, 6, v0
    v_and_b32 v{ln}, 63, v0
    v_readfirstlane_b32 s{sw}, v{T}
    s_and_b32 s{t0}, s2, 1
    s_bfe_u32 s{t1}, s2, 0x30003
    s_lshl_b32 s{t0}, s{t0}, 3
    s_add_u32 s{srb}, s{t0}, s{t1}
    s_bfe_u32 s{t0}, s2, 0x20001
    s_lshr_b32 s{t1}, s2, 6
    s_lshl_b32 s{t0}, s{t0}, 2
    s_add_u32 s{scg}, s{t0}, s{t1}
    v_lshlrev_b32 v{l16}, 4, v{ln}
    s_cmp_eq_u32 s{scg}, 15
    s_cbranch_scc1 {N}_side
    s_and_b32 s{b0}, s{sw}, 1
    s_mov_b32 s{spin}, 0
    s_lshr_b32 s{b1}, s{sw}, 1
    s_lshl_b32 s{sblk}, s{srb}, 2
    s_add_u32 s{sblk}, s{sblk}, s{sw}
    s_mul_i32 s{t0}, s{sblk}, 40960
    s_lshl_b32 s{mX}, s{sw}, 14
    s_add_u32 s{mX}, s{mX}, {XB}
    s_lshl_b32 s{mW}, s{sw}, 12
    v_lshrrev_b32 v{T}, 3, v{ln}
    v_lshrrev_b32 v{T+1}, 4, v{ln}
    v_and_b32 v{T+2}, 7, v{ln}
    v_mul_u32_u24 v{T}, 1280, v{T}
    v_xor_b32 v{T+2}, v{T+2}, v{T+1}
    v_lshl_add_u32 v{gX[0]}, v{T+2}, 4, v{T}
    v_xor_b32 v{gX[1]}, 64, v{gX[0]}
    v_add_u32 v{gX[1]}, {10240-1024}, v{gX[1]}
    v_add_u32 v{gX[2]}, {20480-2048}, v{gX[0]}
    v_add_u32 v{gX[3]}, {20480-2048}, v{gX[1]}
    s_cmp_lt_u32 s{scg}, 14
    s_cselect_b32 s{t1}, {640*3456}, 0
    s_waitcnt lgkmcnt(0)""")
    srd(a, rX, pX, f"s{t0}", 40960); srd(a, rWA, pI, 0, f"s{t1}"); srd(a, rWB, pQ, 0, 640 * 3840)
    a(f"""v_bfe_u32 v{T+2}, v{ln}, 2, 2
    v_xor_b32 v{T+2}, v{T+2}, v{T+1}
    v_and_b32 v{T+3}, 3, v{ln}
    v_lshlrev_b32 v{T+3}, 4, v{T+3}
    v_lshl_add_u32 v{T+3}, v{T+2}, 6, v{T+3}
    s_lshl_b32 s{t0}, s{sw}, 4
    v_add_u32 v{T+1}, s{t0}, v{T+1}
    s_lshl_b32 s{t0}, s{scg}, 7
    s_add_u32 s{t1}, s{t0}, 1728
    s_sub_u32 s{t0}, s{t0}, 128
    s_cmp_eq_u32 s{scg}, 13
    s_cselect_b32 s{t2}, {OOB}, s{t1}
    v_mov_b32 v{T+4}, s{t0}
    v_mov_b32 v{T+5}, s{t1}
    v_cmp_gt_u32 vcc, 2, v{T+2}
    v_mul_u32_u24 v{T+6}, 3456, v{T+1}
    v_mov_b32 v{T+7}, s{t2}
    v_cndmask_b32 v{T+4}, v{T+4}, v{T+5}, vcc
    v_cmp_eq_u32 vcc, 1, v{T+2}
    v_mul_u32_u24 v{T+5}, 3840, v{T+1}
    s_lshl_b32 s{t0}, s{scg}, 8
    v_cndmask_b32 v{T+4}, v{T+4}, v{T+7}, vcc
    v_add3_u32 v{gW[0][0]}, v{T+4}, v{T+6}, v{T+3}
    v_add3_u32 v{gW[1][0]}, v{T+5}, s{t0}, v{T+3}""")
    for i in range(1, 4):
        a(f"v_add_u32 v{gW[0][i]}, {i*(4*3456-1024)}, v{gW[0][0]}\nv_add_u32 v{gW[1][i]}, {i*(4*3840-1024)}, v{gW[1][0]}")
    DQ = []
    for g in range(20):
        if g < 10: DQ += [('X', g, i) for i in range(4)]
        DQ += [('W', g, i) for i in range(4)]
    def dma():
        k, g, i = DQ.pop(0)
        if k == 'X':
            if i == 0: a(f"s_add_u32 m0, s{mX}, {g%4*4096}\ns_mov_b32 s{oX}, {g*128}")
            a.vmem(f"buffer_load_dwordx4 v{gX[i]}, {S(rX,4)}, s{oX} offen offset:{1024*i} lds", ('X', g))
        else:
            ph = g // 10
            if i == 0: a(f"s_add_u32 m0, s{mW}, {g%6*16384}\ns_mov_b32 s{oW}, {g%10*64*(3456,3840)[ph]}")
            a.vmem(f"buffer_load_dwordx4 v{gW[ph][i]}, {S((rWA,rWB)[ph],4)}, s{oW} offen offset:{1024*i} lds", ('W', g))
    def dma_ok(gap):
        if not DQ: return False
        k, g, i = DQ[0]
        return gap >= (16 * (g - 4) + 9 if k == 'X' else 16 * (g - 4) - 6)
    for _ in range(8): dma()
    srd(a, rS, pWS, 0, WS_PROF); srd(a, rD, pD, 0, 256)
    a(f"""s_lshl_b32 s{t0}, s{sblk}, 12
    s_add_u32 s{t0}, s{t0}, {WS_ST}
    s_lshl_b32 s{scs}, s{scg}, 8
    v_lshl_add_u32 v{gS}, v{ln}, 2, s{t0}
    v_mov_b32 v{T+8}, -1
    s_lshl_b32 s{t0}, s{sblk}, 2
    v_mov_b32 v{gD}, s{t0}""")
    a.vmem(f"buffer_store_dword v{T+8}, v{gS}, {S(rS,4)}, s{scs} offen sc0 sc1", 'rst')
    for _ in range(8): dma()
    a(f"""v_and_b32 v{T}, 31, v{ln}
    v_lshrrev_b32 v{T+1}, 5, v{ln}
    v_bfe_u32 v{T+2}, v{ln}, 1, 3
    v_xor_b32 v{T+2}, v{T+2}, v{T+1}
    v_lshlrev_b32 v{T+2}, 4, v{T+2}
    v_lshl_add_u32 v{T+2}, v{T}, 7, v{T+2}
    s_lshl_b32 s{t0}, s{b1}, 5
    v_xor_b32 v{T+2}, s{t0}, v{T+2}""")
    for j in range(4): a(f"v_xor_b32 v{T+3}, {32*j}, v{T+2}\nv_add_u32 v{aX[j]}, s{mX}, v{T+3}")
    a(f"""v_lshlrev_b32 v{T+3}, 6, v{T}
    v_lshl_add_u32 v{T+3}, v{T+1}, 4, v{T+3}
    s_add_u32 s{t0}, s{mX}, 4096
    v_add_u32 v{aTw}, s{t0}, v{T+3}
    v_lshlrev_b32 v{T+3}, 3, v{T}
    v_add_u32 v{aC}, s{mX}, v{T+3}
    v_lshl_add_u32 v{T+9}, v{T+1}, 15, v{T+3}
    v_bfe_u32 v{T+2}, v{ln}, 2, 2
    v_lshl_add_u32 v{T+3}, v{T+1}, 3, v{T+2}
    v_and_b32 v{T+4}, 1, v{ln}
    v_bfe_u32 v{T+5}, v{ln}, 1, 1
    v_bfe_u32 v{T+6}, v{ln}, 4, 1
    v_lshlrev_b32 v{T+4}, 4, v{T+4}
    v_lshl_add_u32 v{T+4}, v{T+5}, 3, v{T+4}
    v_lshl_add_u32 v{T+4}, v{T+6}, 5, v{T+4}
    v_lshl_add_u32 v{T+5}, v{T+3}, 6, v{T+4}
    v_add_u32 v{aTr}, s{t0}, v{T+5}
    v_lshl_add_u32 v{T+4}, v{T+3}, 8, v{T+4}
    v_xor_b32 v{T+2}, s{b0}, v{T+2}
    v_lshl_add_u32 v{T+4}, v{T+2}, 6, v{T+4}
    s_lshl_b32 s{t0}, s{b1}, 12
    v_xor_b32 v{T+4}, s{t0}, v{T+4}""")
    for jp in range(2):
        for p in range(4):
            a(f"v_xor_b32 v{aW[0][jp][p]}, {jp*4096 + p*64}, v{T+4}\nv_add_u32 v{aW[1][jp][p]}, 49152, v{aW[0][jp][p]}")
    for _ in range(8 * (PRE - 2)): dma()
    aCr = [P + 12, P + 13]
    a(f"""s_lshl_b32 s{t0}, s{b0}, 14
    s_add_u32 s{t1}, s{t0}, {XB}
    s_xor_b32 s{t0}, s{t0}, 16384
    s_add_u32 s{t0}, s{t0}, {XB}
    v_add_u32 v{aCr[0]}, s{t1}, v{T+9}
    v_add_u32 v{aCr[1]}, s{t0}, v{T+9}
    v_bfe_u32 v{T}, v{ln}, 2, 1
    v_and_b32 v{T+1}, 3, v{ln}
    v_xor_b32 v{T}, v{T}, v{T+6}
    v_or_b32 v{T}, v{T}, v{T+1}
    v_cmp_eq_u32 vcc, 0, v{T}
    v_mov_b32 v{T+1}, 0x3f803f80
    v_mov_b32 v{s1}, 0
    v_mov_b32 v{s2}, 0""")
    for i in range(4): a(f"v_cndmask_b32 v{sel+i}, 0, v{T+1}, vcc")
    def rdW(m):
        if m >= 320: return
        q, p = m // 4, m % 4; G, j = q // 4, q % 4; sl = G % 6
        for h in range(2):
            a.ds(f"ds_read_b64_tr_b16 {A(Wf[m%8]+2*h,2)}, v{aW[sl//3][j%2][p]} offset:{sl%3*16384 + j//2*8192 + 1024*h}", ('W', m))
    def rdX(q):
        if q < 40: a.ds(f"ds_read_b128 {A(xf[q],4)}, v{aX[q%4]} offset:{q//4%4*4096}", ('X', q))
    a.need(vm=[('X', 0), ('W', 0)]); a("s_barrier"); stamp(a, 1); a("s_waitcnt lgkmcnt(0)" if PROF else "")
    rdX(0); rdW(0); rdW(1); rdX(1)
    for m in range(2, 6): rdW(m)
    a.need(lg=[('W', 1)])
    Q = []
    op = lambda t, c=1: Q.append((c, t))
    def split_cs(ph, emit):
        for h in range(2):
            c = cs[ph][h]
            for t in (f"v_cvt_pk_bf16_f32 v{c+1}, v{c}, v{c}", f"v_and_b32 v{c+2}, 0xffff0000, v{c+1}", f"v_sub_f32 v{c+2}, v{c}, v{c+2}",
                      f"v_cvt_pk_bf16_f32 v{c}, v{c}, v{c+2}", f"v_and_b32 v{c+1}, 0xffff, v{c+1}"): emit(t)
            emit(lambda c=c, h=h: a.ds(f"ds_write_b64 v{aC}, {V(c,2)} offset:{ph*1024 + h*256}", ('cw', ph)))
    def rdE(ph):
        for p in range(4): a.ds(f"ds_read_b64 {V(we[p],2)}, v{aCr[p%2]} offset:{ph*1024 + p//2*256}", ('we', ph))
    def fold(ph, p): a(f"v_mfma_f32_32x32x8_bf16 {V(acc[4*ph+p],16)}, {V(we[p],2)}, {V(xe,2)}, {V(acc[4*ph+p],16)}")
    split_cs(0, op)
    for i in range(4): op(f"v_add_f32 v{sq[0]+i}, v{sq[0]+i}, v{sq[1]+i}")
    op(f"v_and_b32 v{T}, 3, v{ln}")
    for i in range(1, 4):
        op(f"v_cmp_eq_u32 vcc, {i}, v{T}"); op(f"v_mul_f32 v{T+1}, {F(-1/640)}, v{sx}"); op("s_nop 0"); op(f"v_cndmask_b32 v{sq[0]}, v{sq[0]}, v{sq[0]+i}, vcc")
    for t in f"""v_mov_b32 v{T+2}, v{sq[0]}
    v_cvt_pk_bf16_f32 v{xe}, v{T+1}, v{T+1}
    v_and_b32 v{T+3}, 0xffff0000, v{xe}
    v_permlane32_swap_b32 v{T+2}, v{sq[0]}
    v_sub_f32 v{T+3}, v{T+1}, v{T+3}
    v_cvt_pk_bf16_f32 v{xe+1}, v{T+3}, 0
    v_add_f32 v{T+2}, v{T+2}, v{sq[0]}
    v_mul_f32 v{T+1}, v{T+1}, v{T+1}
    v_fma_f32 v{T+2}, v{T+2}, s{t0}, -v{T+1}
    v_max_f32 v{T+2}, 0, v{T+2}
    v_add_f32 v{T+2}, {F(1e-5)}, v{T+2}
    v_rsq_f32 v{rr}, v{T+2}
    s_nop 0
    v_mul_f32 v{ir}, v{T+2}, v{rr}
    v_mul_f32 v{c1}, {F(-2*0.7978845608028654*1.4426950408889634)}, v{rr}
    v_mul_f32 v{c2}, v{rr}, v{rr}
    v_mul_f32 v{c2}, v{c1}, v{c2}
    v_mul_f32 v{c2}, {F(0.044715)}, v{c2}""".split("\n"): op(t)
    nprep = len(Q)
    def gelu(r0, stats):
        R = range(4)
        for i in R: op(f"v_mul_f32 v{T+i}, v{r0+i}, v{r0+i}")
        for i in R: op(f"v_fma_f32 v{T+i}, v{T+i}, v{c2}, v{c1}")
        for i in R: op(f"v_mul_f32 v{T+i}, v{T+i}, v{r0+i}")
        for i in R: op(f"v_exp_f32 v{T+i}, v{T+i}", 2)
        for i in R: op(f"v_fma_f32 v{T+i}, v{T+i}, v{ir}, v{ir}")
        for i in R: op(f"v_rcp_f32 v{T+i}, v{T+i}", 2)
        for i in R: op(f"v_mul_f32 v{r0+i}, v{r0+i}, v{T+i}")
        if stats:
            for i in R: op(f"v_add_f32 v{s1}, v{s1}, v{r0+i}"); op(f"v_fma_f32 v{s2}, v{r0+i}, v{r0+i}, v{s2}")
    for p in range(2):
        for b in range(4): gelu(acc[p] + 4 * b, True)
    op("s_nop 1"); op(f"v_permlane32_swap_b32 v{s1}, v{s2}"); op("s_nop 1"); op(f"v_add_f32 v{s1}, v{s1}, v{s2}"); op(f"v_min_u32 v{s1}, -2, v{s1}")
    op(lambda: a.vmem(f"buffer_store_dword v{s1}, v{gS}, {S(rS,4)}, s{scs} offen sc0 sc1", 'pub'))
    def zaddr(p, mul, base):
        return f"""s_xor_b32 s{t1}, s{b0}, {p&1}
        s_lshl_b32 s{t2}, s{scg}, 1
        s_add_u32 s{t1}, s{t1}, s{t2}
        s_mul_i32 s{t2}, s{t1}, {mul}
        s_add_u32 s{t2}, s{t2}, s{base}
        s_cmp_lt_u32 s{t1}, 27
        s_cselect_b32 s{t2}, s{t2}, {OOB}""".split("\n")
    op(f"s_mul_i32 s{t3}, s{sblk}, 55296"); op(f"s_add_u32 s{t3}, s{t3}, {WS_Z1}")
    for p in range(2, 4):
        op("\n".join(zaddr(p, 2048, t3)), 7)
        op(f"v_add_u32 v{T+4+p}, s{t2}, v{l16}")
        for b in range(4):
            gelu(acc[p] + 4 * b, False)
            for i in range(2): op(f"v_cvt_pk_bf16_f32 v{acc[p]+2*b+i}, v{acc[p]+4*b+2*i}, v{acc[p]+4*b+2*i+1}")
            if b % 2: op(lambda p=p, b=b: a.vmem(f"buffer_store_dwordx4 {V(acc[p]+2*b-2,4)}, v{T+4+p}, {S(rS,4)}, 0 offen offset:{b//2*1024}", 'st'))
    total = sum(c for c, _ in Q[nprep:])
    def pop(budget):
        while Q and budget > 0:
            c, t = Q.pop(0); budget -= c
            t() if callable(t) else a(t)
        return budget
    G0, G1, GE = 162, 177, 312
    credit = 0.0; dcredit = 0.0; npopped = lambda: len(Q)
    nq0 = len(Q)
    for m in range(320):
        ph, q, p = m // 160, m // 4, m % 4; j = q % 4; d = acc[4 * ph + p]
        a(f"v_mfma_f32_32x32x16_bf16 {V(d,16)}, {A(Wf[m%8],4)}, {A(xf[q%40],4)}, {V(d,16) if q % 40 else 0}")
        vm, lg = [], []
        if m % 2 == 1: lg += [('W', m + 1), ('W', m + 2)]
        if p == 3: lg += [('X', q + 1)]
        if (m + 8) % 16 == 0: vm += [('X', (m + 8) // 16)]
        bar = (m + 6) % 16 == 0 and m + 6 < 320
        if bar: vm += [('W', (m + 6) // 16)]
        if m == 170: lg += [('cw', 0)]; assert len(Q) <= nq0 - 12
        if m == 173: lg += [('we', 0)]
        if m == 24: vm += ['rst']
        a.need(vm=vm, lg=lg)
        if bar: a("s_barrier")
        if m == 170: rdE(0)
        if p == 0 and ph == 0: rdX(q + 2)
        rdW(m + 6)
        dcredit += RATE / 4
        if dcredit >= 1 and dma_ok(m): dma(); dcredit -= 1
        dcredit = min(dcredit, 1.5)
        if m == 24:
            a(f"v_mov_b32 v{T+8}, 1\nv_cmp_eq_u32 vcc, 0, v{ln}\nv_mov_b32 v{T+9}, {OOB}\ns_nop 0\nv_cndmask_b32 v{T+9}, v{T+9}, v{gD}, vcc")
            a.vmem(f"buffer_atomic_add v{T+8}, v{T+9}, {S(rD,4)}, 0 offen sc1", 'at')
        c0 = (lambda r: V(r, 4) if q % 40 >= 2 else 0)
        if j % 2 == 0 and p % 2 == 0: a(f"v_mfma_f32_16x16x32_bf16 {V(cs[ph][p//2],4)}, {V(sel,4)}, {A(Wf[m%8],4)}, {c0(cs[ph][p//2])}")
        if ph == 0 and p == 1: a(f"v_mfma_f32_16x16x32_bf16 {V(sx,4)}, {V(sel,4)}, {A(xf[q],4)}, {V(sx,4) if q else 0}")
        if ph == 0 and p == 3:
            for h in range(2): a(f"v_mfma_f32_4x4x4_16b_bf16 {V(sq[h],4)}, {A(xf[q]+2*h,2)}, {A(xf[q]+2*h,2)}, {V(sq[h],4) if q else 0}")
        if m == 159: stamp(a, 2); a(f"s_mov_b32 s{t0}, {F(1/640)}")
        if 173 <= m < 177: assert len(Q) == nq0 - nprep; fold(0, m - 173)
        if G0 <= m < 173:
            for _ in range(6):
                if len(Q) > nq0 - nprep: pop(1)
        if m >= G1: credit = pop(credit + total / (GE - G1))
        if m == 260: a.vmem(f"buffer_load_dword v{T+10}, v{gD}, {S(rD,4)}, 0 offen sc1", 'cnt')
        if m == 296:
            a.need(vm=['cnt'])
            a(f"""{N}_c0:
            v_readfirstlane_b32 s{oX}, v{T+10}
            s_cmp_eq_u32 s{oX}, 15
            s_cbranch_scc1 {N}_c1
            s_add_u32 s{spin}, s{spin}, 0x4000
            s_cbranch_scc1 {N}_c1
            buffer_load_dword v{T+10}, v{gD}, {S(rD,4)}, 0 offen sc1
            s_waitcnt vmcnt(0)
            s_branch {N}_c0
            {N}_c1:""")
        if m == 316: split_cs(1, lambda t: t() if callable(t) else a(t))
    assert not Q and not DQ
    stamp(a, 3)
    PS = [P + i for i in range(12)] + [T + 12, T + 13]
    def ldS():
        for i in range(14): a.vmem(f"buffer_load_dword v{PS[i]}, v{gS}, {S(rS,4)}, 0 offen offset:{256*i} sc1", 'S')
    a.need(lg=[('cw', 1)]); a("s_barrier"); rdE(1); ldS()
    a(f"""s_cmp_lt_u32 s{scg}, 5
    s_cselect_b32 s{t0}, {F(20**-0.5*1.4426950408889634)}, 1.0
    v_mul_f32 v{c1}, s{t0}, v{rr}
    s_mul_i32 s{t3}, s{sblk}, 81920
    s_lshl_b32 s{t1}, s{scg}, 13
    s_add_u32 s{t3}, s{t3}, s{t1}
    s_lshl_b32 s{t1}, s{b0}, 11
    v_add_u32 v{T}, s{t3}, v{l16}
    v_xor_b32 v{T}, s{t1}, v{T}
    v_xor_b32 v{T+1}, 2048, v{T}
    v_mov_b32 v{c2}, v{c1}""")
    assert c1 % 2 == 0 and c2 == c1 + 1
    a.need(lg=[('we', 1)])
    for p in range(4): fold(1, p)
    a(f"s_mov_b32 s{t1}, 4096\ns_nop 7")
    def scale(p):
        d = acc[4 + p]
        for i in range(8): a(f"v_pk_mul_f32 {V(d+2*i,2)}, {V(d+2*i,2)}, {V(c1,2)}")
        for i in range(8): a(f"v_cvt_pk_bf16_f32 v{d+i}, v{d+2*i}, v{d+2*i+1}")
    def trw(src, slot):
        for r in range(2): a.ds(f"ds_write_b128 v{aTw}, {V(src+4*r,4)} offset:{slot*2048 + 32*r}", ('tw', slot))
    def trr(dst, slot):
        for i in range(4): a.ds(f"ds_read_b64_tr_b16 {V(dst+2*i,2)}, v{aTr} offset:{slot*2048 + i//2*1024 + i%2*256}", ('tr', slot))
    a(f"s_cmp_ge_u32 s{scg}, 10\ns_cbranch_scc1 {N}_v")
    sv = list(a.vm)
    for p in range(4):
        scale(p)
        for r in range(2): a.vmem(f"buffer_store_dwordx4 {V(acc[4+p]+4*r,4)}, v{T+p%2}, {S(rS,4)}, {f's{t1}' if p//2 else 0} offen offset:{1024*r}", 'st')
    a(f"s_branch {N}_z2\n{N}_v:"); a.vm = sv
    for p in range(4):
        scale(p); trw(acc[4 + p], p)
    a(f"""v_and_b32 v{T}, 19, v{ln}
    v_bfe_u32 v{T+1}, v{ln}, 2, 1
    v_bfe_u32 v{T+2}, v{ln}, 3, 1
    v_lshl_add_u32 v{T}, v{T+1}, 3, v{T}
    v_lshl_add_u32 v{T}, v{T+2}, 2, v{T}
    s_sub_u32 s{t1}, s{scg}, 10
    s_lshl_b32 s{t1}, s{t1}, 2
    s_add_u32 s{t1}, s{t1}, s{b0}
    s_lshl_b32 s{t1}, s{t1}, 5
    v_add_u32 v{T}, s{t1}, v{T}
    v_lshrrev_b32 v{T+1}, 5, v{ln}
    v_mul_u32_u24 v{T+1}, 320, v{T+1}
    s_mul_i32 s{t1}, s{sblk}, 1280
    s_add_u32 s{t1}, s{t1}, {WS_VT}
    v_add_u32 v{T+1}, s{t1}, v{T+1}""")
    a.need(lg=[('tw', 3)])
    for p in range(4): trr(acc[4 + p] + 8, p)
    for p in range(4):
        a(f"""v_xor_b32 v{T+2}, {32*p}, v{T}
        v_mul_u32_u24 v{T+3}, 52429, v{T+2}
        v_lshrrev_b32 v{T+3}, 20, v{T+3}
        v_mul_u32_u24 v{T+3}, {81920-320}, v{T+3}
        v_lshl_add_u32 v{T+2}, v{T+2}, 4, v{T+3}
        v_add_u32 v{T+4+p}, v{T+2}, v{T+1}""")
        a.need(lg=[('tr', p)])
        for r in range(2): a.vmem(f"buffer_store_dwordx4 {V(acc[4+p]+8+4*r,4)}, v{T+4+p}, {S(rS,4)}, 0 offen offset:{640*r}", 'st')
    a(f"{N}_z2:"); stamp(a, 4)
    a.need(vm=['S'])
    a(f"{N}_s0:\nv_max_u32 v{T}, v{PS[0]}, v{PS[1]}")
    for i in range(1, 7): a(f"v_max3_u32 v{T}, v{PS[2*i]}, v{PS[2*i+1]}, v{T}")
    a(f"v_cmp_eq_u32 vcc, -1, v{T}\ns_nop 1\ns_cbranch_vccz {N}_s1\ns_add_u32 s{spin}, s{spin}, 0x4000\ns_cbranch_scc1 {N}_s1")
    ldS(); a.drain(lg=False); a(f"s_branch {N}_s0\n{N}_s1:"); stamp(a, 5)
    for i in range(1, 14): a(f"v_add_f32 v{PS[0]}, v{PS[0]}, v{PS[i]}")
    a(f"""v_mul_f32 v{T}, {F(1/864)}, v{PS[0]}
    v_mov_b32 v{T+1}, v{T}
    s_lshl_b32 s{t3}, s{sblk}, 11
    s_add_u32 s{t3}, s{t3}, {WS_Z2}
    v_permlane32_swap_b32 v{T}, v{T+1}
    s_nop 1
    v_fma_f32 v{T+1}, -v{T}, v{T}, v{T+1}
    v_max_f32 v{T+1}, 0, v{T+1}
    v_add_f32 v{T+1}, {F(1e-5)}, v{T+1}
    v_rsq_f32 v{T+2}, v{T+1}
    s_nop 0
    v_mul_f32 v{T}, v{T}, v{T+2}
    v_mov_b32 v{T+3}, v{T+2}
    v_mov_b32 v{T+1}, v{T}""")
    for p in range(2):
        d = acc[p]
        for i in range(8): a(f"v_pk_fma_f32 {V(d+2*i,2)}, {V(d+2*i,2)}, {V(T+2,2)}, {V(T,2)} neg_lo:[0,0,1] neg_hi:[0,0,1]")
        for i in range(8): a(f"v_cvt_pk_bf16_f32 v{d+i}, v{d+2*i}, v{d+2*i+1}")
        trw(d, 4 + p)
    for p in range(2):
        a.need(lg=[('tw', 4 + p)]); trr(acc[p] + 8, 4 + p)
        for t in zaddr(p, 131072, t3): a(t)
        a(f"v_add_u32 v{T+8+p}, s{t2}, v{l16}")
    for p in range(2):
        a.need(lg=[('tr', 4 + p)])
        for r in range(2): a.vmem(f"buffer_store_dwordx4 {V(acc[p]+8+4*r,4)}, v{T+8+p}, {S(rS,4)}, 0 offen offset:{1024*r}", 'st')
    stamp(a, 6); a("s_waitcnt vmcnt(0)"); stamp_out(a, 1, 7); a("s_endpgm")
    a.vm = []; a.lg = []
    a(f"""{N}_side:
    s_waitcnt lgkmcnt(0)
    s_mul_i32 s{mX}, s{sw}, 10240
    v_add_u32 v{T}, s{mX}, v{l16}
    s_mul_i32 s{srb}, s{srb}, 3""")
    srd(a, rS, pWS, WS_WT, 8 * 47 * 5120)
    for kk in range(3):
        a(f"""s_add_u32 s{t0}, s{srb}, {kk}
        s_sub_u32 s{t1}, s{t0}, 20
        s_cmp_lt_u32 s{t0}, 20
        s_cselect_b32 s{t1}, s{t0}, s{t1}
        s_cselect_b32 s{t2}, s{pWo}, s{pWout}
        s_cselect_b32 s{t3}, s{pWo+1}, s{pWout+1}
        s_mul_i32 s{t1}, s{t1}, 40960
        s_add_u32 s{rX}, s{t2}, s{t1}
        s_addc_u32 s{rX+1}, s{t3}, 0
        s_cmp_lt_u32 s{t0}, 47
        s_cselect_b32 s{rX+2}, 40960, 0
        s_mov_b32 s{rX+3}, 0x20000""")
        for i in range(10):
            if i % 4 == 0: a(f"s_add_u32 m0, s{mX}, {kk*40960 + i*1024}\ns_mov_b32 s{oX}, {i*1024}")
            a(f"buffer_load_dwordx4 v{T}, {S(rX,4)}, s{oX} offen offset:{i%4*1024} lds")
    a(f"""v_lshrrev_b32 v{T+1}, 4, v{ln}
    v_bfe_u32 v{T+2}, v{ln}, 2, 2
    v_lshl_add_u32 v{T+1}, v{T+1}, 3, v{T+2}
    v_mul_u32_u24 v{T+1}, 1280, v{T+1}
    v_and_b32 v{T+2}, 3, v{ln}
    v_mul_u32_u24 v{T+2}, 40, v{T+2}
    s_mul_i32 s{t0}, s{sw}, 320
    v_add3_u32 v{T+1}, v{T+1}, v{T+2}, s{t0}
    s_waitcnt vmcnt(0)
    s_barrier""")
    for kk in range(3):
        for c in range(2):
            for nt in range(5):
                for h in range(2): a(f"ds_read_b64_tr_b16 {V(acc[0]+40*kk+20*c+4*nt+2*h,2)}, v{T+1} offset:{160*c + 8*nt + 5120*h}")
        a(f"v_add_u32 v{T+1}, 40960, v{T+1}")
        a(f"""s_add_u32 s{t0}, s{srb}, {kk}
        s_cmp_lt_u32 s{t0}, 47
        s_cselect_b32 s{rS+2}, s{rS+2}, 0
        s_mul_i32 s{t1}, s{sw}, 94
        s_add_u32 s{t0}, s{t0}, s{t1}
        s_mul_i32 s{t0}, s{t0}, 5120
        s_waitcnt lgkmcnt(0)""")
        for c in range(2):
            for nt in range(5):
                a(f"s_add_u32 s{t1}, s{t0}, {c*47*5120 + nt*1024}\nbuffer_store_dwordx4 {V(acc[0]+40*kk+20*c+4*nt,4)}, v{l16}, {S(rS,4)}, s{t1} offen")
    a("s_waitcnt vmcnt(0)")
    for i in range(1, 7): stamp(a, i)
    stamp_out(a, 1, 7)
    a(f"{N}_end:\ns_endpgm")
    return a
```

```python
from asm import *
KVB, ONES, FLAG = 65536, 114688, 114688 + 5120
LDS2 = FLAG + 64
X = os.environ.get('X2', '')
def k2():
    a = Asm(); N = "k2"
    head(a, N); stamp0(a)
    pW, pB, pWS = a.sg(2), a.sg(2), a.sg(2)
    a(f"""s_load_dwordx2 {S(pW,2)}, s[0:1], 40
    s_load_dwordx2 {S(pB,2)}, s[0:1], 48
    s_load_dwordx2 {S(pWS,2)}, s[0:1], 80""")
    rW, rKV, rZ, rE, rO, rB = [a.sg(4) for _ in range(6)]
    sw, shd, sqg, sfb, sodd, sm5, t0, t1, t2, oW, oKV, oZ, incKV, mW, mKV, cnt, retry, szW, szZ = [a.sg() for _ in range(19)]
    SB = [a.v(16), a.v(16)]; O = [a.v(16), a.v(16)]; G = [a.v(16), a.v(16)]
    Qm = [a.v(4), a.v(4)]; Qr = [a.v(2), a.v(2)]
    Km = [a.v(4), a.v(4)]; Kr = [a.v(2), a.v(2)]
    V1 = [a.v(4), a.v(4)]; V2 = [a.v(4), a.v(4)]; W0 = [a.v(4), a.v(4)]; W1 = [a.v(4), a.v(4)]
    Z1 = [a.v(8), a.v(8)]; bs = [a.v(), a.v()]
    aW = [a.v() for _ in range(8)]; aKm = a.v(); aKr = [a.v() for _ in range(4)]; aV = [a.v() for _ in range(4)]
    gW = [a.v() for _ in range(4)]; gKV = [a.v() for _ in range(3)]; gZ = a.v(); gQm, gQr, gE, gOm, gOr = [a.v() for _ in range(5)]
    idx, ln, l31, hf = [a.v() for _ in range(4)]; T = a.v(8, 4)
    Z = [a.a(4) for _ in range(16)]
    a(f"""v_lshrrev_b32 v{T}, 6, v0
    v_and_b32 v{ln}, 63, v0
    v_readfirstlane_b32 s{sw}, v{T}
    s_and_b32 s{t0}, s2, 7
    s_lshr_b32 s{t1}, s2, 6
    s_lshl_b32 s{t0}, s{t0}, 2
    s_add_u32 s{shd}, s{t0}, s{t1}
    s_bfe_u32 s{sqg}, s2, 0x30003
    s_lshl_b32 s{sfb}, s{sqg}, 2
    s_add_u32 s{sfb}, s{sfb}, s{sw}
    s_and_b32 s{sodd}, s{shd}, 1
    s_lshr_b32 s{sm5}, s{shd}, 1
    s_mul_i32 s{sm5}, s{sm5}, 2560
    s_mov_b32 s{retry}, 0
    v_and_b32 v{l31}, 31, v0
    v_bfe_u32 v{hf}, v0, 5, 1
    v_mov_b32 v{idx}, 0xdddddddd
    s_cmp_lt_u32 s{sqg}, 7
    s_cselect_b32 s{szW}, {64*4096}, 0
    s_cmp_lt_u32 s{sfb}, 27
    s_cselect_b32 s{szZ}, 0x20000, 0
    s_cselect_b32 s{t2}, {WS_WT}, 0
    s_lshl_b32 s{mW}, s{sw}, 12
    s_mul_i32 s{mKV}, s{sw}, 3072
    s_add_u32 s{mKV}, s{mKV}, {KVB}
    s_mov_b32 s{incKV}, 5120
    s_cmp_lt_u32 s{sw}, 2
    s_cselect_b32 s{incKV}, 327680, s{incKV}
    s_lshl_b32 s{t0}, s{shd}, 18
    s_lshl_b32 s{t1}, s{sfb}, 17
    s_add_u32 s{t1}, s{t1}, {WS_Z2}
    s_waitcnt lgkmcnt(0)""")
    srd(a, rW, pW, f"s{t0}", f"s{szW}"); srd(a, rKV, pWS, 0, WS_Z1); srd(a, rZ, pWS, f"s{t1}", f"s{szZ}")
    srd(a, rE, pWS, 0, f"s{t2}"); srd(a, rO, pWS, WS_O, 2621440); srd(a, rB, pB, 0, 4096)
    a(f"""s_lshl_b32 s{t0}, s{sqg}, 2
    s_add_u32 s{t0}, s{t0}, s{sw}
    s_mul_i32 s{t1}, s{t0}, 163840
    s_add_u32 s{t1}, s{t1}, s{sm5}
    s_mul_i32 s{t2}, s{sodd}, 1536
    s_add_u32 s{t2}, s{t2}, s{t1}
    v_lshlrev_b32 v{gZ}, 4, v{ln}
    v_add_u32 v{gQm}, s{t2}, v{gZ}
    s_lshl_b32 s{t2}, s{sodd}, 3
    s_add_u32 s{t2}, s{t2}, s{t1}
    s_add_u32 s{t2}, s{t2}, 1024
    v_add_u32 v{gQr}, s{t2}, v{gZ}
    v_mov_b32 v{T}, {OOB}
    v_cmp_gt_u32 vcc, 32, v{ln}
    s_mov_b32 s{t2}, 81920
    s_nop 0
    v_cndmask_b32 v{gQr}, v{T}, v{gQr}, vcc""")
    for q in range(2):
        so = f"s{t2}" if q else "0"
        a.vmem(f"buffer_load_dwordx4 {V(Qm[q],4)}, v{gQm}, {S(rKV,4)}, {so} offen", ('Q', q))
        a.vmem(f"buffer_load_dwordx2 {V(Qr[q],2)}, v{gQr}, {S(rKV,4)}, {so} offen", ('Q', q))
    a(f"""s_mul_i32 s{t0}, s{t0}, 81920
    v_subrev_u32 v{gOm}, s{t0}, v{gQm}
    v_subrev_u32 v{gOr}, s{t0}, v{gQr}""")
    a(f"""s_mul_i32 s{t0}, s{sw}, 163840
    s_add_u32 s{t0}, s{t0}, s{sm5}
    s_lshl_b32 s{t1}, s{sodd}, 10
    s_add_u32 s{t0}, s{t0}, s{t1}
    s_add_u32 s{t0}, s{t0}, 40960
    s_mul_i32 s{t1}, s{shd}, 81920
    s_mul_i32 s{t2}, s{sw}, 3072
    s_add_u32 s{t1}, s{t1}, s{t2}
    s_add_u32 s{t1}, s{t1}, {WS_VT - 6144}
    s_cmp_lt_u32 s{sw}, 2
    s_cselect_b32 s{t0}, s{t0}, s{t1}
    s_cselect_b32 s{t1}, 80384, 0
    s_cmp_eq_u32 s{sw}, 3
    s_cselect_b32 s{t2}, {OOB}, s{t1}
    v_add_u32 v{gKV[0]}, s{t0}, v{gZ}
    v_mul_lo_u32 v{T}, v{hf}, s{t1}
    v_add_u32 v{gKV[2]}, s{t2}, v{gKV[0]}
    v_add_u32 v{gKV[1]}, v{T}, v{gKV[0]}""")
    a(f"""v_lshrrev_b32 v{T}, 4, v{ln}
    v_and_b32 v{T+1}, 15, v{ln}
    s_lshl_b32 s{t0}, s{sw}, 16""")
    for i in range(4):
        a(f"""v_add_u32 v{T+2}, {4*i}, v{T}
        v_xor_b32 v{T+3}, v{T+1}, v{T+2}
        v_lshlrev_b32 v{T+2}, 12, v{T+2}
        v_lshl_add_u32 v{T+2}, v{T+3}, 4, v{T+2}
        v_add_u32 v{gW[i]}, s{t0}, v{T+2}""")
        if i: a(f"v_subrev_u32 v{gW[i]}, {1024*i}, v{gW[i]}")
    def dmaW(i, st): 'D' in X or a.vmem(f"buffer_load_dwordx4 v{gW[i]}, {S(rW,4)}, s{oW} offen offset:{1024*i} lds", ('D', st))
    def dmaKV(i, st): a.vmem(f"buffer_load_dwordx4 v{gKV[i]}, {S(rKV,4)}, s{oKV} offen offset:{1024*i} lds", ('D', st))
    def ldZ(n): 'Z' in X or a.vmem(f"buffer_load_dwordx4 {A(Z[n%16],4)}, v{gZ}, {S(rZ,4)}, s{oZ} offen offset:{(n%4)*1024}", ('Z', n))
    a(f"""{N}_restart:
    s_mov_b32 s{oW}, 0
    s_mov_b32 s{oKV}, 0
    s_mov_b32 s{oZ}, 0
    s_mov_b32 m0, s{mKV}
    s_mov_b32 s{cnt}, 0""")
    for i in range(3): dmaKV(i, 0)
    a(f"s_mov_b32 m0, s{mW}\ns_lshl_b32 s{t0}, s{shd}, 7")
    for i in range(4): dmaW(i, 0)
    a(f"v_lshl_add_u32 v{T}, v{l31}, 1, s{t0}")
    ldZ(0); ldZ(1)
    for tb in range(2): a.vmem(f"buffer_load_ushort v{bs[tb]}, v{T}, {S(rB,4)}, 0 offen offset:{64*tb}", 'b')
    a(f"s_add_u32 s{oKV}, s{oKV}, s{incKV}\ns_add_u32 m0, s{mKV}, 12288\ns_add_u32 s{oW}, s{oW}, 256")
    for i in range(3): dmaKV(i, 1)
    a(f"s_add_u32 m0, s{mW}, 16384\ns_nop 0")
    for i in range(4): dmaW(i, 1)
    for n in range(2, 14):
        if n % 4 == 0: a(f"s_add_u32 s{oZ}, s{oZ}, 4096")
        ldZ(n)
    a(f"s_add_u32 m0, s{mW}, 32768\ns_add_u32 s{oW}, s{oW}, 256")
    dmaW(0, 2); dmaW(1, 2)
    a(f"""s_mul_i32 s{t0}, s{shd}, {2*55296}
    s_lshl_b32 s{t1}, s{sfb}, 11
    s_add_u32 s{t0}, s{t0}, s{t1}
    v_add_u32 v{gE}, s{t0}, v{gZ}
    s_mov_b32 s{t1}, {WS_Z1}
    s_mov_b32 s{t2}, {WS_Z1 + 55296}""")
    for tb in range(2):
        for r in range(2): a.vmem(f"buffer_load_dwordx4 {V(Z1[tb]+4*r,4)}, v{gE}, {S(rE,4)}, s{t1+tb} offen offset:{1024*r}", 'z1')
    a(f"v_and_b32 v{T+1}, 15, v{ln}\nv_lshlrev_b32 v{T+2}, 8, v{l31}")
    for j in range(8):
        a(f"""v_add_u32 v{T}, {2*j}, v{hf}
        v_xor_b32 v{T}, v{T}, v{T+1}
        v_lshl_add_u32 v{aW[j]}, v{T}, 4, v{T+2}""")
    a(f"""s_lshl_b32 s{t0}, s{sodd}, 9
    s_add_u32 s{t0}, s{t0}, {KVB}
    v_add_u32 v{aKm}, s{t0}, v{gZ}
    s_cmp_eq_u32 s{sodd}, 0
    s_cselect_b32 s{t0}, 1024, 8
    s_cselect_b32 s{t1}, 0, 4
    s_cselect_b32 s{t2}, 0, 16
    s_add_u32 s{t0}, s{t0}, {KVB}
    v_cmp_gt_u32 vcc, 32, v{ln}
    v_mov_b32 v{T+4}, {ONES}
    v_add_u32 v{T}, s{t0}, v{gZ}""")
    for s in range(4):
        a(f"v_cndmask_b32 v{aKr[s]}, v{T+4}, v{T}, vcc")
        if s < 3: a(f"v_add_u32 v{T}, 12288, v{T}")
    a(f"""v_and_b32 v{T}, 3, v{l31}
    v_bfe_u32 v{T+1}, v{l31}, 2, 1
    v_bfe_u32 v{T+2}, v{l31}, 3, 1
    v_lshl_add_u32 v{T}, v{T+1}, 3, v{T}
    v_lshl_add_u32 v{T}, v{T+2}, 2, v{T}
    v_add_u32 v{T}, s{t1}, v{T}
    v_subrev_u32 v{T+1}, s{t2}, v{l31}
    v_cmp_gt_u32 vcc, 16, v{l31}
    v_mul_u32_u24 v{T+2}, 320, v{hf}
    v_add_u32 v{T+2}, {KVB+6144}, v{T+2}
    v_cndmask_b32 v{T}, v{T+1}, v{T}, vcc
    v_cmp_gt_u32 vcc, 20, v{l31}
    v_lshl_add_u32 v{T}, v{T}, 4, v{T+2}
    s_nop 0""")
    for s in range(4):
        a(f"v_cndmask_b32 v{aV[s]}, v{T+4}, v{T}, vcc")
        if s < 3: a(f"v_add_u32 v{T}, 12288, v{T}")
    for i in range(4): a(f"v_mov_b32 v{T+i}, {0 if '0' in X else 0x3f803f80}")
    a(f"v_lshl_add_u32 v{T+4}, v0, 4, v{T+4}\nv_mov_b32 v{T+5}, {FLAG}\nv_mov_b32 v{T+6}, 0")
    a.ds(f"ds_write_b128 v{T+4}, {V(T,4)}"); a.ds(f"ds_write_b128 v{T+4}, {V(T,4)} offset:1024"); a.ds(f"ds_write_b32 v{T+5}, v{T+6}")
    for r in list(range(O[0], O[0]+16)) + list(range(O[1], O[1]+16)) + list(range(SB[1]+8, SB[1]+16)) + list(range(V2[1], V2[1]+4)) + list(range(W1[1], W1[1]+4)):
        a(f"v_mov_b32 v{r}, 0")
    for i in range(4): a(f"v_accvgpr_write_b32 a{Z[15]+i}, 0")
    stamp(a, 6); a.need(vm=['b']); stamp(a, 7)
    for tb in range(2):
        a(f"v_lshlrev_b32 v{G[tb]}, 16, v{bs[tb]}")
        for i in range(1, 16): a(f"v_mov_b32 v{G[tb]+i}, v{G[tb]}")
    a.drain(vm=False)
    a("s_barrier"); stamp(a, 1); stamp(a, 4, 1); a("s_waitcnt lgkmcnt(0)" if PROF else "")
    def rdKm(kb): a.ds(f"ds_read_b128 {V(Km[kb%2],4)}, v{aKm} offset:{(kb//4%4)*12288 + kb%4*1536}", ('Km', kb))
    def rdKr(kb): a.ds(f"ds_read_b64 {V(Kr[kb%2],2)}, v{aKr[kb//4%4]} offset:{kb%4*1536}", ('Kr', kb))
    def rdV(h, kb): a.ds(f"ds_read_b128 {V((V1,V2)[h][kb%2],4)}, v{aV[kb//4%4]} offset:{kb%4*1280 + 640*h}", ('V', h, kb))
    def rdW(tb, n): 'W' in X or a.ds(f"ds_read_b128 {V((W0,W1)[tb][n%2],4)}, v{aW[n%8]} offset:{(n//8%4)*16384 + 8192*tb}", ('W', tb, n))
    def mM(n): 'M' in X or a(f"v_mfma_f32_32x32x16_bf16 {V(SB[n%2],16)}, {V(Km[n//2%2],4)}, {V(Qm[n%2],4)}, 0")
    def mm(n): 'm' in X or a(f"v_mfma_f32_32x32x8_bf16 {V(SB[n%2],16)}, {V(Kr[n//2%2],2)}, {V(Qr[n%2],2)}, {V(SB[n%2],16)}")
    def mS(h, n): 'S' in X or a(f"v_smfmac_f32_32x32x32_bf16 {V(O[n%2],16)}, {V((V1,V2)[h][n//2%2],4)}, {V(SB[n%2]+8*h,8)}, v{idx}")
    def mG(tb, n): 'G' in X or a(f"v_mfma_f32_32x32x16_bf16 {V(G[tb],16)}, {A(Z[n%16],4)}, {V((W0,W1)[tb][n%2],4)}, {V(G[tb],16)}")
    rdKm(0); rdKr(0); rdW(0, 0)
    a.need(lg=[('Kr', 0)])
    mM(0); a("s_nop 1"); mm(0); a("s_nop 7\ns_nop 3")
    a(f"{N}_loop:")
    def body(it):
        for t in range(32):
            n = it * 32 + t; kb = n // 2; st = n // 8; tt = t % 8; ev = t % 2 == 0
            ex = lambda lo, hi: [a(f"v_exp_f32 v{SB[n%2]+i}, v{SB[n%2]+i}") for i in range(lo, hi) if 'E' not in X]
            sal = [[], [], []]
            if tt == 6: sal[1].append(f"s_add_u32 s{oW}, s{oW}, 256"); sal[2].append(f"s_add_u32 m0, s{mW}, {(st+3)%4*16384}"); sal[0].append(f"s_add_u32 s{oZ}, s{oZ}, 4096")
            if tt == 2: sal[1].append(f"s_add_u32 s{oKV}, s{oKV}, s{incKV}"); sal[2].append(f"s_add_u32 m0, s{mKV}, {(st+2)%4*12288}"); sal[0].append(f"s_add_u32 s{oZ}, s{oZ}, 4096")
            if t == 12: sal[0].append(f"s_cmp_eq_u32 s{cnt}, 3"); sal[1].append(f"s_cselect_b32 s{rW+2}, 0, s{rW+2}")
            if t == 16: sal[0].append(f"s_cmp_eq_u32 s{cnt}, 3"); sal[1].append(f"s_cselect_b32 s{rKV+2}, 0, s{rKV+2}")
            if t == 28: sal[0].append(f"s_add_u32 s{cnt}, s{cnt}, 1")
            mG(1, n - 1); a.need(lg=[('V', 1, (n - 1) // 2)]); [a(x) for x in sal[0]]
            rdW(1, n)
            if ev: rdV(0, kb)
            else: ldZ(n + 13)
            ex(0, 2)
            mS(1, n - 1); a.need(lg=[('Km', (n + 1) // 2)]); [a(x) for x in sal[1]]
            if ev: rdV(1, kb)
            else: ldZ(n + 14)
            ex(2, 5)
            mM(n + 1)
            a.need(lg=[('Kr', (n + 1) // 2), ('W', 0, n)], vm=[('Z', n)] + ([('D', st + 1)] if tt == 6 else []))
            if tt == 6: a("s_barrier")
            if ev: rdKm(kb + 1)
            elif tt == 7: dmaW(0, st + 3)
            elif tt == 1: dmaW(2, st + 2)
            elif tt == 3: dmaKV(0, st + 2)
            elif tt == 5: dmaKV(2, st + 2)
            ex(5, 8)
            mm(n + 1); ex(8, 11)
            mG(0, n); a.need(lg=[('V', 0, kb)])
            if t == 17: a(f"s_cselect_b32 s{rZ+2}, 0, s{rZ+2}")
            if t == 31: a(f"s_cmp_lt_u32 s{cnt}, 4")
            rdW(0, n + 1); ex(11, 13)
            mS(0, n); a.need(lg=[('W', 1, n)]); [a(x) for x in sal[2]]
            if ev: rdKr(kb + 1)
            elif tt == 7: dmaW(1, st + 3)
            elif tt == 1: dmaW(3, st + 2)
            elif tt == 3: dmaKV(1, st + 2)
            ex(13, 16)
        a(f"s_cbranch_scc1 {N}_loop")
    a.loop(body, 3)
    mG(1, 127); a("s_nop 0"); mS(1, 127); stamp(a, 2); stamp(a, 5, 1)
    U = [SB[0], V1[0]]
    a(f"s_mov_b32 s{t0}, 0x2b800000\ns_mov_b32 s{t1}, 0x53800000\ns_mov_b32 s{t2}, 0xffff0000")
    def unpack(tb, d):
        for i in range(8): a(f"v_lshlrev_b32 v{d+2*i}, 16, v{Z1[tb]+i}\nv_and_b32 v{d+2*i+1}, s{t2}, v{Z1[tb]+i}")
    a.lg = []; a("s_waitcnt lgkmcnt(0)")
    unpack(0, SB[0])
    sA, sB = a.sg(2), a.sg(2)
    a(f"""v_cmp_le_f32 vcc, s{t0}, v{O[0]+12}
    v_cmp_ge_f32 {S(sA,2)}, s{t1}, v{O[0]+12}
    s_and_b64 {S(sB,2)}, vcc, {S(sA,2)}
    v_cmp_le_f32 vcc, s{t0}, v{O[1]+12}
    v_cmp_ge_f32 {S(sA,2)}, s{t1}, v{O[1]+12}
    s_and_b64 {S(sB,2)}, vcc, {S(sB,2)}
    s_and_b64 {S(sB,2)}, {S(sA,2)}, {S(sB,2)}
    v_mov_b32 v{T+5}, {FLAG}
    s_cmp_eq_u64 {S(sB,2)}, -1
    s_cbranch_scc1 {N}_ok
    ds_write_b32 v{T+5}, v{T+5}
    s_waitcnt lgkmcnt(0)
    {N}_ok:
    s_barrier
    ds_read_b32 v{T+6}, v{T+5}""")
    unpack(1, SB[1])
    a(f"s_mov_b32 s{t0}, {WS_H}\ns_mov_b32 s{t1}, {WS_H + 55296}")
    for tb in range(2):
        for i in range(8): a(f"v_pk_mul_f32 {V(G[tb]+2*i,2)}, {V(G[tb]+2*i,2)}, {V(SB[tb]+2*i,2)}")
        for i in range(8): a(f"v_cvt_pk_bf16_f32 v{SB[tb]+i}, v{G[tb]+2*i}, v{G[tb]+2*i+1}")
        for r in range(2): a(f"buffer_store_dwordx4 {V(SB[tb]+4*r,4)}, v{gE}, {S(rE,4)}, s{t0+tb} offen offset:{1024*r}{WT}")
    a(f"""s_waitcnt lgkmcnt(0)
    v_readfirstlane_b32 s{t2}, v{T+6}
    s_mov_b32 s{t0}, 40960
    s_andn2_b32 s{t2}, s{t2}, s{retry}
    {'s_nop 0 ;' if X else ''}s_cbranch_scc1 {N}_fall""")
    for q in range(2):
        a(f"v_rcp_f32 v{T}, v{O[q]+12}\ns_nop 0")
        for i in range(12): a(f"v_mul_f32 v{O[q]+i}, v{O[q]+i}, v{T}")
        for i in range(6): a(f"v_cvt_pk_bf16_f32 v{G[q]+i}, v{O[q]+2*i}, v{O[q]+2*i+1}")
        so = f"s{t0}" if q else "0"
        a(f"buffer_store_dwordx4 {V(G[q],4)}, v{gOm}, {S(rO,4)}, {so} offen{WT}\nbuffer_store_dwordx2 {V(G[q]+4,2)}, v{gOr}, {S(rO,4)}, {so} offen{WT}")
    stamp(a, 3); a("s_waitcnt vmcnt(0)"); stamp_out(a, 2, 8); a("s_endpgm")
    mx = [G[0], G[0] + 1]; gK, gKr = G[0] + 2, G[0] + 3
    a(f"""{N}_fall:
    s_waitcnt vmcnt(0)
    s_mov_b32 s{retry}, -1
    s_mov_b32 s{rW+2}, s{szW}
    s_mov_b32 s{rKV+2}, {WS_Z1}
    s_mov_b32 s{rZ+2}, s{szZ}
    s_lshl_b32 s{t0}, s{sqg}, 2
    s_add_u32 s{t0}, s{t0}, s{sw}
    s_mul_i32 s{t0}, s{t0}, 163840
    v_subrev_u32 v{gK}, s{t0}, v{gQm}
    v_subrev_u32 v{gKr}, s{t0}, v{gQr}
    v_mov_b32 v{mx[0]}, 0xff800000
    v_mov_b32 v{mx[1]}, 0xff800000
    s_mov_b32 s{t0}, 40960
    {N}_fl:
    buffer_load_dwordx4 {V(Km[0],4)}, v{gK}, {S(rKV,4)}, s{t0} offen
    buffer_load_dwordx2 {V(Kr[0],2)}, v{gKr}, {S(rKV,4)}, s{t0} offen
    s_waitcnt vmcnt(0)""")
    mM(0); mM(1); mm(0); mm(1); a("s_nop 7\ns_nop 7")
    for q in range(2):
        for i in range(8): a(f"v_max3_f32 v{mx[q]}, v{SB[q]+2*i}, v{SB[q]+2*i+1}, v{mx[q]}")
    a(f"""s_add_u32 s{t0}, s{t0}, 81920
    s_cmp_lt_u32 s{t0}, {64*81920}
    s_cbranch_scc1 {N}_fl
    v_cmp_gt_u32 vcc, 32, v{ln}
    s_mov_b32 s{t2}, 0xffff0000""")
    for q in range(2):
        a(f"""v_mov_b32 v{T}, v{mx[q]}
        s_nop 1
        v_permlane32_swap_b32 v{T}, v{mx[q]}
        s_nop 1
        v_max_f32 v{T}, v{T}, v{mx[q]}
        v_sub_f32 v{T}, 0, v{T}
        v_and_b32 v{T+1}, s{t2}, v{T}
        v_sub_f32 v{T}, v{T}, v{T+1}
        v_and_b32 v{T+2}, s{t2}, v{T}
        v_sub_f32 v{T}, v{T}, v{T+2}
        v_lshrrev_b32 v{T+1}, 16, v{T+1}
        v_or_b32 v{T+1}, v{T+1}, v{T+2}
        v_lshrrev_b32 v{T}, 16, v{T}
        v_cndmask_b32 v{Qr[q]}, v{T+1}, v{Qr[q]}, vcc
        v_cndmask_b32 v{Qr[q]+1}, v{T}, v{Qr[q]+1}, vcc""")
    a(f"s_barrier\ns_branch {N}_restart\n{N}_end:\ns_endpgm")
    return a
```

```python
from asm import *
NS = 5
LDS3 = NS * 20480
def k3():
    a = Asm(); N = "k3"
    head(a, N); stamp0(a)
    pX, pO, pWS = a.sg(2), a.sg(2), a.sg(2)
    a(f"""s_load_dwordx2 {S(pX,2)}, s[0:1], 0
    s_load_dwordx2 {S(pO,2)}, s[0:1], 64
    s_load_dwordx2 {S(pWS,2)}, s[0:1], 80""")
    rA, rW, rX, rO = [a.sg(4) for _ in range(4)]
    sw, srb, scb, t0, t1, t2, oA, oW = [a.sg() for _ in range(8)]
    acc = [[a.v(4) for _ in range(5)] for _ in range(2)]
    Wf = [a.v(4) for _ in range(10)]
    xr = a.v(10); ln, gO, gH, gW, aW, gX = [a.v() for _ in range(6)]; T = a.v(24)
    act = [a.a(4) for _ in range(47)]
    a(f"""v_lshrrev_b32 v{T}, 6, v0
    v_and_b32 v{ln}, 63, v0
    v_readfirstlane_b32 s{sw}, v{T}
    s_and_b32 s{t0}, s2, 7
    s_lshr_b32 s{t1}, s2, 6
    s_lshl_b32 s{t0}, s{t0}, 2
    s_add_u32 s{srb}, s{t0}, s{t1}
    s_bfe_u32 s{scb}, s2, 0x30003
    s_mul_i32 s{t0}, s{scb}, {47*5120}
    s_add_u32 s{t0}, s{t0}, {WS_WT}
    v_lshlrev_b32 v{aW}, 4, v{ln}
    v_lshlrev_b32 v{gW}, 4, v0
    v_and_b32 v{T}, 15, v0
    v_bfe_u32 v{T+1}, v0, 4, 2
    v_bfe_u32 v{T+2}, v0, 6, 1
    v_lshl_add_u32 v{T+2}, v{T+2}, 4, v{T}
    v_lshlrev_b32 v{T+2}, 4, v{T+2}
    v_lshl_add_u32 v{T+2}, v{T+1}, 9, v{T+2}
    s_lshr_b32 s{t1}, s{sw}, 1
    s_lshl_b32 s{t2}, s{srb}, 1
    s_add_u32 s{t1}, s{t1}, s{t2}
    s_mul_i32 s{t2}, s{t1}, 40960
    v_add_u32 v{gO}, s{t2}, v{T+2}
    s_mul_i32 s{t2}, s{t1}, 55296
    s_add_u32 s{t2}, s{t2}, {WS_H - WS_O - 20*2048}
    v_add_u32 v{gH}, s{t2}, v{T+2}
    s_lshl_b32 s{t1}, s{srb}, 2
    s_add_u32 s{t1}, s{t1}, s{sw}
    s_mul_i32 s{t1}, s{t1}, {16*1280}
    s_mul_i32 s{t2}, s{scb}, 160
    s_add_u32 s{t1}, s{t1}, s{t2}
    v_mul_u32_u24 v{T}, 1280, v{T}
    v_mul_u32_u24 v{T+1}, 40, v{T+1}
    v_add3_u32 v{gX}, v{T}, v{T+1}, s{t1}
    s_lshl_b32 s{sw}, s{sw}, 10
    s_waitcnt lgkmcnt(0)""")
    srd(a, rW, pWS, f"s{t0}", 47 * 5120); srd(a, rA, pWS, WS_O, WS_WT - WS_O); srd(a, rX, pX, 0, 2621440); srd(a, rO, pO, 0, 2621440)
    def loads(c):
        L = []
        if c >= 12: return L
        for i in range(5):
            if c == 11 and i == 4: continue
            def f(i=i):
                a(f"s_add_u32 m0, s{sw}, {(c % NS) * 20480 + i * 4096}\ns_mov_b32 s{oW}, {c * 20480 + i * 4096}")
                a.vmem(f"buffer_load_dwordx4 v{gW}, {S(rW,4)}, s{oW} offen lds", ('C', c))
            L.append(f)
            ks = 4 * c + i
            if i < 4 and ks < 47:
                def g(ks=ks):
                    if ks % 2 == 0: a(f"s_mov_b32 s{oA}, {ks * 2048}")
                    a.vmem(f"buffer_load_dwordx4 {A(act[ks],4)}, v{gO if ks < 20 else gH}, {S(rA,4)}, s{oA} offen offset:{ks % 2 * 2048}", ('C', c))
                L.append(g)
        return L
    for c in range(NS - 1):
        for f in loads(c): f()
    for r in range(acc[0][0], acc[0][0] + 40): a(f"v_mov_b32 v{r}, 0")
    def rd(f): a.ds(f"ds_read_b128 {V(Wf[f % 10],4)}, v{aW} offset:{(f // 20 % NS) * 20480 + f % 20 * 1024 - (65536 if (f // 20 % NS) * 20480 + f % 20 * 1024 >= 65536 else 0)}".replace(f"v{aW} ", f"v{aW if (f // 20 % NS) * 20480 + f % 20 * 1024 < 65536 else T+23} "), ('W', f))
    a(f"v_add_u32 v{T+23}, 0x10000, v{aW}")
    for c in range(12):
        a.need(vm=[('C', c)]); a("s_barrier")
        if c == 0: stamp(a, 1); a("s_waitcnt lgkmcnt(0)" if PROF else "")
        L = loads(c + NS - 1)
        if c == 8:
            L = [lambda: a.vmem(f"buffer_load_dwordx4 {V(xr,4)}, v{gX}, {S(rX,4)}, 0 offen", 'x'),
                 lambda: a.vmem(f"buffer_load_dwordx4 {V(xr+4,4)}, v{gX}, {S(rX,4)}, 0 offen offset:16", 'x'),
                 lambda: a.vmem(f"buffer_load_dwordx2 {V(xr+8,2)}, v{gX}, {S(rX,4)}, 0 offen offset:32", 'x')]
        nf = 20 if c < 11 else 15
        for i in range(8): rd(20 * c + i)
        for i in range(nf):
            f = 20 * c + i; ks = f // 5; d = acc[ks >= 20][f % 5]
            a.need(lg=[('W', f)])
            a(f"v_mfma_f32_16x16x32_bf16 {V(d,4)}, {V(Wf[f % 10],4)}, {A(act[ks],4)}, {V(d,4)}")
            if i + 8 < nf: rd(f + 8)
            if i % 2 == 1 and L: L.pop(0)()
    stamp(a, 2)
    a.need(vm=['x'])
    a(f"s_mov_b32 s{t0}, 0xbfb8aa3b\ns_mov_b32 s{t1}, 0xffff0000\ns_nop 4")
    s0, y0 = acc[0][0], acc[1][0]
    for i in range(20): a(f"v_mul_f32 v{T+i}, s{t0}, v{y0+i}")
    for i in range(20): a(f"v_exp_f32 v{T+i}, v{T+i}")
    for i in range(10): a(f"v_pk_mul_f32 {V(s0+2*i,2)}, {V(s0+2*i,2)}, {V(y0+2*i,2)}")
    for i in range(10): a(f"v_pk_add_f32 {V(T+2*i,2)}, {V(T+2*i,2)}, 1.0 op_sel_hi:[1,0]")
    for i in range(20): a(f"v_rcp_f32 v{T+i}, v{T+i}")
    for i in range(10): a(f"v_lshlrev_b32 v{y0+2*i}, 16, v{xr+i}\nv_and_b32 v{y0+2*i+1}, s{t1}, v{xr+i}")
    for i in range(10): a(f"v_pk_fma_f32 {V(s0+2*i,2)}, {V(s0+2*i,2)}, {V(T+2*i,2)}, {V(y0+2*i,2)}")
    for i in range(10): a(f"v_cvt_pk_bf16_f32 v{xr+i}, v{s0+2*i}, v{s0+2*i+1}")
    a(f"""buffer_store_dwordx4 {V(xr,4)}, v{gX}, {S(rO,4)}, 0 offen
    buffer_store_dwordx4 {V(xr+4,4)}, v{gX}, {S(rO,4)}, 0 offen offset:16
    buffer_store_dwordx2 {V(xr+8,2)}, v{gX}, {S(rO,4)}, 0 offen offset:32""")
    stamp(a, 3); a("s_waitcnt vmcnt(0)"); stamp_out(a, 3, 4)
    a(f"{N}_end:\ns_endpgm")
    return a
```

```python
import sys
from asm import *
import k2
NAME = "recurrent_scan__softmax_full_mha__mixer_gmlp__prompt"
def kern(name, a):
    return f""".globl {name}_kernel
.p2align 8
.type {name}_kernel,@function
{name}_kernel:
{a.text()}
"""
def desc(name):
    return f""".p2align 6
.amdhsa_kernel {name}_kernel
  .amdhsa_next_free_vgpr 512
  .amdhsa_next_free_sgpr 102
  .amdhsa_accum_offset 256
  .amdhsa_group_segment_fixed_size 0
  .amdhsa_kernarg_size 88
  .amdhsa_user_sgpr_count 2
  .amdhsa_user_sgpr_kernarg_segment_ptr 1
  .amdhsa_system_sgpr_workgroup_id_x 1
.end_amdhsa_kernel
"""
ks = []
try:
    import k1; ks.append(("k1", k1.k1(), k1.LDS1))
except ImportError: pass
ks.append(("k2", k2.k2(), k2.LDS2))
ks[0][1].L += ks[1][1].L; print(ks[1][1].nv, ks[1][1].ns); ks = ks[:1]
hdr = [l for l in open(f"cdna_kernels/{NAME}.s.ref").read().split("\n") if l.startswith(";") and "@launch grid" not in l]
out = "\n".join(hdr) + "\n" + "".join(f"; @launch kernel={n}_kernel grid=(256,1,1) block=(256,1,1) lds={l}\n" for n, a, l in ks)
out += '.amdgcn_target "amdgcn-amd-amdhsa--gfx950"\n.text\n' + "".join(kern(n, a) for n, a, l in ks)
out += '.section .rodata,"a"\n' + "".join(desc(n) for n, a, l in ks)
dst = sys.argv[1] if len(sys.argv) > 1 else f"cdna_kernels/{NAME}.s"
open(dst, "w").write(out)
for n, a, l in ks: print(n, "lines", len(a.L), "v", a.nv, "a", a.na, "s", a.ns, "lds", l)
```

```python
from asm import *
import struct
LDS1 = 163840
XB = 98304
F = lambda x: hex(struct.unpack("<I", struct.pack("<f", x))[0])
PRE = int(os.environ.get("K1PRE", "3")); RATE = 2.5
X = os.environ.get('X1', '')
PFM = int(os.environ.get('PFM', '1'))
def k1():
    a = Asm(); N = "k1"
    head(a, N, 2); stamp0(a)
    pX, pQ, pI, pD, pWS, pWo, pWout = [a.sg(2) for _ in range(7)]
    for p, o in ((pX, 0), (pQ, 8), (pI, 32), (pD, 72), (pWS, 80), (pWo, 16), (pWout, 56)): a(f"s_load_dwordx2 {S(p,2)}, s[0:1], {o}")
    rX, rWA, rWB, rS, rD = [a.sg(4) for _ in range(5)]
    sw, srb, scg, b0, b1, t0, t1, t2, t3, oX, oW, mX, mW, sblk, scs, spin = [a.sg() for _ in range(16)]
    acc = [a.v(16) for _ in range(8)]
    aW = [[[a.v() for _ in range(4)] for jp in range(2)] for hh in range(2)]
    aX = [a.v() for _ in range(4)]; gX = [a.v() for _ in range(4)]; gW = [[a.v() for _ in range(4)] for ph in range(2)]
    sel = a.v(4); cs = [[a.v(4), a.v(4)] for ph in range(2)]; sx = a.v(4); sq = [a.v(4), a.v(4)]
    xe = a.v(2); we = [a.v(2) for _ in range(4)]
    ln, l16, c1, c2, ir, rr, s1, s2, gS, aC, aTw, aTr, gD = [a.v() for _ in range(13)]
    T = a.v(16, 4); P = a.v(14, 4)
    xf = [a.a(4) for _ in range(40)]; Wf = [a.a(4) for _ in range(8)]
    a(f"""v_lshrrev_b32 v{T}, 6, v0
    v_and_b32 v{ln}, 63, v0
    v_readfirstlane_b32 s{sw}, v{T}
    s_and_b32 s{t0}, s2, 1
    s_bfe_u32 s{t1}, s2, 0x30003
    s_lshl_b32 s{t0}, s{t0}, 3
    s_add_u32 s{srb}, s{t0}, s{t1}
    s_bfe_u32 s{t0}, s2, 0x20001
    s_lshr_b32 s{t1}, s2, 6
    s_lshl_b32 s{t0}, s{t0}, 2
    s_add_u32 s{scg}, s{t0}, s{t1}
    v_lshlrev_b32 v{l16}, 4, v{ln}
    s_cmp_eq_u32 s{scg}, 15
    s_cbranch_scc1 {N}_side
    s_and_b32 s{b0}, s{sw}, 1
    s_mov_b32 s{spin}, 0
    s_lshr_b32 s{b1}, s{sw}, 1
    s_lshl_b32 s{sblk}, s{srb}, 2
    s_add_u32 s{sblk}, s{sblk}, s{sw}
    s_mul_i32 s{t0}, s{sblk}, 40960
    s_lshl_b32 s{mX}, s{sw}, 14
    s_add_u32 s{mX}, s{mX}, {XB}
    s_lshl_b32 s{mW}, s{sw}, 12
    v_lshrrev_b32 v{T}, 3, v{ln}
    v_lshrrev_b32 v{T+1}, 4, v{ln}
    v_and_b32 v{T+2}, 7, v{ln}
    v_mul_u32_u24 v{T}, 1280, v{T}
    v_xor_b32 v{T+2}, v{T+2}, v{T+1}
    v_lshl_add_u32 v{gX[0]}, v{T+2}, 4, v{T}
    v_xor_b32 v{gX[1]}, 64, v{gX[0]}
    v_add_u32 v{gX[1]}, {10240-1024}, v{gX[1]}
    v_add_u32 v{gX[2]}, {20480-2048}, v{gX[0]}
    v_add_u32 v{gX[3]}, {20480-2048}, v{gX[1]}
    s_cmp_lt_u32 s{scg}, 14
    s_cselect_b32 s{t1}, {640*3456}, 0
    s_waitcnt lgkmcnt(0)""")
    stamp(a, 7)
    srd(a, rX, pX, f"s{t0}", 0 if 'x' in X else 40960); srd(a, rWA, pI, 0, 0 if 'w' in X else f"s{t1}"); srd(a, rWB, pQ, 0, 0 if 'b' in X else 640 * 3840)
    a(f"""v_bfe_u32 v{T+2}, v{ln}, 2, 2
    v_xor_b32 v{T+2}, v{T+2}, v{T+1}
    v_and_b32 v{T+3}, 3, v{ln}
    v_lshlrev_b32 v{T+3}, 4, v{T+3}
    v_lshl_add_u32 v{T+3}, v{T+2}, 6, v{T+3}
    s_lshl_b32 s{t0}, s{sw}, 4
    v_add_u32 v{T+1}, s{t0}, v{T+1}
    s_lshl_b32 s{t0}, s{scg}, 7
    s_add_u32 s{t1}, s{t0}, 1728
    s_sub_u32 s{t0}, s{t0}, 128
    s_cmp_eq_u32 s{scg}, 13
    s_cselect_b32 s{t2}, {OOB}, s{t1}
    v_mov_b32 v{T+4}, s{t0}
    v_mov_b32 v{T+5}, s{t1}
    v_cmp_gt_u32 vcc, 2, v{T+2}
    v_mul_u32_u24 v{T+6}, 3456, v{T+1}
    v_mov_b32 v{T+7}, s{t2}
    v_cndmask_b32 v{T+4}, v{T+4}, v{T+5}, vcc
    v_cmp_eq_u32 vcc, 1, v{T+2}
    v_mul_u32_u24 v{T+5}, 3840, v{T+1}
    s_lshl_b32 s{t0}, s{scg}, 8
    v_cndmask_b32 v{T+4}, v{T+4}, v{T+7}, vcc
    v_add3_u32 v{gW[0][0]}, v{T+4}, v{T+6}, v{T+3}
    v_add3_u32 v{gW[1][0]}, v{T+5}, s{t0}, v{T+3}""")
    for i in range(1, 4):
        a(f"v_add_u32 v{gW[0][i]}, {i*(4*3456-1024)}, v{gW[0][0]}\nv_add_u32 v{gW[1][i]}, {i*(4*3840-1024)}, v{gW[1][0]}")
    DQ = []
    for g in range(20):
        if g < 10: DQ += [('X', g, i) for i in range(4)]
        DQ += [('W', g, i) for i in range(4)]
    def dma():
        k, g, i = DQ.pop(0)
        if k == 'X':
            if i == 0: a(f"s_add_u32 m0, s{mX}, {g%4*4096}\ns_mov_b32 s{oX}, {g*128}")
            a.vmem(f"buffer_load_dwordx4 v{gX[i]}, {S(rX,4)}, s{oX} offen offset:{1024*i} lds", ('X', g))
        else:
            ph = g // 10
            if i == 0: a(f"s_add_u32 m0, s{mW}, {g%6*16384}\ns_mov_b32 s{oW}, {g%10*64*(3456,3840)[ph]}")
            a.vmem(f"buffer_load_dwordx4 v{gW[ph][i]}, {S((rWA,rWB)[ph],4)}, s{oW} offen offset:{1024*i} lds", ('W', g))
    def dma_ok(gap):
        if not DQ: return False
        k, g, i = DQ[0]
        return gap >= (16 * (g - 4) + 9 if k == 'X' else 16 * (g - 4) - 6)
    stamp(a, 8)
    for _ in range(8): dma()
    if PFM:
        a(f"""s_lshr_b32 s{t0}, s2, 6
        s_lshl_b32 s{t0}, s{t0}, 8
        s_add_u32 s{t0}, s{t0}, 256
        v_and_b32 v{T+10}, 31, v{ln}
        v_lshrrev_b32 v{T+11}, 5, v{ln}
        v_mul_u32_u24 v{T+10}, 1280, v{T+10}
        v_lshl_add_u32 v{T+10}, v{T+11}, 7, v{T+10}
        s_bfe_u32 s{t1}, s2, 0x30003
        s_lshl_b32 s{t1}, s{t1}, 2
        s_add_u32 s{t1}, s{t1}, s{sw}
        v_and_b32 v{T+11}, 15, v{ln}
        v_lshrrev_b32 v{T+12}, 4, v{ln}
        v_mul_u32_u24 v{T+11}, {32*3456}, v{T+11}
        v_lshlrev_b32 v{T+13}, 6, v{T+12}
        v_cmp_gt_u32 vcc, 2, v{T+12}
        v_mov_b32 v{T+14}, -128
        v_mov_b32 v{T+15}, 1728
        v_cndmask_b32 v{T+14}, v{T+14}, v{T+15}, vcc
        s_mul_i32 s{t2}, s{t1}, 3456
        s_lshl_b32 s{t3}, s{scg}, 7
        s_add_u32 s{t2}, s{t2}, s{t3}
        s_add_u32 s{t2}, s{t2}, {128*3456}
        v_add3_u32 v{T+11}, v{T+11}, v{T+13}, v{T+14}
        v_add_u32 v{T+11}, s{t2}, v{T+11}""")
        a.vmem(f"buffer_load_dword v255, v{T+10}, {S(rX,4)}, s{t0} offen", 'pf')
        if PFM & 2: a.vmem(f"buffer_load_dword v255, v{T+10}, {S(rX,4)}, s{t0} offen offset:64", 'pf')
        a.vmem(f"buffer_load_dword v255, v{T+11}, {S(rWA,4)}, 0 offen", 'pf')
        a(f"""s_mul_i32 s{t2}, s{t1}, 3840
        s_lshl_b32 s{t3}, s{scg}, 8
        s_add_u32 s{t2}, s{t2}, s{t3}
        v_lshrrev_b32 v{T+12}, 1, v{ln}
        v_and_b32 v{T+13}, 1, v{ln}
        v_mul_u32_u24 v{T+12}, {32*3840}, v{T+12}
        v_lshl_add_u32 v{T+12}, v{T+13}, 7, v{T+12}
        v_add_u32 v{T+15}, s{t2}, v{T+12}""")
    def pfB():
        a.vmem(f"buffer_load_dword v255, v{T+15}, {S(rWB,4)}, 0 offen", 'pf')
        if PFM & 2: a.vmem(f"buffer_load_dword v255, v{T+15}, {S(rWB,4)}, 0 offen offset:64", 'pf')
    if PFM and not PFM & 4: pfB()
    srd(a, rS, pWS, 0, WS_PROF); srd(a, rD, pD, 0, 256)
    a(f"""s_lshl_b32 s{t0}, s{sblk}, 12
    s_add_u32 s{t0}, s{t0}, {WS_ST}
    s_lshl_b32 s{scs}, s{scg}, 8
    v_lshl_add_u32 v{gS}, v{ln}, 2, s{t0}
    s_lshl_b32 s{t0}, s{sblk}, 2
    v_mov_b32 v{gD}, s{t0}""")
    for _ in range(8): dma()
    a(f"""v_and_b32 v{T}, 31, v{ln}
    v_lshrrev_b32 v{T+1}, 5, v{ln}
    v_bfe_u32 v{T+2}, v{ln}, 1, 3
    v_xor_b32 v{T+2}, v{T+2}, v{T+1}
    v_lshlrev_b32 v{T+2}, 4, v{T+2}
    v_lshl_add_u32 v{T+2}, v{T}, 7, v{T+2}
    s_lshl_b32 s{t0}, s{b1}, 5
    v_xor_b32 v{T+2}, s{t0}, v{T+2}""")
    for j in range(4): a(f"v_xor_b32 v{T+3}, {32*j}, v{T+2}\nv_add_u32 v{aX[j]}, s{mX}, v{T+3}")
    a(f"""v_lshlrev_b32 v{T+3}, 6, v{T}
    v_lshl_add_u32 v{T+3}, v{T+1}, 4, v{T+3}
    s_add_u32 s{t0}, s{mX}, 4096
    v_add_u32 v{aTw}, s{t0}, v{T+3}
    v_lshlrev_b32 v{T+3}, 3, v{T}
    v_add_u32 v{aC}, s{mX}, v{T+3}
    v_lshl_add_u32 v{T+9}, v{T+1}, 15, v{T+3}
    v_bfe_u32 v{T+2}, v{ln}, 2, 2
    v_lshl_add_u32 v{T+3}, v{T+1}, 3, v{T+2}
    v_and_b32 v{T+4}, 1, v{ln}
    v_bfe_u32 v{T+5}, v{ln}, 1, 1
    v_bfe_u32 v{T+6}, v{ln}, 4, 1
    v_lshlrev_b32 v{T+4}, 4, v{T+4}
    v_lshl_add_u32 v{T+4}, v{T+5}, 3, v{T+4}
    v_lshl_add_u32 v{T+4}, v{T+6}, 5, v{T+4}
    v_lshl_add_u32 v{T+5}, v{T+3}, 6, v{T+4}
    v_add_u32 v{aTr}, s{t0}, v{T+5}
    v_lshl_add_u32 v{T+4}, v{T+3}, 8, v{T+4}
    v_xor_b32 v{T+2}, s{b0}, v{T+2}
    v_lshl_add_u32 v{T+4}, v{T+2}, 6, v{T+4}
    s_lshl_b32 s{t0}, s{b1}, 12
    v_xor_b32 v{T+4}, s{t0}, v{T+4}""")
    for jp in range(2):
        for p in range(4):
            a(f"v_xor_b32 v{aW[0][jp][p]}, {jp*4096 + p*64}, v{T+4}\nv_add_u32 v{aW[1][jp][p]}, 49152, v{aW[0][jp][p]}")
    for _ in range(8 * (PRE - 2)): dma()
    aCr = [P + 12, P + 13]
    a(f"""s_lshl_b32 s{t0}, s{b0}, 14
    s_add_u32 s{t1}, s{t0}, {XB}
    s_xor_b32 s{t0}, s{t0}, 16384
    s_add_u32 s{t0}, s{t0}, {XB}
    v_add_u32 v{aCr[0]}, s{t1}, v{T+9}
    v_add_u32 v{aCr[1]}, s{t0}, v{T+9}
    v_bfe_u32 v{T}, v{ln}, 2, 1
    v_and_b32 v{T+1}, 3, v{ln}
    v_xor_b32 v{T}, v{T}, v{T+6}
    v_or_b32 v{T}, v{T}, v{T+1}
    v_cmp_eq_u32 vcc, 0, v{T}
    v_mov_b32 v{T+1}, 0x3f803f80
    v_mov_b32 v{s1}, 0
    v_mov_b32 v{s2}, 0""")
    for i in range(4): a(f"v_cndmask_b32 v{sel+i}, 0, v{T+1}, vcc")
    def rdW(m):
        if m >= 320: return
        q, p = m // 4, m % 4; G, j = q // 4, q % 4; sl = G % 6
        for h in range(2):
            a.ds(f"ds_read_b64_tr_b16 {A(Wf[m%8]+2*h,2)}, v{aW[sl//3][j%2][p]} offset:{sl%3*16384 + j//2*8192 + 1024*h}", ('W', m))
    def rdX(q):
        if q < 40: a.ds(f"ds_read_b128 {A(xf[q],4)}, v{aX[q%4]} offset:{q//4%4*4096}", ('X', q))
    stamp(a, 9); a.need(vm=[('X', 0), ('W', 0)]); a("s_barrier"); stamp(a, 1); a("s_waitcnt lgkmcnt(0)" if PROF else "")
    rdX(0); rdW(0); rdW(1); rdX(1)
    for m in range(2, 6): rdW(m)
    a.need(lg=[('W', 1)])
    Q = []
    op = lambda t, c=1: Q.append((c, t))
    def split_cs(ph, emit):
        for h in range(2):
            c = cs[ph][h]
            for t in (f"v_cvt_pk_bf16_f32 v{c+1}, v{c}, v{c}", f"v_and_b32 v{c+2}, 0xffff0000, v{c+1}", f"v_sub_f32 v{c+2}, v{c}, v{c+2}",
                      f"v_cvt_pk_bf16_f32 v{c}, v{c}, v{c+2}", f"v_and_b32 v{c+1}, 0xffff, v{c+1}"): emit(t)
            emit(lambda c=c, h=h: a.ds(f"ds_write_b64 v{aC}, {V(c,2)} offset:{ph*1024 + h*256}", ('cw', ph)))
    def rdE(ph):
        for p in range(4): a.ds(f"ds_read_b64 {V(we[p],2)}, v{aCr[p%2]} offset:{ph*1024 + p//2*256}", ('we', ph))
    def fold(ph, p): a(f"v_mfma_f32_32x32x8_bf16 {V(acc[4*ph+p],16)}, {V(we[p],2)}, {V(xe,2)}, {V(acc[4*ph+p],16)}")
    split_cs(0, op)
    for i in range(4): op(f"v_add_f32 v{sq[0]+i}, v{sq[0]+i}, v{sq[1]+i}")
    op(f"v_and_b32 v{T}, 3, v{ln}")
    for i in range(1, 4):
        op(f"v_cmp_eq_u32 vcc, {i}, v{T}"); op(f"v_mul_f32 v{T+1}, {F(-1/640)}, v{sx}"); op("s_nop 0"); op(f"v_cndmask_b32 v{sq[0]}, v{sq[0]}, v{sq[0]+i}, vcc")
    for t in f"""v_mov_b32 v{T+2}, v{sq[0]}
    v_cvt_pk_bf16_f32 v{xe}, v{T+1}, v{T+1}
    v_and_b32 v{T+3}, 0xffff0000, v{xe}
    v_permlane32_swap_b32 v{T+2}, v{sq[0]}
    v_sub_f32 v{T+3}, v{T+1}, v{T+3}
    v_cvt_pk_bf16_f32 v{xe+1}, v{T+3}, 0
    v_add_f32 v{T+2}, v{T+2}, v{sq[0]}
    v_mul_f32 v{T+1}, v{T+1}, v{T+1}
    v_fma_f32 v{T+2}, v{T+2}, s{t0}, -v{T+1}
    v_max_f32 v{T+2}, 0, v{T+2}
    v_add_f32 v{T+2}, {F(1e-5)}, v{T+2}
    v_rsq_f32 v{rr}, v{T+2}
    s_nop 0
    v_mul_f32 v{ir}, v{T+2}, v{rr}
    v_mul_f32 v{c1}, {F(-2*0.7978845608028654*1.4426950408889634)}, v{rr}
    v_mul_f32 v{c2}, v{rr}, v{rr}
    v_mul_f32 v{c2}, v{c1}, v{c2}
    v_mul_f32 v{c2}, {F(0.044715)}, v{c2}""".split("\n"): op(t)
    nprep = len(Q)
    def gelu(r0, stats):
        R = range(4)
        for i in R: op(f"v_mul_f32 v{T+i}, v{r0+i}, v{r0+i}")
        for i in R: op(f"v_fma_f32 v{T+i}, v{T+i}, v{c2}, v{c1}")
        for i in R: op(f"v_mul_f32 v{T+i}, v{T+i}, v{r0+i}")
        for i in R: op(f"v_exp_f32 v{T+i}, v{T+i}", 2)
        for i in R: op(f"v_fma_f32 v{T+i}, v{T+i}, v{ir}, v{ir}")
        for i in R: op(f"v_rcp_f32 v{T+i}, v{T+i}", 2)
        for i in R: op(f"v_mul_f32 v{r0+i}, v{r0+i}, v{T+i}")
        if stats:
            for i in R: op(f"v_add_f32 v{s1}, v{s1}, v{r0+i}"); op(f"v_fma_f32 v{s2}, v{r0+i}, v{r0+i}, v{s2}")
    for p in range(2):
        for b in range(4): gelu(acc[p] + 4 * b, True)
    op("s_nop 1"); op(f"v_permlane32_swap_b32 v{s1}, v{s2}"); op("s_nop 1"); op(f"v_add_f32 v{s1}, v{s1}, v{s2}"); op(f"v_min_u32 v{s1}, -2, v{s1}")
    pubop = lambda: a.vmem(f"buffer_store_dword v{s1}, v{gS}, {S(rS,4)}, s{scs} offen sc0 sc1", 'pub')
    op(pubop)
    def zaddr(p, mul, base):
        return f"""s_xor_b32 s{t1}, s{b0}, {p&1}
        s_lshl_b32 s{t2}, s{scg}, 1
        s_add_u32 s{t1}, s{t1}, s{t2}
        s_mul_i32 s{t2}, s{t1}, {mul}
        s_add_u32 s{t2}, s{t2}, s{base}
        s_cmp_lt_u32 s{t1}, 27
        s_cselect_b32 s{t2}, s{t2}, {OOB}""".split("\n")
    op(f"s_mul_i32 s{t3}, s{sblk}, 55296"); op(f"s_add_u32 s{t3}, s{t3}, {WS_Z1}")
    for p in range(2, 4):
        op("\n".join(zaddr(p, 2048, t3)), 7)
        op(f"v_add_u32 v{T+4+p}, s{t2}, v{l16}")
        for b in range(4):
            gelu(acc[p] + 4 * b, False)
            for i in range(2): op(f"v_cvt_pk_bf16_f32 v{acc[p]+2*b+i}, v{acc[p]+4*b+2*i}, v{acc[p]+4*b+2*i+1}")
            if b % 2: op(lambda p=p, b=b: a.vmem(f"buffer_store_dwordx4 {V(acc[p]+2*b-2,4)}, v{T+4+p}, {S(rS,4)}, 0 offen offset:{b//2*1024}{WT}", 'st'))
    total = sum(c for c, _ in Q[nprep:])
    def pop(budget):
        while Q and budget > 0:
            c, t = Q.pop(0); budget -= c
            t() if callable(t) else a(t)
        return budget
    G0, G1, GE = 162, 177, 312
    credit = 0.0; dcredit = 0.0; npopped = lambda: len(Q)
    nq0 = len(Q)
    for m in range(320):
        ph, q, p = m // 160, m // 4, m % 4; j = q % 4; d = acc[4 * ph + p]
        a(f"v_mfma_f32_32x32x16_bf16 {V(d,16)}, {A(Wf[m%8],4)}, {A(xf[q%40],4)}, {V(d,16) if q % 40 else 0}")
        vm, lg = [], []
        if m % 2 == 1: lg += [('W', m + 1), ('W', m + 2)]
        if p == 3: lg += [('X', q + 1)]
        if (m + 8) % 16 == 0: vm += [('X', (m + 8) // 16)]
        bar = (m + 6) % 16 == 0 and m + 6 < 320
        if bar: vm += [('W', (m + 6) // 16)]
        if m == 170: lg += [('cw', 0)]; assert len(Q) <= nq0 - 12
        if m == 173: lg += [('we', 0)]
        a.need(vm=vm, lg=lg)
        if bar: a("s_barrier")
        if m == 170: rdE(0)
        if p == 0 and ph == 0: rdX(q + 2)
        rdW(m + 6)
        if m == 40 and PFM & 4: pfB()
        dcredit += RATE / 4
        if dcredit >= 1 and dma_ok(m): dma(); dcredit -= 1
        dcredit = min(dcredit, 1.5)
        c0 = (lambda r: V(r, 4) if q % 40 >= 2 else 0)
        if j % 2 == 0 and p % 2 == 0 and 'c' not in X: a(f"v_mfma_f32_16x16x32_bf16 {V(cs[ph][p//2],4)}, {V(sel,4)}, {A(Wf[m%8],4)}, {c0(cs[ph][p//2])}")
        if ph == 0 and p == 1 and 's' not in X: a(f"v_mfma_f32_16x16x32_bf16 {V(sx,4)}, {V(sel,4)}, {A(xf[q],4)}, {V(sx,4) if q else 0}")
        if ph == 0 and p == 3 and 'q' not in X:
            for h in range(2): a(f"v_mfma_f32_4x4x4_16b_bf16 {V(sq[h],4)}, {A(xf[q]+2*h,2)}, {A(xf[q]+2*h,2)}, {V(sq[h],4) if q else 0}")
        if m == 159: stamp(a, 2); a(f"s_mov_b32 s{t0}, {F(1/640)}")
        if 173 <= m < 177: assert len(Q) == nq0 - nprep; fold(0, m - 173)
        if G0 <= m < 173:
            for _ in range(6):
                if len(Q) > nq0 - nprep: pop(1)
        if m >= G1: credit = pop(credit + total / (GE - G1))
        if m == 150: a.vmem(f"buffer_load_dword v{T+10}, v{gD}, {S(rD,4)}, 0 offen", 'cnt')
        if m == 214:
            assert any(t is pubop for c, t in Q)
            a.need(vm=['cnt'])
            a(f"""{N}_c0:
            v_readfirstlane_b32 s{oX}, v{T+10}
            s_cmp_eq_u32 s{oX}, 15
            s_cbranch_scc1 {N}_c1
            s_add_u32 s{spin}, s{spin}, 0x4000
            s_cbranch_scc1 {N}_c1
            buffer_load_dword v{T+10}, v{gD}, {S(rD,4)}, 0 offen sc1
            s_waitcnt vmcnt(0)
            s_branch {N}_c0
            {N}_c1:""")
        if m == 316: split_cs(1, lambda t: t() if callable(t) else a(t))
    assert not Q and not DQ
    stamp(a, 3)
    PS = [P + i for i in range(12)] + [T + 12, T + 13]
    def ldS():
        for i in range(14): a.vmem(f"buffer_load_dword v{PS[i]}, v{gS}, {S(rS,4)}, 0 offen offset:{256*i} sc1", 'S')
    a.need(lg=[('cw', 1)]); a("s_barrier"); rdE(1); ldS()
    a(f"""s_cmp_lt_u32 s{scg}, 5
    s_cselect_b32 s{t0}, {F(20**-0.5*1.4426950408889634)}, 1.0
    v_mul_f32 v{c1}, s{t0}, v{rr}
    s_mul_i32 s{t3}, s{sblk}, 81920
    s_lshl_b32 s{t1}, s{scg}, 13
    s_add_u32 s{t3}, s{t3}, s{t1}
    s_lshl_b32 s{t1}, s{b0}, 11
    v_add_u32 v{T}, s{t3}, v{l16}
    v_xor_b32 v{T}, s{t1}, v{T}
    v_xor_b32 v{T+1}, 2048, v{T}
    v_mov_b32 v{c2}, v{c1}""")
    assert c1 % 2 == 0 and c2 == c1 + 1
    a.need(lg=[('we', 1)])
    for p in range(4): fold(1, p)
    a(f"s_mov_b32 s{t1}, 4096\ns_nop 7")
    def scale(p):
        d = acc[4 + p]
        for i in range(8): a(f"v_pk_mul_f32 {V(d+2*i,2)}, {V(d+2*i,2)}, {V(c1,2)}")
        for i in range(8): a(f"v_cvt_pk_bf16_f32 v{d+i}, v{d+2*i}, v{d+2*i+1}")
    def trw(src, slot):
        for r in range(2): a.ds(f"ds_write_b128 v{aTw}, {V(src+4*r,4)} offset:{slot*2048 + 32*r}", ('tw', slot))
    def trr(dst, slot):
        for i in range(4): a.ds(f"ds_read_b64_tr_b16 {V(dst+2*i,2)}, v{aTr} offset:{slot*2048 + i//2*1024 + i%2*256}", ('tr', slot))
    a(f"s_cmp_ge_u32 s{scg}, 10\ns_cbranch_scc1 {N}_v")
    sv = list(a.vm)
    for p in range(4):
        scale(p)
        for r in range(2): a.vmem(f"buffer_store_dwordx4 {V(acc[4+p]+4*r,4)}, v{T+p%2}, {S(rS,4)}, {f's{t1}' if p//2 else 0} offen offset:{1024*r}{WT}", 'st')
    a(f"s_branch {N}_z2\n{N}_v:"); a.vm = sv
    for p in range(4):
        scale(p); trw(acc[4 + p], p)
    a(f"""v_and_b32 v{T}, 19, v{ln}
    v_bfe_u32 v{T+1}, v{ln}, 2, 1
    v_bfe_u32 v{T+2}, v{ln}, 3, 1
    v_lshl_add_u32 v{T}, v{T+1}, 3, v{T}
    v_lshl_add_u32 v{T}, v{T+2}, 2, v{T}
    s_sub_u32 s{t1}, s{scg}, 10
    s_lshl_b32 s{t1}, s{t1}, 2
    s_add_u32 s{t1}, s{t1}, s{b0}
    s_lshl_b32 s{t1}, s{t1}, 5
    v_add_u32 v{T}, s{t1}, v{T}
    v_lshrrev_b32 v{T+1}, 5, v{ln}
    v_mul_u32_u24 v{T+1}, 320, v{T+1}
    s_mul_i32 s{t1}, s{sblk}, 1280
    s_add_u32 s{t1}, s{t1}, {WS_VT}
    v_add_u32 v{T+1}, s{t1}, v{T+1}""")
    a.need(lg=[('tw', 3)])
    for p in range(4): trr(acc[4 + p] + 8, p)
    for p in range(4):
        a(f"""v_xor_b32 v{T+2}, {32*p}, v{T}
        v_mul_u32_u24 v{T+3}, 52429, v{T+2}
        v_lshrrev_b32 v{T+3}, 20, v{T+3}
        v_mul_u32_u24 v{T+3}, {81920-320}, v{T+3}
        v_lshl_add_u32 v{T+2}, v{T+2}, 4, v{T+3}
        v_add_u32 v{T+4+p}, v{T+2}, v{T+1}""")
        a.need(lg=[('tr', p)])
        for r in range(2): a.vmem(f"buffer_store_dwordx4 {V(acc[4+p]+8+4*r,4)}, v{T+4+p}, {S(rS,4)}, 0 offen offset:{640*r}{WT}", 'st')
    a(f"{N}_z2:"); stamp(a, 4)
    a.need(vm=['S'])
    a(f"{N}_s0:\nv_max_u32 v{T}, v{PS[0]}, v{PS[1]}")
    for i in range(1, 7): a(f"v_max3_u32 v{T}, v{PS[2*i]}, v{PS[2*i+1]}, v{T}")
    a(f"v_cmp_eq_u32 vcc, -1, v{T}\ns_nop 1\ns_cbranch_vccz {N}_s1\ns_add_u32 s{spin}, s{spin}, 0x4000\ns_cbranch_scc1 {N}_s1")
    ldS(); a.drain(lg=False); a(f"s_branch {N}_s0\n{N}_s1:"); stamp(a, 5)
    for i in range(1, 14): a(f"v_add_f32 v{PS[0]}, v{PS[0]}, v{PS[i]}")
    a(f"""v_mul_f32 v{T}, {F(1/864)}, v{PS[0]}
    v_mov_b32 v{T+1}, v{T}
    s_lshl_b32 s{t3}, s{sblk}, 11
    s_add_u32 s{t3}, s{t3}, {WS_Z2}
    v_permlane32_swap_b32 v{T}, v{T+1}
    s_nop 1
    v_fma_f32 v{T+1}, -v{T}, v{T}, v{T+1}
    v_max_f32 v{T+1}, 0, v{T+1}
    v_add_f32 v{T+1}, {F(1e-5)}, v{T+1}
    v_rsq_f32 v{T+2}, v{T+1}
    s_nop 0
    v_mul_f32 v{T}, v{T}, v{T+2}
    v_mov_b32 v{T+3}, v{T+2}
    v_mov_b32 v{T+1}, v{T}""")
    for p in range(2):
        d = acc[p]
        for i in range(8): a(f"v_pk_fma_f32 {V(d+2*i,2)}, {V(d+2*i,2)}, {V(T+2,2)}, {V(T,2)} neg_lo:[0,0,1] neg_hi:[0,0,1]")
        for i in range(8): a(f"v_cvt_pk_bf16_f32 v{d+i}, v{d+2*i}, v{d+2*i+1}")
        trw(d, 4 + p)
    for p in range(2):
        a.need(lg=[('tw', 4 + p)]); trr(acc[p] + 8, 4 + p)
        for t in zaddr(p, 131072, t3): a(t)
        a(f"v_add_u32 v{T+8+p}, s{t2}, v{l16}")
    for p in range(2):
        a.need(lg=[('tr', 4 + p)])
        for r in range(2): a.vmem(f"buffer_store_dwordx4 {V(acc[p]+8+4*r,4)}, v{T+8+p}, {S(rS,4)}, 0 offen offset:{1024*r}{WT}", 'st')
    stamp(a, 6); a("s_waitcnt vmcnt(0)"); stamp_out(a, 1, 10); a("s_endpgm")
    a.vm = []; a.lg = []
    a(f"""{N}_side:
    s_lshl_b32 s{sblk}, s{srb}, 2
    s_add_u32 s{sblk}, s{sblk}, s{sw}
    s_lshl_b32 s{t0}, s{sblk}, 12
    s_add_u32 s{t0}, s{t0}, {WS_ST}
    s_lshl_b32 s{sblk}, s{sblk}, 2
    v_mov_b32 v{T+4}, -1
    v_mov_b32 v{T+5}, -1
    v_mov_b32 v{T+6}, -1
    v_mov_b32 v{T+7}, -1
    v_mov_b32 v{T+8}, 15
    v_mov_b32 v{T+9}, s{sblk}
    s_waitcnt lgkmcnt(0)""")
    srd(a, rS, pWS, f"s{t0}", 4096); srd(a, rD, pD, 0, 256)
    for i in range(4): a(f"buffer_store_dwordx4 {V(T+4,4)}, v{l16}, {S(rS,4)}, 0 offen offset:{1024*i} sc0 sc1")
    a(f"""s_waitcnt vmcnt(0)
    buffer_store_dword v{T+8}, v{T+9}, {S(rD,4)}, 0 offen sc0 sc1
    s_mul_i32 s{mX}, s{sw}, 10240
    v_add_u32 v{T}, s{mX}, v{l16}
    s_mul_i32 s{srb}, s{srb}, 3""")
    srd(a, rS, pWS, WS_WT, 8 * 47 * 5120)
    for kk in range(3):
        a(f"""s_add_u32 s{t0}, s{srb}, {kk}
        s_sub_u32 s{t1}, s{t0}, 20
        s_cmp_lt_u32 s{t0}, 20
        s_cselect_b32 s{t1}, s{t0}, s{t1}
        s_cselect_b32 s{t2}, s{pWo}, s{pWout}
        s_cselect_b32 s{t3}, s{pWo+1}, s{pWout+1}
        s_mul_i32 s{t1}, s{t1}, 40960
        s_add_u32 s{rX}, s{t2}, s{t1}
        s_addc_u32 s{rX+1}, s{t3}, 0
        s_cmp_lt_u32 s{t0}, 47
        s_cselect_b32 s{rX+2}, 40960, 0
        s_mov_b32 s{rX+3}, 0x20000""")
        for i in range(10):
            if i % 4 == 0: a(f"s_add_u32 m0, s{mX}, {kk*40960 + i*1024}\ns_mov_b32 s{oX}, {i*1024}")
            a(f"buffer_load_dwordx4 v{T}, {S(rX,4)}, s{oX} offen offset:{i%4*1024} lds")
    a(f"""v_lshrrev_b32 v{T+1}, 4, v{ln}
    v_bfe_u32 v{T+2}, v{ln}, 2, 2
    v_lshl_add_u32 v{T+1}, v{T+1}, 3, v{T+2}
    v_mul_u32_u24 v{T+1}, 1280, v{T+1}
    v_and_b32 v{T+2}, 3, v{ln}
    v_mul_u32_u24 v{T+2}, 40, v{T+2}
    s_mul_i32 s{t0}, s{sw}, 320
    v_add3_u32 v{T+1}, v{T+1}, v{T+2}, s{t0}
    s_waitcnt vmcnt(0)
    s_barrier""")
    for kk in range(3):
        for c in range(2):
            for nt in range(5):
                for h in range(2): a(f"ds_read_b64_tr_b16 {V(acc[0]+40*kk+20*c+4*nt+2*h,2)}, v{T+1} offset:{160*c + 8*nt + 5120*h}")
        a(f"v_add_u32 v{T+1}, 40960, v{T+1}")
        a(f"""s_add_u32 s{t0}, s{srb}, {kk}
        s_cmp_lt_u32 s{t0}, 47
        s_cselect_b32 s{rS+2}, s{rS+2}, 0
        s_mul_i32 s{t1}, s{sw}, 94
        s_add_u32 s{t0}, s{t0}, s{t1}
        s_mul_i32 s{t0}, s{t0}, 5120
        s_waitcnt lgkmcnt(0)""")
        for c in range(2):
            for nt in range(5):
                a(f"s_add_u32 s{t1}, s{t0}, {c*47*5120 + nt*1024}\nbuffer_store_dwordx4 {V(acc[0]+40*kk+20*c+4*nt,4)}, v{l16}, {S(rS,4)}, s{t1} offen{WT}")
    a("s_waitcnt vmcnt(0)")
    for i in range(1, 10): stamp(a, i)
    stamp_out(a, 1, 10)
    a(f"{N}_end:\ns_endpgm")
    return a
```

```python
from asm import *
import struct
LDS1 = 163840
XB = 98304
F = lambda x: hex(struct.unpack("<I", struct.pack("<f", x))[0])
PRE = int(os.environ.get("K1PRE", "2")); RATE = 2.5
X = os.environ.get('X1', '')
PFM = int(os.environ.get('PFM', '0'))
ROT = eval(os.environ.get('ROT', '(5,10)')); NT = os.environ.get('NT', '')
PFS = int(os.environ.get('PFS', '0'))
def k1():
    a = Asm(); N = "k1"
    head(a, N, 2); stamp0(a)
    pX, pQ, pI, pD, pWS, pWo, pWout, pSp = [a.sg(2) for _ in range(8)]
    for p, o in ((pX, 0), (pQ, 8), (pI, 32), (pD, 72), (pWS, 80), (pWo, 16), (pWout, 56), (pSp, 40)): a(f"s_load_dwordx2 {S(p,2)}, s[0:1], {o}")
    rX, rWA, rWB, rS, rD = [a.sg(4) for _ in range(5)]
    sw, srb, scg, b0, b1, t0, t1, t2, t3, oX, oW, mX, mW, sblk, scs, spin = [a.sg() for _ in range(16)]
    acc = [a.v(16) for _ in range(8)]
    aW = [[[a.v() for _ in range(4)] for jp in range(2)] for hh in range(2)]
    aX = [a.v() for _ in range(4)]; gX = [a.v() for _ in range(4)]; gW = [[a.v() for _ in range(4)] for ph in range(2)]
    sel = a.v(4); cs = [[a.v(4), a.v(4)] for ph in range(2)]; sx = a.v(4); sq = [a.v(4), a.v(4)]
    xe = a.v(2); we = [a.v(2) for _ in range(4)]
    ln, l16, c1, c2, ir, rr, s1, s2, gS, aC, aTw, aTr, gD = [a.v() for _ in range(13)]
    T = a.v(16, 4); P = a.v(14, 4)
    xf = [a.a(4) for _ in range(40)]; Wf = [a.a(4) for _ in range(8)]
    a(f"""v_lshrrev_b32 v{T}, 6, v0
    v_and_b32 v{ln}, 63, v0
    v_readfirstlane_b32 s{sw}, v{T}
    s_and_b32 s{t0}, s2, 1
    s_bfe_u32 s{t1}, s2, 0x30003
    s_lshl_b32 s{t0}, s{t0}, 3
    s_add_u32 s{srb}, s{t0}, s{t1}
    s_bfe_u32 s{t0}, s2, 0x20001
    s_lshr_b32 s{t1}, s2, 6
    s_lshl_b32 s{t0}, s{t0}, 2
    s_add_u32 s{scg}, s{t0}, s{t1}
    v_lshlrev_b32 v{l16}, 4, v{ln}
    s_cmp_eq_u32 s{scg}, 15
    s_cbranch_scc1 {N}_side
    s_and_b32 s{b0}, s{sw}, 1
    s_mov_b32 s{spin}, 0
    s_lshr_b32 s{b1}, s{sw}, 1
    s_lshl_b32 s{sblk}, s{srb}, 2
    s_add_u32 s{sblk}, s{sblk}, s{sw}
    s_mul_i32 s{t0}, s{sblk}, 40960
    s_lshl_b32 s{mX}, s{sw}, 14
    s_add_u32 s{mX}, s{mX}, {XB}
    s_lshl_b32 s{mW}, s{sw}, 12
    v_lshrrev_b32 v{T}, 3, v{ln}
    v_lshrrev_b32 v{T+1}, 4, v{ln}
    v_and_b32 v{T+2}, 7, v{ln}
    v_mul_u32_u24 v{T}, 1280, v{T}
    v_xor_b32 v{T+2}, v{T+2}, v{T+1}
    v_lshl_add_u32 v{gX[0]}, v{T+2}, 4, v{T}
    v_xor_b32 v{gX[1]}, 64, v{gX[0]}
    v_add_u32 v{gX[1]}, {10240-1024}, v{gX[1]}
    v_add_u32 v{gX[2]}, {20480-2048}, v{gX[0]}
    v_add_u32 v{gX[3]}, {20480-2048}, v{gX[1]}
    s_cmp_lt_u32 s{scg}, 14
    s_cselect_b32 s{t1}, {640*3456}, 0
    s_waitcnt lgkmcnt(0)""")
    stamp(a, 7)
    srd(a, rX, pX, f"s{t0}", 0 if 'x' in X else 40960); srd(a, rWA, pI, 0, 0 if 'w' in X else f"s{t1}"); srd(a, rWB, pQ, 0, 0 if 'b' in X else 640 * 3840)
    a(f"""v_bfe_u32 v{T+2}, v{ln}, 2, 2
    v_xor_b32 v{T+2}, v{T+2}, v{T+1}
    v_and_b32 v{T+3}, 3, v{ln}
    v_lshlrev_b32 v{T+3}, 4, v{T+3}
    v_lshl_add_u32 v{T+3}, v{T+2}, 6, v{T+3}
    s_lshl_b32 s{t0}, s{sw}, 4
    v_add_u32 v{T+1}, s{t0}, v{T+1}
    s_lshl_b32 s{t0}, s{scg}, 7
    s_add_u32 s{t1}, s{t0}, 1664
    s_sub_u32 s{t0}, s{t0}, 128
    s_cmp_eq_u32 s{scg}, 0
    s_cselect_b32 s{t2}, {OOB}, s{t1}
    v_mov_b32 v{T+4}, s{t0}
    v_mov_b32 v{T+5}, s{t1}
    v_cmp_gt_u32 vcc, 2, v{T+2}
    v_mul_u32_u24 v{T+6}, 3456, v{T+1}
    v_mov_b32 v{T+7}, s{t2}
    v_cndmask_b32 v{T+4}, v{T+4}, v{T+5}, vcc
    v_cmp_eq_u32 vcc, 0, v{T+2}
    v_mul_u32_u24 v{T+5}, 3840, v{T+1}
    s_lshl_b32 s{t0}, s{scg}, 8
    v_cndmask_b32 v{T+4}, v{T+4}, v{T+7}, vcc
    v_add3_u32 v{gW[0][0]}, v{T+4}, v{T+6}, v{T+3}
    v_add3_u32 v{gW[1][0]}, v{T+5}, s{t0}, v{T+3}""")
    for i in range(1, 4):
        a(f"v_add_u32 v{gW[0][i]}, {i*(4*3456-1024)}, v{gW[0][0]}\nv_add_u32 v{gW[1][i]}, {i*(4*3840-1024)}, v{gW[1][0]}")
    DQ = []
    for g in range(20):
        if g < 10: DQ += [('X', g, i) for i in range(4)]
        DQ += [('W', g, i) for i in range(4)]
    phi = a.sg()
    if ROT:
        ra, rc = ROT
        a(f"""s_bfe_u32 s{t0}, s2, 0x30003
        s_lshr_b32 s{t1}, s2, 6
        s_mul_i32 s{t0}, s{t0}, {ra}
        s_mul_i32 s{t1}, s{t1}, {rc}
        s_add_u32 s{t0}, s{t0}, s{t1}
        s_lshr_b32 s{t0}, s{t0}, 2
        s_mul_i32 s{t1}, s{t0}, 6554
        s_lshr_b32 s{t1}, s{t1}, 16
        s_mul_i32 s{t1}, s{t1}, 10
        s_sub_u32 s{phi}, s{t0}, s{t1}""")
    def rot(g, o, mul):
        if not ROT: return f"s_mov_b32 s{o}, {g*mul}"
        return f"s_cmp_ge_u32 s{phi}, {10-g}\ns_cselect_b32 s{o}, {g-10}, {g}\ns_add_u32 s{o}, s{o}, s{phi}\ns_mul_i32 s{o}, s{o}, {mul}"
    def dma():
        k, g, i = DQ.pop(0)
        if k == 'X':
            if i == 0: a(f"s_add_u32 m0, s{mX}, {g%4*4096}\n" + rot(g, oX, 128))
            a.vmem(f"buffer_load_dwordx4 v{gX[i]}, {S(rX,4)}, s{oX} offen offset:{1024*i}{NT} lds", ('X', g))
        else:
            ph = g // 10
            if i == 0: a(f"s_add_u32 m0, s{mW}, {g%6*16384}\n" + rot(g % 10, oW, 64 * (3456, 3840)[ph]))
            a.vmem(f"buffer_load_dwordx4 v{gW[ph][i]}, {S((rWA,rWB)[ph],4)}, s{oW} offen offset:{1024*i}{NT} lds", ('W', g))
    def dma_ok(gap):
        if not DQ: return False
        k, g, i = DQ[0]
        return gap >= (16 * (g - 4) + 9 if k == 'X' else 16 * (g - 4) - 6)
    stamp(a, 8)
    for _ in range(8): dma()
    if PFM:
        a(f"""s_lshr_b32 s{t0}, s2, 6
        s_lshl_b32 s{t0}, s{t0}, 8
        s_add_u32 s{t0}, s{t0}, 256
        v_and_b32 v{T+10}, 31, v{ln}
        v_lshrrev_b32 v{T+11}, 5, v{ln}
        v_mul_u32_u24 v{T+10}, 1280, v{T+10}
        v_lshl_add_u32 v{T+10}, v{T+11}, 7, v{T+10}
        s_bfe_u32 s{t1}, s2, 0x30003
        s_lshl_b32 s{t1}, s{t1}, 2
        s_add_u32 s{t1}, s{t1}, s{sw}
        v_and_b32 v{T+11}, 15, v{ln}
        v_lshrrev_b32 v{T+12}, 4, v{ln}
        v_mul_u32_u24 v{T+11}, {32*3456}, v{T+11}
        v_lshlrev_b32 v{T+13}, 6, v{T+12}
        v_cmp_gt_u32 vcc, 2, v{T+12}
        v_mov_b32 v{T+14}, -128
        v_mov_b32 v{T+15}, 1664
        v_cndmask_b32 v{T+14}, v{T+14}, v{T+15}, vcc
        s_mul_i32 s{t2}, s{t1}, 3456
        s_lshl_b32 s{t3}, s{scg}, 7
        s_add_u32 s{t2}, s{t2}, s{t3}
        s_add_u32 s{t2}, s{t2}, {128*3456}
        v_add3_u32 v{T+11}, v{T+11}, v{T+13}, v{T+14}
        v_add_u32 v{T+11}, s{t2}, v{T+11}""")
        a.vmem(f"buffer_load_dword v255, v{T+10}, {S(rX,4)}, s{t0} offen", 'pf')
        if PFM & 2: a.vmem(f"buffer_load_dword v255, v{T+10}, {S(rX,4)}, s{t0} offen offset:64", 'pf')
        a.vmem(f"buffer_load_dword v255, v{T+11}, {S(rWA,4)}, 0 offen", 'pf')
        a(f"""s_mul_i32 s{t2}, s{t1}, 3840
        s_lshl_b32 s{t3}, s{scg}, 8
        s_add_u32 s{t2}, s{t2}, s{t3}
        v_lshrrev_b32 v{T+12}, 1, v{ln}
        v_and_b32 v{T+13}, 1, v{ln}
        v_mul_u32_u24 v{T+12}, {32*3840}, v{T+12}
        v_lshl_add_u32 v{T+12}, v{T+13}, 7, v{T+12}
        v_add_u32 v{T+15}, s{t2}, v{T+12}""")
    def pfB():
        a.vmem(f"buffer_load_dword v255, v{T+15}, {S(rWB,4)}, 0 offen", 'pf')
        if PFM & 2: a.vmem(f"buffer_load_dword v255, v{T+15}, {S(rWB,4)}, 0 offen offset:64", 'pf')
    if PFM and not PFM & 4: pfB()
    srd(a, rS, pWS, 0, WS_PROF); srd(a, rD, pD, 0, 256)
    a(f"""s_lshl_b32 s{t0}, s{sblk}, 12
    s_add_u32 s{t0}, s{t0}, {WS_ST}
    s_lshl_b32 s{scs}, s{scg}, 8
    v_lshl_add_u32 v{gS}, v{ln}, 2, s{t0}
    s_lshl_b32 s{t0}, s{sblk}, 2
    v_mov_b32 v{gD}, s{t0}""")
    for _ in range(8): dma()
    a(f"""v_and_b32 v{T}, 31, v{ln}
    v_lshrrev_b32 v{T+1}, 5, v{ln}
    v_bfe_u32 v{T+2}, v{ln}, 1, 3
    v_xor_b32 v{T+2}, v{T+2}, v{T+1}
    v_lshlrev_b32 v{T+2}, 4, v{T+2}
    v_lshl_add_u32 v{T+2}, v{T}, 7, v{T+2}
    s_lshl_b32 s{t0}, s{b1}, 5
    v_xor_b32 v{T+2}, s{t0}, v{T+2}""")
    for j in range(4): a(f"v_xor_b32 v{T+3}, {32*j}, v{T+2}\nv_add_u32 v{aX[j]}, s{mX}, v{T+3}")
    a(f"""v_lshlrev_b32 v{T+3}, 6, v{T}
    v_lshl_add_u32 v{T+3}, v{T+1}, 4, v{T+3}
    s_add_u32 s{t0}, s{mX}, 4096
    v_add_u32 v{aTw}, s{t0}, v{T+3}
    v_lshlrev_b32 v{T+3}, 3, v{T}
    v_add_u32 v{aC}, s{mX}, v{T+3}
    v_lshl_add_u32 v{T+9}, v{T+1}, 15, v{T+3}
    v_bfe_u32 v{T+2}, v{ln}, 2, 2
    v_lshl_add_u32 v{T+3}, v{T+1}, 3, v{T+2}
    v_and_b32 v{T+4}, 1, v{ln}
    v_bfe_u32 v{T+5}, v{ln}, 1, 1
    v_bfe_u32 v{T+6}, v{ln}, 4, 1
    v_lshlrev_b32 v{T+4}, 4, v{T+4}
    v_lshl_add_u32 v{T+4}, v{T+5}, 3, v{T+4}
    v_lshl_add_u32 v{T+4}, v{T+6}, 5, v{T+4}
    v_lshl_add_u32 v{T+5}, v{T+3}, 6, v{T+4}
    v_add_u32 v{aTr}, s{t0}, v{T+5}
    v_lshl_add_u32 v{T+4}, v{T+3}, 8, v{T+4}
    v_xor_b32 v{T+2}, s{b0}, v{T+2}
    v_lshl_add_u32 v{T+4}, v{T+2}, 6, v{T+4}
    s_lshl_b32 s{t0}, s{b1}, 12
    v_xor_b32 v{T+4}, s{t0}, v{T+4}""")
    for jp in range(2):
        for p in range(4):
            a(f"v_xor_b32 v{aW[0][jp][p]}, {jp*4096 + p*64}, v{T+4}\nv_add_u32 v{aW[1][jp][p]}, 49152, v{aW[0][jp][p]}")
    for _ in range(8 * (PRE - 2)): dma()
    aCr = [P + 12, P + 13]
    a(f"""s_lshl_b32 s{t0}, s{b0}, 14
    s_add_u32 s{t1}, s{t0}, {XB}
    s_xor_b32 s{t0}, s{t0}, 16384
    s_add_u32 s{t0}, s{t0}, {XB}
    v_add_u32 v{aCr[0]}, s{t1}, v{T+9}
    v_add_u32 v{aCr[1]}, s{t0}, v{T+9}
    v_bfe_u32 v{T}, v{ln}, 2, 1
    v_and_b32 v{T+1}, 3, v{ln}
    v_xor_b32 v{T}, v{T}, v{T+6}
    v_or_b32 v{T}, v{T}, v{T+1}
    v_cmp_eq_u32 vcc, 0, v{T}
    v_mov_b32 v{T+1}, 0x3f803f80
    v_mov_b32 v{s1}, 0
    v_mov_b32 v{s2}, 0""")
    for i in range(4): a(f"v_cndmask_b32 v{sel+i}, 0, v{T+1}, vcc")
    def rdW(m):
        if m >= 320: return
        q, p = m // 4, m % 4; G, j = q // 4, q % 4; sl = G % 6
        for h in range(2):
            a.ds(f"ds_read_b64_tr_b16 {A(Wf[m%8]+2*h,2)}, v{aW[sl//3][j%2][p]} offset:{sl%3*16384 + j//2*8192 + 1024*h}", ('W', m))
    def rdX(q):
        if q < 40: a.ds(f"ds_read_b128 {A(xf[q],4)}, v{aX[q%4]} offset:{q//4%4*4096}", ('X', q))
    stamp(a, 9); a.need(vm=[('X', 0), ('W', 0)]); a("s_barrier"); stamp(a, 1); a("s_waitcnt lgkmcnt(0)" if PROF else "")
    rdX(0); rdW(0); rdW(1); rdX(1)
    for m in range(2, 6): rdW(m)
    a.need(lg=[('W', 1)])
    Q = []
    op = lambda t, c=1: Q.append((c, t))
    def split_cs(ph, emit):
        for h in range(2):
            c = cs[ph][h]
            for t in (f"v_cvt_pk_bf16_f32 v{c+1}, v{c}, v{c}", f"v_and_b32 v{c+2}, 0xffff0000, v{c+1}", f"v_sub_f32 v{c+2}, v{c}, v{c+2}",
                      f"v_cvt_pk_bf16_f32 v{c}, v{c}, v{c+2}", f"v_and_b32 v{c+1}, 0xffff, v{c+1}"): emit(t)
            emit(lambda c=c, h=h: a.ds(f"ds_write_b64 v{aC}, {V(c,2)} offset:{ph*1024 + h*256}", ('cw', ph)))
    def rdE(ph):
        for p in range(4): a.ds(f"ds_read_b64 {V(we[p],2)}, v{aCr[p%2]} offset:{ph*1024 + p//2*256}", ('we', ph))
    def fold(ph, p): a(f"v_mfma_f32_32x32x8_bf16 {V(acc[4*ph+p],16)}, {V(we[p],2)}, {V(xe,2)}, {V(acc[4*ph+p],16)}")
    split_cs(0, op)
    for i in range(4): op(f"v_add_f32 v{sq[0]+i}, v{sq[0]+i}, v{sq[1]+i}")
    op(f"v_and_b32 v{T}, 3, v{ln}")
    for i in range(1, 4):
        op(f"v_cmp_eq_u32 vcc, {i}, v{T}"); op(f"v_mul_f32 v{T+1}, {F(-1/640)}, v{sx}"); op("s_nop 0"); op(f"v_cndmask_b32 v{sq[0]}, v{sq[0]}, v{sq[0]+i}, vcc")
    for t in f"""v_mov_b32 v{T+2}, v{sq[0]}
    v_cvt_pk_bf16_f32 v{xe}, v{T+1}, v{T+1}
    v_and_b32 v{T+3}, 0xffff0000, v{xe}
    v_permlane32_swap_b32 v{T+2}, v{sq[0]}
    v_sub_f32 v{T+3}, v{T+1}, v{T+3}
    v_cvt_pk_bf16_f32 v{xe+1}, v{T+3}, 0
    v_add_f32 v{T+2}, v{T+2}, v{sq[0]}
    v_mul_f32 v{T+1}, v{T+1}, v{T+1}
    v_fma_f32 v{T+2}, v{T+2}, s{t0}, -v{T+1}
    v_max_f32 v{T+2}, 0, v{T+2}
    v_add_f32 v{T+2}, {F(1e-5)}, v{T+2}
    v_rsq_f32 v{rr}, v{T+2}
    s_nop 0
    v_mul_f32 v{ir}, v{T+2}, v{rr}
    v_mul_f32 v{c1}, {F(-2*0.7978845608028654*1.4426950408889634)}, v{rr}
    v_mul_f32 v{c2}, v{rr}, v{rr}
    v_mul_f32 v{c2}, v{c1}, v{c2}
    v_mul_f32 v{c2}, {F(0.044715)}, v{c2}""".split("\n"): op(t)
    nprep = len(Q)
    def gelu(r0, stats):
        R = range(4)
        for i in R: op(f"v_mul_f32 v{T+i}, v{r0+i}, v{r0+i}")
        for i in R: op(f"v_fma_f32 v{T+i}, v{T+i}, v{c2}, v{c1}")
        for i in R: op(f"v_mul_f32 v{T+i}, v{T+i}, v{r0+i}")
        for i in R: op(f"v_exp_f32 v{T+i}, v{T+i}", 2)
        for i in R: op(f"v_fma_f32 v{T+i}, v{T+i}, v{ir}, v{ir}")
        for i in R: op(f"v_rcp_f32 v{T+i}, v{T+i}", 2)
        for i in R: op(f"v_mul_f32 v{r0+i}, v{r0+i}, v{T+i}")
        if stats:
            for i in R: op(f"v_add_f32 v{s1}, v{s1}, v{r0+i}"); op(f"v_fma_f32 v{s2}, v{r0+i}, v{r0+i}, v{s2}")
    for p in range(2):
        for b in range(4): gelu(acc[p] + 4 * b, True)
    op("s_nop 1"); op(f"v_permlane32_swap_b32 v{s1}, v{s2}"); op("s_nop 1"); op(f"v_add_f32 v{s1}, v{s1}, v{s2}"); op(f"v_min_u32 v{s1}, -2, v{s1}")
    pubop = lambda: a.vmem(f"buffer_store_dword v{s1}, v{gS}, {S(rS,4)}, s{scs} offen sc0 sc1", 'pub')
    op(pubop)
    def zaddr(p, mul, base):
        return f"""s_xor_b32 s{t1}, s{b0}, {p&1}
        s_lshl_b32 s{t2}, s{scg}, 1
        s_add_u32 s{t1}, s{t1}, s{t2}
        s_sub_u32 s{t1}, s{t1}, {1 if p < 2 else 0}
        s_mul_i32 s{t2}, s{t1}, {mul}
        s_add_u32 s{t2}, s{t2}, s{base}
        s_cmp_lt_u32 s{t1}, 27
        s_cselect_b32 s{t2}, s{t2}, {OOB}""".split("\n")
    op(f"s_mul_i32 s{t3}, s{sblk}, 55296"); op(f"s_add_u32 s{t3}, s{t3}, {WS_Z1}")
    for p in range(2, 4):
        op("\n".join(zaddr(p, 2048, t3)), 7)
        op(f"v_add_u32 v{T+4+p}, s{t2}, v{l16}")
        for b in range(4):
            gelu(acc[p] + 4 * b, False)
            for i in range(2): op(f"v_cvt_pk_bf16_f32 v{acc[p]+2*b+i}, v{acc[p]+4*b+2*i}, v{acc[p]+4*b+2*i+1}")
            if b % 2: op(lambda p=p, b=b: a.vmem(f"buffer_store_dwordx4 {V(acc[p]+2*b-2,4)}, v{T+4+p}, {S(rS,4)}, 0 offen offset:{b//2*1024}{WT}", 'st'))
    total = sum(c for c, _ in Q[nprep:])
    def pop(budget):
        while Q and budget > 0:
            c, t = Q.pop(0); budget -= c
            t() if callable(t) else a(t)
        return budget
    G0, G1, GE = 162, 177, 312
    credit = 0.0; dcredit = 0.0; npopped = lambda: len(Q)
    nq0 = len(Q)
    for m in range(320):
        ph, q, p = m // 160, m // 4, m % 4; j = q % 4; d = acc[4 * ph + p]
        a(f"v_mfma_f32_32x32x16_bf16 {V(d,16)}, {A(Wf[m%8],4)}, {A(xf[q%40],4)}, {V(d,16) if q % 40 else 0}")
        vm, lg = [], []
        if m % 2 == 1: lg += [('W', m + 1), ('W', m + 2)]
        if p == 3: lg += [('X', q + 1)]
        if (m + 8) % 16 == 0: vm += [('X', (m + 8) // 16)]
        bar = (m + 6) % 16 == 0 and m + 6 < 320
        if bar: vm += [('W', (m + 6) // 16)]
        if m == 170: lg += [('cw', 0)]; assert len(Q) <= nq0 - 12
        if m == 173: lg += [('we', 0)]
        a.need(vm=vm, lg=lg)
        if bar: a("s_barrier")
        if m == 170: rdE(0)
        if p == 0 and ph == 0: rdX(q + 2)
        rdW(m + 6)
        if m == 40 and PFM & 4: pfB()
        if m == 262 and PFS:
            assert not DQ
            a.vmem(f"buffer_load_dword v255, v{gX[0]}, {S(rX,4)}, 0 offen", 'pf')
            a.vmem(f"global_load_dword v255, v254, s[96:97]", 'pf')
        if m == 140 and PFS:
            a(f"""s_and_b32 s{t1}, s2, 7
            s_lshl_b32 s{t1}, s{t1}, 5
            s_lshr_b32 s{t2}, s2, 3
            s_add_u32 s{t1}, s{t1}, s{t2}
            s_lshl_b32 s{t1}, s{t1}, 15
            s_add_u32 s{rX}, s{pSp}, s{t1}
            s_addc_u32 s{rX+1}, s{pSp+1}, 0
            s_mov_b32 s{rX+2}, 32768
            v_lshlrev_b32 v{gX[0]}, 7, v0
            v_lshlrev_b32 v254, 6, v0
            v_min_u32 v254, k2_end-k2_kernel, v254
            v_add_u32 v254, k2_kernel-k1_pc, v254""")
            assert not any(k == 'X' for k, g, i in DQ)
        dcredit += RATE / 4
        if dcredit >= 1 and dma_ok(m): dma(); dcredit -= 1
        dcredit = min(dcredit, 1.5)
        c0 = (lambda r: V(r, 4) if q % 40 >= 2 else 0)
        if m >= G1 and j % 2 == 0 and p % 2 == 0: credit = pop(4) - 4 + credit
        if j % 2 == 0 and p % 2 == 0 and 'c' not in X: a(f"v_mfma_f32_16x16x32_bf16 {V(cs[ph][p//2],4)}, {V(sel,4)}, {A(Wf[m%8],4)}, {c0(cs[ph][p//2])}")
        if ph == 0 and p == 1 and 's' not in X: a(f"v_mfma_f32_16x16x32_bf16 {V(sx,4)}, {V(sel,4)}, {A(xf[q],4)}, {V(sx,4) if q else 0}")
        if ph == 0 and p == 3 and 'q' not in X:
            for h in range(2): a(f"v_mfma_f32_4x4x4_16b_bf16 {V(sq[h],4)}, {A(xf[q]+2*h,2)}, {A(xf[q]+2*h,2)}, {V(sq[h],4) if q else 0}")
        if m == 159: stamp(a, 2); a(f"s_mov_b32 s{t0}, {F(1/640)}")
        if 173 <= m < 177: assert len(Q) == nq0 - nprep; fold(0, m - 173)
        if G0 <= m < 173:
            for _ in range(6):
                if len(Q) > nq0 - nprep: pop(1)
        if m >= G1: credit = pop(credit + total / (GE - G1))
        if m == 150: a.vmem(f"buffer_load_dword v{T+10}, v{gD}, {S(rD,4)}, 0 offen", 'cnt')
        if m == 214:
            assert any(t is pubop for c, t in Q)
            a.need(vm=['cnt'])
            a(f"""{N}_c0:
            v_readfirstlane_b32 s{oX}, v{T+10}
            s_cmp_eq_u32 s{oX}, 15
            s_cbranch_scc1 {N}_c1
            s_add_u32 s{spin}, s{spin}, 0x4000
            s_cbranch_scc1 {N}_c1
            buffer_load_dword v{T+10}, v{gD}, {S(rD,4)}, 0 offen sc1
            s_waitcnt vmcnt(0)
            s_branch {N}_c0
            {N}_c1:""")
        if m == 316: split_cs(1, lambda t: t() if callable(t) else a(t))
    assert not Q and not DQ
    stamp(a, 3)
    PS = [P + i for i in range(12)] + [T + 12, T + 13]
    def ldS():
        for i in range(14): a.vmem(f"buffer_load_dword v{PS[i]}, v{gS}, {S(rS,4)}, 0 offen offset:{256*i} sc1", 'S')
    a.need(lg=[('cw', 1)]); a("s_barrier"); rdE(1); ldS()
    a(f"""s_cmp_lt_u32 s{scg}, 5
    s_cselect_b32 s{t0}, {F(20**-0.5*1.4426950408889634)}, 1.0
    v_mul_f32 v{c1}, s{t0}, v{rr}
    s_mul_i32 s{t3}, s{sblk}, 81920
    s_lshl_b32 s{t1}, s{scg}, 13
    s_add_u32 s{t3}, s{t3}, s{t1}
    s_lshl_b32 s{t1}, s{b0}, 11
    v_add_u32 v{T}, s{t3}, v{l16}
    v_xor_b32 v{T}, s{t1}, v{T}
    v_xor_b32 v{T+1}, 2048, v{T}
    v_mov_b32 v{c2}, v{c1}""")
    assert c1 % 2 == 0 and c2 == c1 + 1
    a.need(lg=[('we', 1)])
    for p in range(4): fold(1, p)
    a(f"s_mov_b32 s{t1}, 4096\ns_nop 7")
    def scale(p):
        d = acc[4 + p]
        for i in range(8): a(f"v_pk_mul_f32 {V(d+2*i,2)}, {V(d+2*i,2)}, {V(c1,2)}")
        for i in range(8): a(f"v_cvt_pk_bf16_f32 v{d+i}, v{d+2*i}, v{d+2*i+1}")
    def trw(src, slot):
        for r in range(2): a.ds(f"ds_write_b128 v{aTw}, {V(src+4*r,4)} offset:{slot*2048 + 32*r}", ('tw', slot))
    def trr(dst, slot):
        for i in range(4): a.ds(f"ds_read_b64_tr_b16 {V(dst+2*i,2)}, v{aTr} offset:{slot*2048 + i//2*1024 + i%2*256}", ('tr', slot))
    a(f"s_cmp_ge_u32 s{scg}, 10\ns_cbranch_scc1 {N}_v")
    sv = list(a.vm)
    for p in range(4):
        scale(p)
        for r in range(2): a.vmem(f"buffer_store_dwordx4 {V(acc[4+p]+4*r,4)}, v{T+p%2}, {S(rS,4)}, {f's{t1}' if p//2 else 0} offen offset:{1024*r}{WT}", 'st')
    a(f"s_branch {N}_z2\n{N}_v:"); a.vm = sv
    for p in range(4):
        scale(p); trw(acc[4 + p], p)
    a(f"""v_and_b32 v{T}, 19, v{ln}
    v_bfe_u32 v{T+1}, v{ln}, 2, 1
    v_bfe_u32 v{T+2}, v{ln}, 3, 1
    v_lshl_add_u32 v{T}, v{T+1}, 3, v{T}
    v_lshl_add_u32 v{T}, v{T+2}, 2, v{T}
    s_sub_u32 s{t1}, s{scg}, 10
    s_lshl_b32 s{t1}, s{t1}, 2
    s_add_u32 s{t1}, s{t1}, s{b0}
    s_lshl_b32 s{t1}, s{t1}, 5
    v_add_u32 v{T}, s{t1}, v{T}
    v_lshrrev_b32 v{T+1}, 5, v{ln}
    v_mul_u32_u24 v{T+1}, 320, v{T+1}
    s_mul_i32 s{t1}, s{sblk}, 1280
    s_add_u32 s{t1}, s{t1}, {WS_VT}
    v_add_u32 v{T+1}, s{t1}, v{T+1}""")
    a.need(lg=[('tw', 3)])
    for p in range(4): trr(acc[4 + p] + 8, p)
    for p in range(4):
        a(f"""v_xor_b32 v{T+2}, {32*p}, v{T}
        v_mul_u32_u24 v{T+3}, 52429, v{T+2}
        v_lshrrev_b32 v{T+3}, 20, v{T+3}
        v_mul_u32_u24 v{T+3}, {81920-320}, v{T+3}
        v_lshl_add_u32 v{T+2}, v{T+2}, 4, v{T+3}
        v_add_u32 v{T+4+p}, v{T+2}, v{T+1}""")
        a.need(lg=[('tr', p)])
        for r in range(2): a.vmem(f"buffer_store_dwordx4 {V(acc[4+p]+8+4*r,4)}, v{T+4+p}, {S(rS,4)}, 0 offen offset:{640*r}{WT}", 'st')
    a(f"{N}_z2:"); stamp(a, 4)
    a.need(vm=['S'])
    a(f"{N}_s0:\nv_max_u32 v{T}, v{PS[0]}, v{PS[1]}")
    for i in range(1, 7): a(f"v_max3_u32 v{T}, v{PS[2*i]}, v{PS[2*i+1]}, v{T}")
    a(f"v_cmp_eq_u32 vcc, -1, v{T}\ns_nop 1\ns_cbranch_vccz {N}_s1\ns_add_u32 s{spin}, s{spin}, 0x4000\ns_cbranch_scc1 {N}_s1")
    ldS(); a.drain(lg=False); a(f"s_branch {N}_s0\n{N}_s1:"); stamp(a, 5)
    for i in range(1, 14): a(f"v_add_f32 v{PS[0]}, v{PS[0]}, v{PS[i]}")
    a(f"""v_mul_f32 v{T}, {F(1/864)}, v{PS[0]}
    v_mov_b32 v{T+1}, v{T}
    s_lshl_b32 s{t3}, s{sblk}, 11
    s_add_u32 s{t3}, s{t3}, {WS_Z2}
    v_permlane32_swap_b32 v{T}, v{T+1}
    s_nop 1
    v_fma_f32 v{T+1}, -v{T}, v{T}, v{T+1}
    v_max_f32 v{T+1}, 0, v{T+1}
    v_add_f32 v{T+1}, {F(1e-5)}, v{T+1}
    v_rsq_f32 v{T+2}, v{T+1}
    s_nop 0
    v_mul_f32 v{T}, v{T}, v{T+2}
    v_mov_b32 v{T+3}, v{T+2}
    v_mov_b32 v{T+1}, v{T}""")
    for p in range(2):
        d = acc[p]
        for i in range(8): a(f"v_pk_fma_f32 {V(d+2*i,2)}, {V(d+2*i,2)}, {V(T+2,2)}, {V(T,2)} neg_lo:[0,0,1] neg_hi:[0,0,1]")
        for i in range(8): a(f"v_cvt_pk_bf16_f32 v{d+i}, v{d+2*i}, v{d+2*i+1}")
        trw(d, 4 + p)
    for p in range(2):
        a.need(lg=[('tw', 4 + p)]); trr(acc[p] + 8, 4 + p)
        for t in zaddr(p, 131072, t3): a(t)
        a(f"v_add_u32 v{T+8+p}, s{t2}, v{l16}")
    for p in range(2):
        a.need(lg=[('tr', 4 + p)])
        for r in range(2): a.vmem(f"buffer_store_dwordx4 {V(acc[p]+8+4*r,4)}, v{T+8+p}, {S(rS,4)}, 0 offen offset:{1024*r}{WT}", 'st')
    stamp(a, 6); a("s_waitcnt vmcnt(0)"); stamp_out(a, 1, 10); a("s_endpgm")
    a.vm = []; a.lg = []
    a(f"""{N}_side:
    s_lshl_b32 s{sblk}, s{srb}, 2
    s_add_u32 s{sblk}, s{sblk}, s{sw}
    s_lshl_b32 s{t0}, s{sblk}, 12
    s_add_u32 s{t0}, s{t0}, {WS_ST}
    s_lshl_b32 s{sblk}, s{sblk}, 2
    v_mov_b32 v{T+4}, -1
    v_mov_b32 v{T+5}, -1
    v_mov_b32 v{T+6}, -1
    v_mov_b32 v{T+7}, -1
    v_mov_b32 v{T+8}, 15
    v_mov_b32 v{T+9}, s{sblk}
    s_waitcnt lgkmcnt(0)""")
    srd(a, rS, pWS, f"s{t0}", 4096); srd(a, rD, pD, 0, 256)
    for i in range(4): a(f"buffer_store_dwordx4 {V(T+4,4)}, v{l16}, {S(rS,4)}, 0 offen offset:{1024*i} sc0 sc1")
    a(f"""s_waitcnt vmcnt(0)
    buffer_store_dword v{T+8}, v{T+9}, {S(rD,4)}, 0 offen sc0 sc1
    s_mul_i32 s{mX}, s{sw}, 10240
    v_add_u32 v{T}, s{mX}, v{l16}
    s_mul_i32 s{srb}, s{srb}, 3""")
    srd(a, rS, pWS, WS_WT, 8 * 47 * 5120)
    for kk in range(3):
        a(f"""s_add_u32 s{t0}, s{srb}, {kk}
        s_sub_u32 s{t1}, s{t0}, 20
        s_cmp_lt_u32 s{t0}, 20
        s_cselect_b32 s{t1}, s{t0}, s{t1}
        s_cselect_b32 s{t2}, s{pWo}, s{pWout}
        s_cselect_b32 s{t3}, s{pWo+1}, s{pWout+1}
        s_mul_i32 s{t1}, s{t1}, 40960
        s_add_u32 s{rX}, s{t2}, s{t1}
        s_addc_u32 s{rX+1}, s{t3}, 0
        s_cmp_lt_u32 s{t0}, 47
        s_cselect_b32 s{rX+2}, 40960, 0
        s_mov_b32 s{rX+3}, 0x20000""")
        for i in range(10):
            if i % 4 == 0: a(f"s_add_u32 m0, s{mX}, {kk*40960 + i*1024}\ns_mov_b32 s{oX}, {i*1024}")
            a(f"buffer_load_dwordx4 v{T}, {S(rX,4)}, s{oX} offen offset:{i%4*1024} lds")
    a(f"""v_lshrrev_b32 v{T+1}, 4, v{ln}
    v_bfe_u32 v{T+2}, v{ln}, 2, 2
    v_lshl_add_u32 v{T+1}, v{T+1}, 3, v{T+2}
    v_mul_u32_u24 v{T+1}, 1280, v{T+1}
    v_and_b32 v{T+2}, 3, v{ln}
    v_mul_u32_u24 v{T+2}, 40, v{T+2}
    s_mul_i32 s{t0}, s{sw}, 320
    v_add3_u32 v{T+1}, v{T+1}, v{T+2}, s{t0}
    s_waitcnt vmcnt(0)
    s_barrier""")
    for kk in range(3):
        for c in range(2):
            for nt in range(5):
                for h in range(2): a(f"ds_read_b64_tr_b16 {V(acc[0]+40*kk+20*c+4*nt+2*h,2)}, v{T+1} offset:{160*c + 8*nt + 5120*h}")
        a(f"v_add_u32 v{T+1}, 40960, v{T+1}")
        a(f"""s_add_u32 s{t0}, s{srb}, {kk}
        s_cmp_lt_u32 s{t0}, 47
        s_cselect_b32 s{rS+2}, s{rS+2}, 0
        s_mul_i32 s{t1}, s{sw}, 94
        s_add_u32 s{t0}, s{t0}, s{t1}
        s_mul_i32 s{t0}, s{t0}, 5120
        s_waitcnt lgkmcnt(0)""")
        for c in range(2):
            for nt in range(5):
                a(f"s_add_u32 s{t1}, s{t0}, {c*47*5120 + nt*1024}\nbuffer_store_dwordx4 {V(acc[0]+40*kk+20*c+4*nt,4)}, v{l16}, {S(rS,4)}, s{t1} offen{WT}")
    a("s_waitcnt vmcnt(0)")
    for i in range(1, 10): stamp(a, i)
    stamp_out(a, 1, 10)
    a(f"{N}_end:\ns_endpgm")
    return a
```

```python
from asm import *
KVB, ONES, FLAG = 65536, 114688, 114688 + 5120
LDS2 = FLAG + 64
X = os.environ.get('X2', ''); PFW = int(os.environ.get('PFW', '0')); ZL = int(os.environ.get('ZL', '12'))
def k2():
    a = Asm(); N = "k2"
    head(a, N); stamp0(a)
    pW, pB, pWS, oE = [a.sg(2) for _ in range(4)]; rP = a.sg(4); gP = a.v(2)
    a(f"""s_load_dwordx2 {S(pW,2)}, s[0:1], 40
    s_load_dwordx2 {S(pB,2)}, s[0:1], 48
    s_load_dwordx2 {S(pWS,2)}, s[0:1], 80""")
    rW, rKV, rZ, rE, rO, rB = [a.sg(4) for _ in range(6)]
    sw, shd, sqg, sfb, sodd, sm5, t0, t1, t2, oW, oKV, oZ, incKV, mW, mKV, cnt, retry, szW, szZ, szE = [a.sg() for _ in range(20)]
    SB = [a.v(16), a.v(16)]; O = [a.v(16), a.v(16)]; G = [a.v(16), a.v(16)]
    Qm = [a.v(4), a.v(4)]; Qr = [a.v(2), a.v(2)]
    Km = [a.v(4), a.v(4)]; Kr = [a.v(2), a.v(2)]
    V1 = [a.v(4), a.v(4)]; V2 = [a.v(4), a.v(4)]; W0 = [a.v(4), a.v(4)]; W1 = [a.v(4), a.v(4)]
    Z1 = [a.v(8), a.v(8)]; bs = [a.v(), a.v()]
    aW = [a.v() for _ in range(8)]; aKm = a.v(); aKr = [a.v() for _ in range(4)]; aV = [a.v() for _ in range(4)]
    gW = [a.v() for _ in range(4)]; gKV = [a.v() for _ in range(3)]; gZ = a.v(); gQm, gQr, gE, gOm, gOr = [a.v() for _ in range(5)]
    idx, ln, l31, hf = [a.v() for _ in range(4)]; T = a.v(8, 4)
    Z = [a.a(4) for _ in range(16)]
    a(f"""v_lshrrev_b32 v{T}, 6, v0
    v_and_b32 v{ln}, 63, v0
    v_readfirstlane_b32 s{sw}, v{T}
    s_and_b32 s{t0}, s2, 7
    s_lshr_b32 s{t1}, s2, 6
    s_lshl_b32 s{t0}, s{t0}, 2
    s_add_u32 s{shd}, s{t0}, s{t1}
    s_bfe_u32 s{sqg}, s2, 0x30003
    s_lshl_b32 s{sfb}, s{sqg}, 2
    s_add_u32 s{sfb}, s{sfb}, s{sw}
    s_and_b32 s{sodd}, s{shd}, 1
    s_lshr_b32 s{sm5}, s{shd}, 1
    s_mul_i32 s{sm5}, s{sm5}, 2560
    s_mov_b32 s{retry}, 0
    v_and_b32 v{l31}, 31, v0
    v_bfe_u32 v{hf}, v0, 5, 1
    v_mov_b32 v{idx}, 0xdddddddd
    s_cmp_lt_u32 s{sqg}, 7
    s_cselect_b32 s{szW}, {64*4096}, 0
    s_cmp_lt_u32 s{sfb}, 27
    s_cselect_b32 s{szZ}, 0x20000, 0
    s_cselect_b32 s{szE}, {WS_WT}, 0
    s_lshl_b32 s{mW}, s{sw}, 12
    s_mul_i32 s{mKV}, s{sw}, 3072
    s_add_u32 s{mKV}, s{mKV}, {KVB}
    s_mov_b32 s{incKV}, 5120
    s_cmp_lt_u32 s{sw}, 2
    s_cselect_b32 s{incKV}, 327680, s{incKV}
    s_lshl_b32 s{t0}, s{shd}, 18
    s_lshl_b32 s{t1}, s{sfb}, 17
    s_add_u32 s{t1}, s{t1}, {WS_Z2}
    s_waitcnt lgkmcnt(0)""")
    srd(a, rW, pW, f"s{t0}", f"s{szW}"); srd(a, rKV, pWS, 0, WS_Z1); srd(a, rZ, pWS, f"s{t1}", f"s{szZ}")
    srd(a, rE, pWS, 0, f"s{szE}"); srd(a, rO, pWS, WS_O, 2621440); srd(a, rB, pB, 0, 4096)
    a(f"""s_lshl_b32 s{t0}, s{sqg}, 2
    s_add_u32 s{t0}, s{t0}, s{sw}
    s_mul_i32 s{t1}, s{t0}, 163840
    s_add_u32 s{t1}, s{t1}, s{sm5}
    s_mul_i32 s{t2}, s{sodd}, 1536
    s_add_u32 s{t2}, s{t2}, s{t1}
    v_lshlrev_b32 v{gZ}, 4, v{ln}
    v_add_u32 v{gQm}, s{t2}, v{gZ}
    s_lshl_b32 s{t2}, s{sodd}, 3
    s_add_u32 s{t2}, s{t2}, s{t1}
    s_add_u32 s{t2}, s{t2}, 1024
    v_add_u32 v{gQr}, s{t2}, v{gZ}
    v_mov_b32 v{T}, {OOB}
    v_cmp_gt_u32 vcc, 32, v{ln}
    s_mov_b32 s{t2}, 81920
    s_nop 0
    v_cndmask_b32 v{gQr}, v{T}, v{gQr}, vcc""")
    for q in range(2):
        so = f"s{t2}" if q else "0"
        a.vmem(f"buffer_load_dwordx4 {V(Qm[q],4)}, v{gQm}, {S(rKV,4)}, {so} offen", ('Q', q))
        a.vmem(f"buffer_load_dwordx2 {V(Qr[q],2)}, v{gQr}, {S(rKV,4)}, {so} offen", ('Q', q))
    a(f"""s_mul_i32 s{t0}, s{t0}, 81920
    v_subrev_u32 v{gOm}, s{t0}, v{gQm}
    v_subrev_u32 v{gOr}, s{t0}, v{gQr}""")
    a(f"""s_mul_i32 s{t0}, s{sw}, 163840
    s_add_u32 s{t0}, s{t0}, s{sm5}
    s_lshl_b32 s{t1}, s{sodd}, 10
    s_add_u32 s{t0}, s{t0}, s{t1}
    s_add_u32 s{t0}, s{t0}, 40960
    s_mul_i32 s{t1}, s{shd}, 81920
    s_mul_i32 s{t2}, s{sw}, 3072
    s_add_u32 s{t1}, s{t1}, s{t2}
    s_add_u32 s{t1}, s{t1}, {WS_VT - 6144}
    s_cmp_lt_u32 s{sw}, 2
    s_cselect_b32 s{t0}, s{t0}, s{t1}
    s_cselect_b32 s{t1}, 80384, 0
    s_cmp_eq_u32 s{sw}, 3
    s_cselect_b32 s{t2}, {OOB}, s{t1}
    v_add_u32 v{gKV[0]}, s{t0}, v{gZ}
    v_mul_lo_u32 v{T}, v{hf}, s{t1}
    v_add_u32 v{gKV[2]}, s{t2}, v{gKV[0]}
    v_add_u32 v{gKV[1]}, v{T}, v{gKV[0]}""")
    a(f"""v_lshrrev_b32 v{T}, 4, v{ln}
    v_and_b32 v{T+1}, 15, v{ln}
    s_lshl_b32 s{t0}, s{sw}, 16""")
    for i in range(4):
        a(f"""v_add_u32 v{T+2}, {4*i}, v{T}
        v_xor_b32 v{T+3}, v{T+1}, v{T+2}
        v_lshlrev_b32 v{T+2}, 12, v{T+2}
        v_lshl_add_u32 v{T+2}, v{T+3}, 4, v{T+2}
        v_add_u32 v{gW[i]}, s{t0}, v{T+2}""")
        if i: a(f"v_subrev_u32 v{gW[i]}, {1024*i}, v{gW[i]}")
    def dmaW(i, st): 'D' in X or a.vmem(f"buffer_load_dwordx4 v{gW[i]}, {S(rW,4)}, s{oW} offen offset:{1024*i} lds", ('D', st))
    def dmaKV(i, st): 'd' in X or a.vmem(f"buffer_load_dwordx4 v{gKV[i]}, {S(rKV,4)}, s{oKV} offen offset:{1024*i} lds", ('D', st))
    def ldZ(n): 'Z' in X or a.vmem(f"buffer_load_dwordx4 {A(Z[n%16],4)}, v{gZ}, {S(rZ,4)}, s{oZ} offen offset:{(n%4)*1024}", ('Z', n))
    a(f"""{N}_restart:
    s_mov_b32 s{oW}, 0
    s_mov_b32 s{oKV}, 0
    s_mov_b32 s{oZ}, 0
    s_mov_b32 m0, s{mKV}
    s_mov_b32 s{cnt}, 0""")
    for i in range(3): dmaKV(i, 0)
    a(f"s_mov_b32 m0, s{mW}\ns_lshl_b32 s{t0}, s{shd}, 7")
    for i in range(4): dmaW(i, 0)
    a(f"v_lshl_add_u32 v{T}, v{l31}, 1, s{t0}")
    ldZ(0); ldZ(1)
    for tb in range(2): a.vmem(f"buffer_load_ushort v{bs[tb]}, v{T}, {S(rB,4)}, 0 offen offset:{64*tb}", 'b')
    a(f"s_add_u32 s{oKV}, s{oKV}, s{incKV}\ns_add_u32 m0, s{mKV}, 12288\ns_add_u32 s{oW}, s{oW}, 256")
    for i in range(3): dmaKV(i, 1)
    a(f"s_add_u32 m0, s{mW}, 16384\ns_nop 0")
    for i in range(4): dmaW(i, 1)
    for n in range(2, ZL):
        if n % 4 == 0: a(f"s_add_u32 s{oZ}, s{oZ}, 4096")
        ldZ(n)
    a(f"s_add_u32 m0, s{mW}, 32768\ns_add_u32 s{oW}, s{oW}, 256")
    dmaW(0, 2); dmaW(1, 2)
    a(f"""s_mul_i32 s{t0}, s{shd}, {2*55296}
    s_lshl_b32 s{t1}, s{sfb}, 11
    s_add_u32 s{t0}, s{t0}, s{t1}
    v_add_u32 v{gE}, s{t0}, v{gZ}
    s_mov_b32 s{oE}, {WS_Z1}
    s_mov_b32 s{oE+1}, {WS_Z1 + 55296}
    s_lshr_b32 s{t0}, s2, 3
    s_lshl_b32 s{t0}, s{t0}, 2
    s_add_u32 s{t0}, s{t0}, s{sw}
    s_mul_i32 s{t0}, s{t0}, 15040
    s_and_b32 s{t0}, s{t0}, 0xffffff80
    s_add_u32 s{t0}, s{t0}, {WS_WT}
    v_lshlrev_b32 v{gP}, 7, v{ln}
    v_add_u32 v{gP+1}, 8192, v{gP}
    v_min_u32 v254, k3_end-k3_kernel, v253
    v_add_u32 v254, k3_kernel-k2_pc, v254""")
    srd(a, rP, pWS, f"s{t0}", 0)
    def ldE(tb, r): a.vmem(f"buffer_load_dwordx4 {V(Z1[tb]+4*r,4)}, v{gE}, {S(rE,4)}, s{oE+tb} offen offset:{1024*r}", 'z1')
    a(f"v_and_b32 v{T+1}, 15, v{ln}\nv_lshlrev_b32 v{T+2}, 8, v{l31}")
    for j in range(8):
        a(f"""v_add_u32 v{T}, {2*j}, v{hf}
        v_xor_b32 v{T}, v{T}, v{T+1}
        v_lshl_add_u32 v{aW[j]}, v{T}, 4, v{T+2}""")
    a(f"""s_lshl_b32 s{t0}, s{sodd}, 9
    s_add_u32 s{t0}, s{t0}, {KVB}
    v_add_u32 v{aKm}, s{t0}, v{gZ}
    s_cmp_eq_u32 s{sodd}, 0
    s_cselect_b32 s{t0}, 1024, 8
    s_cselect_b32 s{t1}, 0, 4
    s_cselect_b32 s{t2}, 0, 16
    s_add_u32 s{t0}, s{t0}, {KVB}
    v_cmp_gt_u32 vcc, 32, v{ln}
    v_mov_b32 v{T+4}, {ONES}
    v_add_u32 v{T}, s{t0}, v{gZ}""")
    for s in range(4):
        a(f"v_cndmask_b32 v{aKr[s]}, v{T+4}, v{T}, vcc")
        if s < 3: a(f"v_add_u32 v{T}, 12288, v{T}")
    a(f"""v_and_b32 v{T}, 3, v{l31}
    v_bfe_u32 v{T+1}, v{l31}, 2, 1
    v_bfe_u32 v{T+2}, v{l31}, 3, 1
    v_lshl_add_u32 v{T}, v{T+1}, 3, v{T}
    v_lshl_add_u32 v{T}, v{T+2}, 2, v{T}
    v_add_u32 v{T}, s{t1}, v{T}
    v_subrev_u32 v{T+1}, s{t2}, v{l31}
    v_cmp_gt_u32 vcc, 16, v{l31}
    v_mul_u32_u24 v{T+2}, 320, v{hf}
    v_add_u32 v{T+2}, {KVB+6144}, v{T+2}
    v_cndmask_b32 v{T}, v{T+1}, v{T}, vcc
    v_cmp_gt_u32 vcc, 20, v{l31}
    v_lshl_add_u32 v{T}, v{T}, 4, v{T+2}
    s_nop 0""")
    for s in range(4):
        a(f"v_cndmask_b32 v{aV[s]}, v{T+4}, v{T}, vcc")
        if s < 3: a(f"v_add_u32 v{T}, 12288, v{T}")
    for i in range(4): a(f"v_mov_b32 v{T+i}, {0 if '0' in X else 0x3f803f80}")
    a(f"v_lshl_add_u32 v{T+4}, v0, 4, v{T+4}\nv_mov_b32 v{T+5}, {FLAG}\nv_mov_b32 v{T+6}, 0")
    a.ds(f"ds_write_b128 v{T+4}, {V(T,4)}"); a.ds(f"ds_write_b128 v{T+4}, {V(T,4)} offset:1024"); a.ds(f"ds_write_b32 v{T+5}, v{T+6}")
    for r in list(range(O[0], O[0]+16)) + list(range(O[1], O[1]+16)) + list(range(SB[1]+8, SB[1]+16)) + list(range(V2[1], V2[1]+4)) + list(range(W1[1], W1[1]+4)):
        a(f"v_mov_b32 v{r}, 0")
    for i in range(4): a(f"v_accvgpr_write_b32 a{Z[15]+i}, 0")
    stamp(a, 6); a.need(vm=['b']); stamp(a, 7)
    for tb in range(2):
        a(f"v_lshlrev_b32 v{G[tb]}, 16, v{bs[tb]}")
        for i in range(1, 16): a(f"v_mov_b32 v{G[tb]+i}, v{G[tb]}")
    a.drain(vm=False)
    a("s_barrier"); stamp(a, 1); stamp(a, 4, 1); a("s_waitcnt lgkmcnt(0)" if PROF else "")
    def rdKm(kb): 'K' in X or a.ds(f"ds_read_b128 {V(Km[kb%2],4)}, v{aKm} offset:{(kb//4%4)*12288 + kb%4*1536}", ('Km', kb))
    def rdKr(kb): 'K' in X or a.ds(f"ds_read_b64 {V(Kr[kb%2],2)}, v{aKr[kb//4%4]} offset:{kb%4*1536}", ('Kr', kb))
    def rdV(h, kb): 'V' in X or a.ds(f"ds_read_b128 {V((V1,V2)[h][kb%2],4)}, v{aV[kb//4%4]} offset:{kb%4*1280 + 640*h}", ('V', h, kb))
    def rdW(tb, n): 'W' in X or a.ds(f"ds_read_b128 {V((W0,W1)[tb][n%2],4)}, v{aW[n%8]} offset:{(n//8%4)*16384 + 8192*tb}", ('W', tb, n))
    def mM(n): 'M' in X or a(f"v_mfma_f32_32x32x16_bf16 {V(SB[n%2],16)}, {V(Km[n//2%2],4)}, {V(Qm[n%2],4)}, 0")
    def mm(n): 'm' in X or a(f"v_mfma_f32_32x32x8_bf16 {V(SB[n%2],16)}, {V(Kr[n//2%2],2)}, {V(Qr[n%2],2)}, {V(SB[n%2],16)}")
    def mS(h, n): 'S' in X or a(f"v_smfmac_f32_32x32x32_bf16 {V(O[n%2],16)}, {V((V1,V2)[h][n//2%2],4)}, {V(SB[n%2]+8*h,8)}, v{idx}")
    def mG(tb, n): 'G' in X or a(f"v_mfma_f32_32x32x16_bf16 {V(G[tb],16)}, {A(Z[n%16],4)}, {V((W0,W1)[tb][n%2],4)}, {V(G[tb],16)}")
    rdKm(0); rdKr(0); rdW(0, 0); rdV(0, 0); rdV(1, 0)
    a.need(lg=[('Kr', 0)])
    mM(0); a("s_nop 1"); mm(0); a("s_nop 7\ns_nop 3")
    a(f"{N}_loop:")
    def body(it):
        for t in range(32):
            n = it * 32 + t; kb = n // 2; st = n // 8; tt = t % 8; ev = t % 2 == 0
            ex = lambda lo, hi: [a(f"v_exp_f32 v{SB[n%2]+i}, v{SB[n%2]+i}") for i in range(lo, hi) if 'E' not in X]
            sF, sA, sC, sE = [], [], [], []
            if tt == 5: sF.append(f"s_add_u32 s{oW}, s{oW}, 256"); sC.append(f"s_add_u32 m0, s{mW}, {(st+3)%4*16384}")
            if tt == 2: sA.append(f"s_add_u32 s{oKV}, s{oKV}, s{incKV}"); sC.append(f"s_add_u32 m0, s{mKV}, {(st+2)%4*12288}")
            if (n + ZL) % 4 == 0: sF.append(f"s_add_u32 s{oZ}, s{oZ}, 4096")
            cmp3 = f"s_cmp_eq_u32 s{cnt}, 3"
            if t == 0: sA.append(cmp3); sC.append(f"s_cselect_b32 s{rE+2}, s{szE}, 0"); sE.append(f"s_cselect_b32 s{rP+2}, {PFW*16384}, 0")
            if t == 12: sA.append(cmp3); sC.append(f"s_cselect_b32 s{rW+2}, 0, s{rW+2}")
            if t == 16: sA.append(cmp3); sC.append(f"s_cselect_b32 s{rKV+2}, 0, s{rKV+2}")
            if t == 31 - ZL: sF.append(cmp3); sC.append(f"s_cselect_b32 s{rZ+2}, 0, s{rZ+2}")
            if t == 28: sA.append(f"s_add_u32 s{cnt}, s{cnt}, 1")
            if t == 31: sC.append(f"s_cmp_lt_u32 s{cnt}, 4")
            mG(1, n - 1); a.need(lg=[('V', 1, (n - 1) // 2)]); [a(x) for x in sF]
            rdW(1, n); ex(0, 3)
            mS(1, n - 1); a.need(lg=[('Km', (n + 1) // 2)], vm=[('D', st + 1)] if tt == 6 else []); [a(x) for x in sA]
            if tt == 6 and 'B' not in X: a("s_barrier")
            ldZ(n + ZL); ex(3, 5)
            mM(n + 1); a.need(lg=[('W', 0, n)], vm=[('Z', n)])
            if ev: rdKm(kb + 1); rdKr(kb + 1)
            else: rdV(0, kb + 1); rdV(1, kb + 1)
            ex(5, 7)
            mG(0, n); a.need(lg=[('V', 0, kb), ('Kr', (n + 1) // 2)]); [a(x) for x in sC]
            rdW(0, n + 1); ex(7, 10)
            mm(n + 1); ex(10, 14)
            mS(0, n); a.need(lg=[('W', 1, n)]); [a(x) for x in sE]
            if tt >= 6: dmaW(tt - 6, st + 3)
            elif tt < 2: dmaW(tt + 2, st + 2)
            elif tt < 5: dmaKV(tt - 2, st + 2)
            elif t < 16: ldE(t // 8, 0); ldE(t // 8, 1)
            elif t == 21:
                for i in range(2): a.vmem(f"buffer_load_dword v255, v{gP+i}, {S(rP,4)}, 0 offen", 'pf')
            else: a.vmem(f"global_load_dword v255, v254, s[96:97]", 'pf')
            ex(14, 16)
        a(f"s_cbranch_scc1 {N}_loop")
    a.loop(body, 3)
    mG(1, 127); a("s_nop 0"); mS(1, 127); stamp(a, 2); stamp(a, 5, 1)
    U = [SB[0], V1[0]]
    a(f"s_mov_b32 s{t0}, 0x2b800000\ns_mov_b32 s{t1}, 0x53800000\ns_mov_b32 s{t2}, 0xffff0000")
    def unpack(tb, d):
        for i in range(8): a(f"v_lshlrev_b32 v{d+2*i}, 16, v{Z1[tb]+i}\nv_and_b32 v{d+2*i+1}, s{t2}, v{Z1[tb]+i}")
    a.need(vm=['z1']); a.lg = []; a("s_waitcnt lgkmcnt(0)")
    unpack(0, SB[0])
    sA, sB = a.sg(2), a.sg(2)
    a(f"""v_cmp_le_f32 vcc, s{t0}, v{O[0]+12}
    v_cmp_ge_f32 {S(sA,2)}, s{t1}, v{O[0]+12}
    s_and_b64 {S(sB,2)}, vcc, {S(sA,2)}
    v_cmp_le_f32 vcc, s{t0}, v{O[1]+12}
    v_cmp_ge_f32 {S(sA,2)}, s{t1}, v{O[1]+12}
    s_and_b64 {S(sB,2)}, vcc, {S(sB,2)}
    s_and_b64 {S(sB,2)}, {S(sA,2)}, {S(sB,2)}
    v_mov_b32 v{T+5}, {FLAG}
    s_cmp_eq_u64 {S(sB,2)}, -1
    s_cbranch_scc1 {N}_ok
    ds_write_b32 v{T+5}, v{T+5}
    s_waitcnt lgkmcnt(0)
    {N}_ok:
    s_barrier
    ds_read_b32 v{T+6}, v{T+5}""")
    unpack(1, SB[1])
    a(f"s_mov_b32 s{t0}, {WS_H}\ns_mov_b32 s{t1}, {WS_H + 55296}")
    for tb in range(2):
        for i in range(8): a(f"v_pk_mul_f32 {V(G[tb]+2*i,2)}, {V(G[tb]+2*i,2)}, {V(SB[tb]+2*i,2)}")
        for i in range(8): a(f"v_cvt_pk_bf16_f32 v{SB[tb]+i}, v{G[tb]+2*i}, v{G[tb]+2*i+1}")
        for r in range(2): a(f"buffer_store_dwordx4 {V(SB[tb]+4*r,4)}, v{gE}, {S(rE,4)}, s{t0+tb} offen offset:{1024*r}{WT}")
    a(f"""s_waitcnt lgkmcnt(0)
    v_readfirstlane_b32 s{t2}, v{T+6}
    s_mov_b32 s{t0}, 40960
    s_andn2_b32 s{t2}, s{t2}, s{retry}
    {'s_nop 0 ;' if X else ''}s_cbranch_scc1 {N}_fall""")
    for q in range(2):
        a(f"v_rcp_f32 v{T}, v{O[q]+12}\ns_nop 0")
        for i in range(12): a(f"v_mul_f32 v{O[q]+i}, v{O[q]+i}, v{T}")
        for i in range(6): a(f"v_cvt_pk_bf16_f32 v{G[q]+i}, v{O[q]+2*i}, v{O[q]+2*i+1}")
        so = f"s{t0}" if q else "0"
        a(f"buffer_store_dwordx4 {V(G[q],4)}, v{gOm}, {S(rO,4)}, {so} offen{WT}\nbuffer_store_dwordx2 {V(G[q]+4,2)}, v{gOr}, {S(rO,4)}, {so} offen{WT}")
    stamp(a, 3); a("s_waitcnt vmcnt(0)"); stamp_out(a, 2, 8); a("s_endpgm")
    mx = [G[0], G[0] + 1]; gK, gKr = G[0] + 2, G[0] + 3
    a(f"""{N}_fall:
    s_waitcnt vmcnt(0)
    s_mov_b32 s{retry}, -1
    s_mov_b32 s{rW+2}, s{szW}
    s_mov_b32 s{rKV+2}, {WS_Z1}
    s_mov_b32 s{rZ+2}, s{szZ}
    s_lshl_b32 s{t0}, s{sqg}, 2
    s_add_u32 s{t0}, s{t0}, s{sw}
    s_mul_i32 s{t0}, s{t0}, 163840
    v_subrev_u32 v{gK}, s{t0}, v{gQm}
    v_subrev_u32 v{gKr}, s{t0}, v{gQr}
    v_mov_b32 v{mx[0]}, 0xff800000
    v_mov_b32 v{mx[1]}, 0xff800000
    s_mov_b32 s{t0}, 40960
    {N}_fl:
    buffer_load_dwordx4 {V(Km[0],4)}, v{gK}, {S(rKV,4)}, s{t0} offen
    buffer_load_dwordx2 {V(Kr[0],2)}, v{gKr}, {S(rKV,4)}, s{t0} offen
    s_waitcnt vmcnt(0)""")
    mM(0); mM(1); mm(0); mm(1); a("s_nop 7\ns_nop 7")
    for q in range(2):
        for i in range(8): a(f"v_max3_f32 v{mx[q]}, v{SB[q]+2*i}, v{SB[q]+2*i+1}, v{mx[q]}")
    a(f"""s_add_u32 s{t0}, s{t0}, 81920
    s_cmp_lt_u32 s{t0}, {64*81920}
    s_cbranch_scc1 {N}_fl
    v_cmp_gt_u32 vcc, 32, v{ln}
    s_mov_b32 s{t2}, 0xffff0000""")
    for q in range(2):
        a(f"""v_mov_b32 v{T}, v{mx[q]}
        s_nop 1
        v_permlane32_swap_b32 v{T}, v{mx[q]}
        s_nop 1
        v_max_f32 v{T}, v{T}, v{mx[q]}
        v_sub_f32 v{T}, 0, v{T}
        v_and_b32 v{T+1}, s{t2}, v{T}
        v_sub_f32 v{T}, v{T}, v{T+1}
        v_and_b32 v{T+2}, s{t2}, v{T}
        v_sub_f32 v{T}, v{T}, v{T+2}
        v_lshrrev_b32 v{T+1}, 16, v{T+1}
        v_or_b32 v{T+1}, v{T+1}, v{T+2}
        v_lshrrev_b32 v{T}, 16, v{T}
        v_cndmask_b32 v{Qr[q]}, v{T+1}, v{Qr[q]}, vcc
        v_cndmask_b32 v{Qr[q]+1}, v{T}, v{Qr[q]+1}, vcc""")
    a(f"s_barrier\ns_branch {N}_restart\n{N}_end:\ns_endpgm")
    return a
```

```python
from asm import *
import struct
LDS1 = 163840
XB = 98304
F = lambda x: hex(struct.unpack("<I", struct.pack("<f", x))[0])
PRE = int(os.environ.get("K1PRE", "4")); RATE = float(os.environ.get("RATE", "0.8")); BUD = float(os.environ.get("BUD", "4")); SG = int(os.environ.get("SG", "226"))
X = os.environ.get('X1', '')
PFM = int(os.environ.get('PFM', '0'))
ROT = eval(os.environ.get('ROT', '(1,1)')); NT = os.environ.get('NT', '')
ST = eval(os.environ.get('ST', '[]'))
SS = int(os.environ.get('SS', '2'))
STC = int(os.environ.get('STC', '6')); MB = int(os.environ.get('MB', '4'))
PFS = int(os.environ.get('PFS', '0'))
def k1():
    a = Asm(); N = "k1"
    head(a, N, 2); stamp0(a)
    pX, pQ, pI, pD, pWS, pWo, pWout, pSp = [a.sg(2) for _ in range(8)]
    for p, o in ((pX, 0), (pQ, 8), (pI, 32), (pD, 72), (pWS, 80), (pWo, 16), (pWout, 56), (pSp, 40)): a(f"s_load_dwordx2 {S(p,2)}, s[0:1], {o}")
    rX, rWA, rWB, rS, rD = [a.sg(4) for _ in range(5)]
    sw, srb, scg, b0, b1, t0, t1, t2, t3, oX, oW, mX, mW, sblk, scs, spin, phi = [a.sg() for _ in range(17)]; kk = [phi] + [a.sg() for _ in range(4)]
    acc = [a.v(16) for _ in range(8)]
    aW = [[[a.v() for _ in range(4)] for jp in range(2)] for hh in range(2)]
    aX = [a.v() for _ in range(4)]; gX = [a.v() for _ in range(4)]; gW = [[a.v() for _ in range(4)] for ph in range(3)]
    sel = a.v(4); cs = [a.v(4), a.v(4)]; sx = a.v(4); sq = [a.v(4), a.v(4)]
    xe = a.v(2); we = [a.v(2) for _ in range(2)]; aCr = [a.v(), a.v()]
    ln, l16, c1, c2, ir, rr, s1, s2, gS, aC, aTw, aTr, gD, cq, aTw2, aTr2 = [a.v() for _ in range(16)]
    T = a.v(16, 4); P = a.v(14, 4)
    xf = [a.a(4) for _ in range(40)]; Wf = [a.a(4) for _ in range(8)]
    a(f"""v_lshrrev_b32 v{T}, 6, v0
    v_and_b32 v{ln}, 63, v0
    v_readfirstlane_b32 s{sw}, v{T}
    s_and_b32 s{t0}, s2, 1
    s_bfe_u32 s{t1}, s2, 0x30003
    s_lshl_b32 s{t0}, s{t0}, 3
    s_add_u32 s{srb}, s{t0}, s{t1}
    s_bfe_u32 s{t0}, s2, 0x20001
    s_lshr_b32 s{t1}, s2, 6
    s_lshl_b32 s{t0}, s{t0}, 2
    s_add_u32 s{scg}, s{t0}, s{t1}
    v_lshlrev_b32 v{l16}, 4, v{ln}
    s_cmp_eq_u32 s{scg}, 15
    s_cbranch_scc1 {N}_side
    s_and_b32 s{b0}, s{sw}, 1
    s_mov_b32 s{spin}, 0
    s_lshr_b32 s{b1}, s{sw}, 1
    s_lshl_b32 s{sblk}, s{srb}, 2
    s_add_u32 s{sblk}, s{sblk}, s{sw}
    s_mul_i32 s{t0}, s{sblk}, 40960
    s_lshl_b32 s{mX}, s{sw}, 14
    s_add_u32 s{mX}, s{mX}, {XB}
    s_lshl_b32 s{mW}, s{sw}, 12
    v_lshrrev_b32 v{T}, 3, v{ln}
    v_lshrrev_b32 v{T+1}, 4, v{ln}
    v_and_b32 v{T+2}, 7, v{ln}
    v_mul_u32_u24 v{T}, 1280, v{T}
    v_xor_b32 v{T+2}, v{T+2}, v{T+1}
    v_lshl_add_u32 v{gX[0]}, v{T+2}, 4, v{T}
    v_xor_b32 v{gX[1]}, 64, v{gX[0]}
    v_add_u32 v{gX[1]}, {10240-1024}, v{gX[1]}
    v_add_u32 v{gX[2]}, {20480-2048}, v{gX[0]}
    v_add_u32 v{gX[3]}, {20480-2048}, v{gX[1]}
    s_cmp_lt_u32 s{scg}, 14
    s_cselect_b32 s{t1}, {640*3456}, 0
    s_movk_i32 s{t3}, 3456
    s_waitcnt lgkmcnt(0)""")
    ST or stamp(a, 7)
    srd(a, rX, pX, f"s{t0}", 0 if 'x' in X else 40960); srd(a, rWA, pI, 0, 0 if 'w' in X else f"s{t1}"); srd(a, rWB, pQ, 0, 0 if 'b' in X else 640 * 3840)
    a(f"""v_bfe_u32 v{T+2}, v{ln}, 2, 2
    v_xor_b32 v{T+2}, v{T+2}, v{T+1}
    v_and_b32 v{T+3}, 3, v{ln}
    v_and_b32 v{T+4}, 1, v{T+2}
    v_lshlrev_b32 v{T+3}, 4, v{T+3}
    v_lshl_add_u32 v{T+3}, v{T+4}, 6, v{T+3}
    v_lshrrev_b32 v{T+2}, 1, v{T+2}
    s_lshl_b32 s{t0}, s{sw}, 4
    v_lshl_add_u32 v{T+1}, v{T+2}, 6, v{T+1}
    v_add_u32 v{T+1}, s{t0}, v{T+1}
    s_lshl_b32 s{t0}, s{scg}, 7
    v_add_u32 v{T+3}, s{t0}, v{T+3}
    s_cmp_eq_u32 s{scg}, 0
    s_cselect_b32 s{t2}, {OOB}, 0
    v_xor_b32 v{T+4}, 1, v{T+4}
    v_mul_lo_u32 v{T+4}, v{T+4}, s{t2}
    v_mad_u32_u24 v{gW[1][0]}, v{T+1}, s{t3}, v{T+3}
    v_add_u32 v{gW[0][0]}, v{gW[1][0]}, v{T+4}
    v_add_u32 v{gW[0][0]}, 1664, v{gW[0][0]}
    s_bfe_u32 s{t0}, s2, 0x30003
    s_lshr_b32 s{t1}, s2, 6
    s_mul_i32 s{t0}, s{t0}, {ROT[0]}
    s_mul_i32 s{t1}, s{t1}, {ROT[1]}
    s_add_u32 s{t0}, s{t0}, s{t1}
    s_mul_i32 s{t1}, s{t0}, 13108
    s_lshr_b32 s{t1}, s{t1}, 16
    s_mul_i32 s{t1}, s{t1}, 5
    s_sub_u32 s{phi}, s{t0}, s{t1}""")
    for i in range(1, 4): a(f"v_add_u32 v{gW[0][i]}, {i*(4*3456-1024)}, v{gW[0][0]}")
    DQ = sorted([(8 * u - 6.5, 'X', u, i) for u in range(10) for i in range(4)] + [(16 * g - 6, 'W', g, i) for g in range(20) for i in range(4)])
    rot = lambda g, o, mul: f"s_mul_i32 s{o}, s{kk[g]}, {mul}"
    def dma():
        _, k, g, i = DQ.pop(0)
        if k == 'X':
            if i == 0: a(f"s_add_u32 m0, s{mX}, {g%4*4096}\n" + (rot(g // 2, oX, 256) if g % 2 == 0 else f"s_add_u32 s{oX}, s{oX}, 128"))
            a.vmem(f"buffer_load_dwordx4 v{gX[i]}, {S(rX,4)}, s{oX} offen offset:{1024*i} lds", ('X', g))
        else:
            P = g // 5
            if i == 0: a(f"s_add_u32 m0, s{mW}, {g%6*16384}\n" + rot(g % 5, oW, 128 * (3456, 3840)[P // 2]) + (f"\ns_add_u32 s{rWB}, s{rWB}, 1920\ns_addc_u32 s{rWB+1}, s{rWB+1}, 0\ns_sub_u32 s{rWB+2}, s{rWB+2}, 1920" if g == 15 and 'b' not in X else ''))
            a.vmem(f"buffer_load_dwordx4 v{gW[min(P,2)][i]}, {S((rWA,rWB)[P//2],4)}, s{oW} offen offset:{1024*i} lds", ('W', g))
    def dma_ok(gap):
        if not DQ: return False
        _, k, g, i = DQ[0]
        return gap >= (8 * (g - 4) + 1 if k == 'X' else 16 * (g - 4) - 6)
    ST or stamp(a, 8)
    for _ in range(8): dma()
    for g in range(1, 5): a(f"s_cmp_ge_u32 s{phi}, {5-g}\ns_cselect_b32 s{kk[g]}, {g-5}, {g}\ns_add_u32 s{kk[g]}, s{kk[g]}, s{phi}")
    a(f"s_movk_i32 s{t3}, 3840\nv_mad_u32_u24 v{gW[2][0]}, v{T+1}, s{t3}, v{T+3}")
    for i in range(1, 4): a(f"v_add_u32 v{gW[1][i]}, {i*(4*3456-1024)}, v{gW[1][0]}\nv_add_u32 v{gW[2][i]}, {i*(4*3840-1024)}, v{gW[2][0]}")
    srd(a, rS, pWS, 0, WS_PROF); srd(a, rD, pD, 0, 256)
    a(f"""s_lshl_b32 s{t0}, s{sblk}, 12
    s_add_u32 s{t0}, s{t0}, {WS_ST}
    s_lshl_b32 s{scs}, s{scg}, 8
    v_lshl_add_u32 v{gS}, v{ln}, 2, s{t0}
    s_lshl_b32 s{t0}, s{sblk}, 2
    v_mov_b32 v{gD}, s{t0}""")
    for _ in range(4): dma()
    a(f"""v_and_b32 v{T}, 31, v{ln}
    v_lshrrev_b32 v{T+1}, 5, v{ln}
    v_bfe_u32 v{T+2}, v{ln}, 1, 3
    v_xor_b32 v{T+2}, v{T+2}, v{T+1}
    v_lshlrev_b32 v{T+2}, 4, v{T+2}
    v_lshl_add_u32 v{T+2}, v{T}, 7, v{T+2}
    s_lshl_b32 s{t0}, s{b1}, 5
    v_xor_b32 v{T+2}, s{t0}, v{T+2}""")
    for j in range(4): a(f"v_xor_b32 v{T+3}, {32*j}, v{T+2}\nv_add_u32 v{aX[j]}, s{mX}, v{T+3}")
    a(f"""v_lshlrev_b32 v{T+3}, 6, v{T}
    v_lshl_add_u32 v{T+3}, v{T+1}, 4, v{T+3}
    s_add_u32 s{t0}, s{mX}, 4096
    v_bfe_u32 v{T+4}, v{ln}, 1, 2
    v_lshlrev_b32 v{T+4}, 4, v{T+4}
    v_xor_b32 v{T+3}, v{T+3}, v{T+4}
    v_add_u32 v{aTw}, s{t0}, v{T+3}
    v_xor_b32 v{aTw2}, 32, v{aTw}
    v_lshlrev_b32 v{T+3}, 3, v{T}
    v_add_u32 v{aC}, s{mX}, v{T+3}
    v_lshl_add_u32 v{T+9}, v{T+1}, 15, v{T+3}
    v_bfe_u32 v{T+2}, v{ln}, 2, 2
    v_lshl_add_u32 v{T+3}, v{T+1}, 3, v{T+2}
    v_and_b32 v{T+4}, 1, v{ln}
    v_bfe_u32 v{T+5}, v{ln}, 1, 1
    v_bfe_u32 v{T+6}, v{ln}, 4, 1
    v_lshlrev_b32 v{T+4}, 4, v{T+4}
    v_lshl_add_u32 v{T+4}, v{T+5}, 3, v{T+4}
    v_lshl_add_u32 v{T+4}, v{T+6}, 5, v{T+4}
    v_lshl_add_u32 v{T+5}, v{T+3}, 6, v{T+4}
    v_and_b32 v{T+7}, 8, v{ln}
    v_lshlrev_b32 v{T+7}, 1, v{T+7}
    v_xor_b32 v{T+5}, v{T+5}, v{T+7}
    v_add_u32 v{aTr}, s{t0}, v{T+5}
    v_xor_b32 v{aTr2}, 32, v{aTr}
    v_lshl_add_u32 v{T+4}, v{T+3}, 8, v{T+4}
    v_xor_b32 v{T+2}, s{b0}, v{T+2}
    v_lshl_add_u32 v{T+4}, v{T+2}, 6, v{T+4}
    s_lshl_b32 s{t0}, s{b1}, 12
    v_xor_b32 v{T+4}, s{t0}, v{T+4}""")
    for jp in range(2):
        for p in range(4):
            a(f"v_xor_b32 v{aW[0][jp][p]}, {jp*4096 + p*64}, v{T+4}\nv_add_u32 v{aW[1][jp][p]}, 49152, v{aW[0][jp][p]}")
    for _ in range(4 * (PRE - 3)): dma()
    a(f"""s_lshl_b32 s{t0}, s{b0}, 14
    s_add_u32 s{t1}, s{t0}, {XB}
    s_xor_b32 s{t0}, s{t0}, 16384
    s_add_u32 s{t0}, s{t0}, {XB}
    v_add_u32 v{aCr[0]}, s{t1}, v{T+9}
    v_add_u32 v{aCr[1]}, s{t0}, v{T+9}
    v_bfe_u32 v{T}, v{ln}, 2, 1
    v_and_b32 v{T+1}, 3, v{ln}
    v_xor_b32 v{T}, v{T}, v{T+6}
    v_or_b32 v{T}, v{T}, v{T+1}
    v_cmp_eq_u32 vcc, 0, v{T}
    v_mov_b32 v{T+1}, 0x3f803f80
    v_mov_b32 v{s1}, 0
    v_mov_b32 v{s2}, 0""")
    for i in range(4): a(f"v_cndmask_b32 v{sel+i}, 0, v{T+1}, vcc")
    dec = lambda m: (m // 80, m // 16, m % 16 // 8, m % 8 // 2, m % 2)
    def rdW(m):
        if m >= 320: return
        _, G, h, j, t = dec(m); sl = G % 6
        for r in range(2):
            a.ds(f"ds_read_b64_tr_b16 {A(Wf[m%8]+2*r,2)}, v{aW[sl//3][j%2][2*h+t]} offset:{sl%3*16384 + j//2*8192 + 1024*r}", ('W', m))
    def rdX(q):
        if q < 40: a.ds(f"ds_read_b128 {A(xf[q],4)}, v{aX[q%4]} offset:{q//4%4*4096}", ('X', q))
    ST or stamp(a, 9); a.need(vm=[('X', 0), ('W', 0)]); a("s_barrier"); stamp(a, 1); a("s_waitcnt lgkmcnt(0)" if PROF else "")
    rdX(0); rdW(0); rdW(1); rdX(1); rdW(2); rdW(3); rdX(2); rdX(3); rdW(4); rdW(5)
    a.need(lg=[('W', 1)])
    Q = []; gate = [0]
    op = lambda t, c=1: Q.append((c, t, gate[0]))
    ops = lambda txt: [op(t) for t in txt.split("\n")]
    def split_cs(P_):
        c = cs[P_ % 2]
        a(f"""v_cvt_pk_bf16_f32 v{c+1}, v{c}, v{c}
        v_and_b32 v{c+2}, 0xffff0000, v{c+1}
        v_sub_f32 v{c+2}, v{c}, v{c+2}
        v_cvt_pk_bf16_f32 v{c}, v{c}, v{c+2}
        v_and_b32 v{c+1}, 0xffff, v{c+1}""")
    def wrC(P_): a.ds(f"ds_write_b64 v{aC}, {V(cs[P_%2],2)} offset:{P_*256}", ('cw', P_))
    def rdE(P_):
        for t in range(2): a.ds(f"ds_read_b64 {V(we[t],2)}, v{aCr[t]} offset:{P_*256}", ('we', P_))
    def fold(P_, t): a(f"v_mfma_f32_32x32x8_bf16 {V(acc[2*P_+t],16)}, {V(we[t],2)}, {V(xe,2)}, {V(acc[2*P_+t],16)}")
    def zaddr(p, mul, base, dst):
        return f"""s_xor_b32 s{t1}, s{b0}, {p&1}
        s_lshl_b32 s{t2}, s{scg}, 1
        s_add_u32 s{t1}, s{t1}, s{t2}
        s_sub_u32 s{t1}, s{t1}, {1 if p < 2 else 0}
        s_mul_i32 s{t2}, s{t1}, {mul}
        s_add_u32 s{t2}, s{t2}, s{base}
        s_cmp_lt_u32 s{t1}, 27
        s_cselect_b32 s{t2}, s{t2}, {OOB}
        v_add_u32 v{dst}, s{t2}, v{l16}"""
    ZG = int(os.environ.get('ZG', '68')); gate[0] = ZG
    txt = f"s_mul_i32 s{t3}, s{sblk}, 55296\ns_add_u32 s{t3}, s{t3}, {WS_Z1}\n" + zaddr(2, 2048, t3, gX[2]) + "\n" + zaddr(3, 2048, t3, gX[3])
    txt += f"\ns_lshl_b32 s{t3}, s{sblk}, 11\ns_add_u32 s{t3}, s{t3}, {WS_Z2}\n" + zaddr(0, 131072, t3, gX[0]) + "\n" + zaddr(1, 131072, t3, gX[1])
    txt += f"""
    s_mul_i32 s{t3}, s{sblk}, 81920
    s_lshl_b32 s{t1}, s{scg}, 12
    s_add_u32 s{t3}, s{t3}, s{t1}
    s_lshl_b32 s{t1}, s{b0}, 11
    v_add_u32 v{T+4}, s{t3}, v{l16}
    v_xor_b32 v{T+4}, s{t1}, v{T+4}
    v_xor_b32 v{T+5}, 2048, v{T+4}"""
    tl = [x.strip() for x in txt.split("\n")]
    while tl:
        x = tl.pop(0)
        if x.startswith("s_cmp"): op(x + "\n" + tl.pop(0), 2)
        else: op(x)
    gate[0] = 82
    for i in range(4): op(f"v_add_f32 v{sq[0]+i}, v{sq[0]+i}, v{sq[1]+i}")
    op(f"v_and_b32 v{T}, 3, v{ln}")
    fill = [(f"v_mul_f32 v{T+1}, {F(-1/640)}, v{sx}", f"v_cvt_pk_bf16_f32 v{xe}, v{T+1}, v{T+1}"),
            (f"v_and_b32 v{T+3}, 0xffff0000, v{xe}", f"v_sub_f32 v{T+3}, v{T+1}, v{T+3}"),
            (f"v_cvt_pk_bf16_f32 v{xe+1}, v{T+3}, 0", f"v_mul_f32 v{T+1}, v{T+1}, v{T+1}")]
    for i in range(1, 4):
        op(f"v_cmp_eq_u32 vcc, {i}, v{T}"); op(fill[i-1][0]); op(fill[i-1][1]); op(f"v_cndmask_b32 v{sq[0]}, v{sq[0]}, v{sq[0]+i}, vcc")
    nxe = len(Q)
    ops(f"""v_mov_b32 v{T+2}, v{sq[0]}
    s_mov_b32 s{t0}, {F(1/640)}
    s_nop 0
    v_permlane32_swap_b32 v{T+2}, v{sq[0]}
    s_nop 1
    v_add_f32 v{T+2}, v{T+2}, v{sq[0]}
    v_fma_f32 v{T+2}, v{T+2}, s{t0}, -v{T+1}
    v_max_f32 v{T+2}, 0, v{T+2}
    v_add_f32 v{T+2}, {F(1e-5)}, v{T+2}
    v_rsq_f32 v{rr}, v{T+2}
    s_nop 0
    v_mul_f32 v{ir}, v{T+2}, v{rr}
    v_mul_f32 v{c1}, {F(-2*0.7978845608028654*1.4426950408889634)}, v{rr}
    v_mul_f32 v{c2}, v{rr}, v{rr}
    v_mul_f32 v{c2}, v{c1}, v{c2}
    v_mul_f32 v{c2}, {F(0.044715)}, v{c2}""")
    op(f"s_cmp_lt_u32 s{scg}, 10\ns_cselect_b32 s{t0}, {F(20**-0.5*1.4426950408889634)}, 1.0\nv_mul_f32 v{cq}, s{t0}, v{rr}", 3)
    if PFS:
        tl = [x.strip() for x in f"""s_and_b32 s{t1}, s2, 7
            s_lshl_b32 s{t1}, s{t1}, 5
            s_lshr_b32 s{t2}, s2, 3
            s_add_u32 s{t1}, s{t1}, s{t2}
            s_lshl_b32 s{t1}, s{t1}, 15
            s_add_u32 s{rX}, s{pSp}, s{t1}
            s_addc_u32 s{rX+1}, s{pSp+1}, 0
            s_mov_b32 s{rX+2}, 32768
            v_lshrrev_b32 v{T+11}, 5, v0
            v_and_b32 v{T+12}, 31, v0
            v_lshlrev_b32 v{T+11}, 12, v{T+11}
            v_lshl_add_u32 v{T+11}, v{T+12}, 5, v{T+11}
            v_lshlrev_b32 v254, 6, v0
            v_min_u32 v254, k2_end-k2_kernel, v254
            v_add_u32 v254, k2_kernel-k1_pc, v254""".split("\n")]
        while tl:
            x = tl.pop(0)
            if tl and tl[0].startswith("s_addc"): op(x + "\n" + tl.pop(0), 2)
            else: op(x)
        npf = len(Q)
    def gelu(r0, stats):
        R = range(4)
        for i in R: op(f"v_mul_f32 v{T+i}, v{r0+i}, v{r0+i}")
        for i in R: op(f"v_fma_f32 v{T+i}, v{T+i}, v{c2}, v{c1}")
        for i in R: op(f"v_mul_f32 v{T+i}, v{T+i}, v{r0+i}")
        for i in R: op(f"v_exp_f32 v{T+i}, v{T+i}", 2)
        for i in R: op(f"v_fma_f32 v{T+i}, v{T+i}, v{ir}, v{ir}")
        for i in R: op(f"v_rcp_f32 v{T+i}, v{T+i}", 2)
        for i in R: op(f"v_mul_f32 v{r0+i}, v{r0+i}, v{T+i}")
        if stats:
            for i in R: op(f"v_add_f32 v{s1}, v{s1}, v{r0+i}"); op(f"v_fmac_f32 v{s2}, v{r0+i}, v{r0+i}")
    TOT = int(os.environ.get('TOT', '7')); DC = int(os.environ.get('DC', '2')); C16 = int(os.environ.get('C16', '2')); PH = int(os.environ.get('PH', '0')); CR = int(os.environ.get('CR', '20')); FG = int(os.environ.get('FG', '8')); R1 = float(os.environ.get('R1', '0.25'))
    gate[0] = 80 + FG + 5
    for p in range(2):
        for b in range(4): gelu(acc[p] + 4 * b, True)
    def chk():
        a.need(vm=['cnt'])
        a(f"""{N}_c0:
        v_readfirstlane_b32 s{oX}, v{T+10}
        s_cmp_eq_u32 s{oX}, 15
        s_cbranch_scc1 {N}_c1
        s_add_u32 s{spin}, s{spin}, 0x4000
        s_cbranch_scc1 {N}_c1
        buffer_load_dword v{T+10}, v{gD}, {S(rD,4)}, 0 offen sc1
        s_waitcnt vmcnt(0)
        s_branch {N}_c0
        {N}_c1:""")
    op(chk, 3); op(f"v_permlane32_swap_b32 v{s1}, v{s2}"); op("s_nop 1"); op(f"v_add_f32 v{s1}, v{s1}, v{s2}"); op(f"v_min_u32 v{s1}, -2, v{s1}")
    op(lambda: a.vmem(f"buffer_store_dword v{s1}, v{gS}, {S(rS,4)}, s{scs} offen sc0 sc1", 'pub'))
    st4 = lambda r, ad, so, off: 'S' in X or a.vmem(f"buffer_store_dwordx4 {V(r,4)}, v{ad}, {S(rS,4)}, {so} offen offset:{off}{WT}", 'st')
    gate[0] = 160 + FG + 5
    for p in range(2, 4):
        for b in range(4):
            gelu(acc[p] + 4 * b, False)
            for i in range(2): op(f"v_cvt_pk_bf16_f32 v{acc[p]+2*b+i}, v{acc[p]+4*b+2*i}, v{acc[p]+4*b+2*i+1}")
            if b % 2: op(lambda p=p, b=b: st4(acc[p] + 2 * b - 2, gX[p], 0, b // 2 * 1024), STC)
    PS = [P + i for i in range(14)]
    def ldS(lo=0, hi=14):
        for i in range(lo, hi): a.vmem(f"buffer_load_dword v{PS[i]}, v{gS}, {S(rS,4)}, 0 offen offset:{256*i} sc1", 'S')
    gate[0] = 240 + FG + 5
    for t in range(2):
        d = acc[4 + t]
        for r in range(2):
            for i in range(8): op(f"v_mul_f32 v{d+8*r+i}, v{d+8*r+i}, v{cq}")
            for i in range(4): op(f"v_cvt_pk_bf16_f32 v{d+4*r+i}, v{d+8*r+2*i}, v{d+8*r+2*i+1}")
            op(lambda d=d, t=t, r=r: st4(d + 4 * r, T + 4 + t, 0, 1024 * r), STC)
    def poll():
        a.need(vm=['S'])
        a(f"{N}_s0:\nv_max_u32 v{T}, v{PS[0]}, v{PS[1]}")
        for i in range(1, 7): a(f"v_max3_u32 v{T}, v{PS[2*i]}, v{PS[2*i+1]}, v{T}")
        a(f"v_cmp_eq_u32 vcc, -1, v{T}\ns_nop 1\ns_cbranch_vccz {N}_s1\ns_add_u32 s{spin}, s{spin}, 0x4000\ns_cbranch_scc1 {N}_s1")
        sv = list(a.vm); ldS(); a.vm = sv; a(f"s_waitcnt vmcnt(0)\ns_branch {N}_s0\n{N}_s1:")
    gate[0] = max(gate[0], SG + 14 * SS + int(os.environ.get('SL', '20'))); op(poll, 11)
    for i in range(7): op(f"v_add_f32 v{PS[i]}, v{PS[i]}, v{PS[i+7]}")
    for i, k in ((0, 1), (2, 3), (4, 5), (0, 6), (2, 4), (0, 2)): op(f"v_add_f32 v{PS[i]}, v{PS[i]}, v{PS[k]}")
    ops(f"""v_mul_f32 v{T}, {F(1/864)}, v{PS[0]}
    v_mov_b32 v{T+1}, v{T}
    s_nop 1
    v_permlane32_swap_b32 v{T}, v{T+1}
    s_nop 1
    v_fma_f32 v{T+1}, -v{T}, v{T}, v{T+1}
    v_max_f32 v{T+1}, 0, v{T+1}
    v_add_f32 v{T+1}, {F(1e-5)}, v{T+1}
    v_rsq_f32 v{T+2}, v{T+1}
    s_nop 0
    v_mul_f32 v{T}, v{T}, v{T+2}""")
    def trw(src, slot, r): a.ds(f"ds_write_b128 v{(aTw,aTw2)[r]}, {V(src+4*r,4)} offset:{slot*2048}", ('tw', slot))
    def trr(dst, slot):
        for i in range(4): a.ds(f"ds_read_b64_tr_b16 {V(dst+2*i,2)}, v{(aTr,aTr2)[i%2]} offset:{slot*2048 + i//2*1024 + i%2*256}", ('tr', slot))
    def z2st(p, r):
        a.need(lg=[('tr', 4 + p)]); st4(acc[p] + 8 + 4 * r, gX[p], 0, 1024 * r)
    for p in range(2):
        d = acc[p]
        for r in range(2):
            for i in range(8): op(f"v_fma_f32 v{d+8*r+i}, v{d+8*r+i}, v{T+2}, -v{T}")
            for i in range(4): op(f"v_cvt_pk_bf16_f32 v{d+4*r+i}, v{d+8*r+2*i}, v{d+8*r+2*i+1}")
            op(lambda d=d, p=p, r=r: trw(d, 4 + p, r), 2)
            if p == 1 and r == 0: op(lambda: trr(acc[0] + 8, 4), 4)
    op(lambda: trr(acc[1] + 8, 5), 4); [op(lambda p=p, r=r: z2st(p, r), max(STC, 6)) for p in range(2) for r in range(2)]
    print("k1 filler slots", sum(c for c, _, _ in Q))
    def pop(budget, m):
        while Q and budget >= min(Q[0][0], MB) and Q[0][2] <= m:
            c, t, _ = Q.pop(0); budget -= c
            t() if callable(t) else a(t if 'f' not in X else '')
        return min(budget, 0)
    credit = 0; dcredit = 0.0; nq0 = len(Q)
    for m in range(320):
        P_, G, h, j, t = dec(m); q = m % 80 // 2; d = acc[2 * P_ + t]; mm = m % 80
        a(f"v_mfma_f32_32x32x16_bf16 {V(d,16)}, {A(Wf[m%8],4)}, {A(xf[q],4)}, {V(d,16) if q else 0}")
        vm, lg = [], []; L0 = len(a.L)
        if m % 2 == 1: lg += [('W', m + 1), ('W', m + 2), ('X', q + 1)]
        if (m + 6) % 8 == 0: vm += [('X', (m + 6) // 8)]
        bar = (m + 6) % 16 == 0 and m + 6 < 320
        if bar: vm += [('W', (m + 6) // 16)]
        if P_ and mm == FG - 3: lg += [('cw', P_ - 1)]; bar = True
        if P_ and mm == FG: lg += [('we', P_ - 1)]
        a.need(vm=vm, lg=lg)
        if bar and 'n' not in X: a("s_barrier")
        bud = BUD
        if P_ and mm == FG - 3: rdE(P_ - 1); bud -= 2
        if P_ and mm == 2: wrC(P_ - 1); bud -= 1
        if P_ == 0 and m % 8 in (2, 3): rdX((m + 6) // 8 * 4 + m % 2 * 2); rdX((m + 6) // 8 * 4 + m % 2 * 2 + 1)
        rdW(m + 6)
        dcredit += RATE if P_ == 0 else R1
        if (dcredit >= 1 if P_ == 0 else m % 4 == PH) and dma_ok(m): dma(); dcredit -= 1; bud -= 1
        dcredit = min(dcredit, 1.5 if P_ == 0 else 1 - R1)
        if m == 70: a.vmem(f"buffer_load_dword v{T+10}, v{gD}, {S(rD,4)}, 0 offen", 'cnt')
        if m == ZG: assert not any(k == 'X' for _, k, g, i in DQ)
        if SG <= m < SG + 14 * SS and (m - SG) % SS == 0 and 'L' not in X: ldS((m - SG) // SS, (m - SG) // SS + 1)
        if PFS and m == 100: assert len(Q) <= nq0 - npf
        if PFS and m >= 100 and (m - 100) % 32 == 0 and (m - 100) // 32 < PFS:
            a.vmem(f"buffer_load_dword v255, v{T+11}, {S(rX,4)}, 0 offen offset:{(m-100)//32*1024}", 'pf'); bud -= 1
        if PFS and m == 230: a.vmem(f"global_load_dword v255, v254, s[96:97]", 'pf')
        if P_ and mm == 1: split_cs(P_ - 1); bud -= 5
        used = sum((1 if x.text() else 0) if isinstance(x, Wait) else (DC if 'buffer' in x else 1) for x in a.L[L0:])
        credit = pop(max(credit, -CR) + TOT - used, m)
        if j % 2 == 0 and t == 0 and 'c' not in X:
            a(f"v_mfma_f32_16x16x32_bf16 {V(cs[P_%2],4)}, {V(sel,4)}, {A(Wf[m%8],4)}, {V(cs[P_%2],4) if q else 0}"); credit = pop(credit + C16, m)
        if P_ == 0 and t == 0 and 's' not in X: a(f"v_mfma_f32_16x16x32_bf16 {V(sx,4)}, {V(sel,4)}, {A(xf[q],4)}, {V(sx,4) if q else 0}")
        if P_ == 0 and t == 1 and 'q' not in X:
            for r in range(2): a(f"v_mfma_f32_4x4x4_16b_bf16 {V(sq[r],4)}, {A(xf[q]+2*r,2)}, {A(xf[q]+2*r,2)}, {V(sq[r],4) if q else 0}")
        if P_ and mm in (FG, FG + 1):
            assert len(Q) <= nq0 - nxe
            a("s_nop 1"); fold(P_ - 1, mm - FG); credit = pop(credit + 5, m)
        if m == 79: stamp(a, 2)
        if m in ST: stamp(a, 7 + ST.index(m))
        if m == 159: stamp(a, 3)
        if m == 239: stamp(a, 4)
    print("k1 filler left", sum(c for c, _, _ in Q)); assert not DQ
    stamp(a, 5)
    a("s_nop 3"); split_cs(3); wrC(3)
    pop(1e9, 999)
    a.need(lg=[('cw', 3)]); a("s_barrier"); rdE(3)
    a(f"""v_and_b32 v{T}, 19, v{ln}
    v_bfe_u32 v{T+1}, v{ln}, 2, 1
    v_bfe_u32 v{T+2}, v{ln}, 3, 1
    v_lshl_add_u32 v{T}, v{T+1}, 3, v{T}
    v_lshl_add_u32 v{T}, v{T+2}, 2, v{T}
    s_sub_u32 s{t1}, s{scg}, 5
    s_lshl_b32 s{t1}, s{t1}, 1
    s_add_u32 s{t1}, s{t1}, s{b0}
    s_lshl_b32 s{t1}, s{t1}, 5
    v_add_u32 v{T}, s{t1}, v{T}
    v_lshrrev_b32 v{T+1}, 5, v{ln}
    v_mul_u32_u24 v{T+1}, 320, v{T+1}
    s_mul_i32 s{t1}, s{sblk}, 1280
    s_add_u32 s{t1}, s{t1}, {WS_VT}
    v_add_u32 v{T+1}, s{t1}, v{T+1}
    v_mov_b32 v{c1}, v{rr}
    v_mov_b32 v{c2}, v{rr}""")
    assert c1 % 2 == 0 and c2 == c1 + 1
    a.need(lg=[('we', 3)])
    for t in range(2): fold(3, t)
    for t in range(2):
        a(f"""v_xor_b32 v{T+2}, {32*t}, v{T}
        v_mul_u32_u24 v{T+3}, 52429, v{T+2}
        v_lshrrev_b32 v{T+3}, 20, v{T+3}
        v_mul_u32_u24 v{T+3}, {81920-320}, v{T+3}
        v_lshl_add_u32 v{T+2}, v{T+2}, 4, v{T+3}
        v_add_u32 v{T+6+t}, v{T+2}, v{T+1}""")
    def scale(t, r):
        d = acc[6 + t]
        for i in range(4): a(f"v_pk_mul_f32 {V(d+8*r+2*i,2)}, {V(d+8*r+2*i,2)}, {V(c1,2)}")
        for i in range(4): a(f"v_cvt_pk_bf16_f32 v{d+4*r+i}, v{d+8*r+2*i}, v{d+8*r+2*i+1}")
    a(f"s_mov_b32 s{t1}, {15*4096}\ns_cmp_ge_u32 s{scg}, 5\ns_cbranch_scc1 {N}_v")
    for t in range(2):
        for r in range(2): scale(t, r); st4(acc[6 + t] + 4 * r, T + 4 + t, f"s{t1}", 1024 * r)
    a(f"s_branch {N}_fin\n{N}_v:")
    for t in range(2):
        for r in range(2): scale(t, r); trw(acc[6 + t], t, r)
    for t in range(2): trr(acc[6 + t] + 8, t)
    for t in range(2):
        a.need(lg=[('tr', t)])
        for r in range(2): st4(acc[6 + t] + 8 + 4 * r, T + 6 + t, 0, 640 * r)
    a(f"{N}_fin:")
    stamp(a, 6); a("s_waitcnt vmcnt(0)"); stamp_out(a, 1, 10); a("s_endpgm")
    a.vm = []; a.lg = []
    a(f"""{N}_side:
    s_lshl_b32 s{sblk}, s{srb}, 2
    s_add_u32 s{sblk}, s{sblk}, s{sw}
    s_lshl_b32 s{t0}, s{sblk}, 12
    s_add_u32 s{t0}, s{t0}, {WS_ST}
    s_lshl_b32 s{sblk}, s{sblk}, 2
    v_mov_b32 v{T+4}, -1
    v_mov_b32 v{T+5}, -1
    v_mov_b32 v{T+6}, -1
    v_mov_b32 v{T+7}, -1
    v_mov_b32 v{T+8}, 15
    v_mov_b32 v{T+9}, s{sblk}
    s_waitcnt lgkmcnt(0)""")
    srd(a, rS, pWS, f"s{t0}", 4096); srd(a, rD, pD, 0, 256)
    for i in range(4): a(f"buffer_store_dwordx4 {V(T+4,4)}, v{l16}, {S(rS,4)}, 0 offen offset:{1024*i} sc0 sc1")
    a(f"""s_waitcnt vmcnt(0)
    buffer_store_dword v{T+8}, v{T+9}, {S(rD,4)}, 0 offen sc0 sc1
    s_mul_i32 s{mX}, s{sw}, 10240
    v_add_u32 v{T}, s{mX}, v{l16}
    s_mul_i32 s{srb}, s{srb}, 3""")
    srd(a, rS, pWS, WS_WT, 8 * 47 * 5120)
    for kk in range(3):
        a(f"""s_add_u32 s{t0}, s{srb}, {kk}
        s_sub_u32 s{t1}, s{t0}, 20
        s_cmp_lt_u32 s{t0}, 20
        s_cselect_b32 s{t1}, s{t0}, s{t1}
        s_cselect_b32 s{t2}, s{pWo}, s{pWout}
        s_cselect_b32 s{t3}, s{pWo+1}, s{pWout+1}
        s_mul_i32 s{t1}, s{t1}, 40960
        s_add_u32 s{rX}, s{t2}, s{t1}
        s_addc_u32 s{rX+1}, s{t3}, 0
        s_cmp_lt_u32 s{t0}, 47
        s_cselect_b32 s{rX+2}, 40960, 0
        s_mov_b32 s{rX+3}, 0x20000""")
        for i in range(10):
            if i % 4 == 0: a(f"s_add_u32 m0, s{mX}, {kk*40960 + i*1024}\ns_mov_b32 s{oX}, {i*1024}")
            a(f"buffer_load_dwordx4 v{T}, {S(rX,4)}, s{oX} offen offset:{i%4*1024} lds")
    a(f"""v_lshrrev_b32 v{T+1}, 4, v{ln}
    v_bfe_u32 v{T+2}, v{ln}, 2, 2
    v_lshl_add_u32 v{T+1}, v{T+1}, 3, v{T+2}
    v_mul_u32_u24 v{T+1}, 1280, v{T+1}
    v_and_b32 v{T+2}, 3, v{ln}
    v_mul_u32_u24 v{T+2}, 40, v{T+2}
    s_mul_i32 s{t0}, s{sw}, 320
    v_add3_u32 v{T+1}, v{T+1}, v{T+2}, s{t0}
    s_waitcnt vmcnt(0)
    s_barrier""")
    for kk in range(3):
        for c in range(2):
            for nt in range(5):
                for h in range(2): a(f"ds_read_b64_tr_b16 {V(acc[0]+40*kk+20*c+4*nt+2*h,2)}, v{T+1} offset:{160*c + 8*nt + 5120*h}")
        a(f"v_add_u32 v{T+1}, 40960, v{T+1}")
        a(f"""s_add_u32 s{t0}, s{srb}, {kk}
        s_cmp_lt_u32 s{t0}, 47
        s_cselect_b32 s{rS+2}, s{rS+2}, 0
        s_mul_i32 s{t1}, s{sw}, 94
        s_add_u32 s{t0}, s{t0}, s{t1}
        s_mul_i32 s{t0}, s{t0}, 5120
        s_waitcnt lgkmcnt(0)""")
        for c in range(2):
            for nt in range(5):
                a(f"s_add_u32 s{t1}, s{t0}, {c*47*5120 + nt*1024}\nbuffer_store_dwordx4 {V(acc[0]+40*kk+20*c+4*nt,4)}, v{l16}, {S(rS,4)}, s{t1} offen{WT}")
    a("s_waitcnt vmcnt(0)")
    for i in range(1, 10): stamp(a, i)
    stamp_out(a, 1, 10)
    a(f"{N}_end:\ns_endpgm")
    return a
```

```python
from asm import *
import struct
LDS1 = 163840
XB = 98304
F = lambda x: hex(struct.unpack("<I", struct.pack("<f", x))[0])
PRE = int(os.environ.get("K1PRE", "4")); RATE = float(os.environ.get("RATE", "0.8")); BUD = float(os.environ.get("BUD", "4")); SG = int(os.environ.get("SG", "226"))
X = os.environ.get('X1', '')
PFM = int(os.environ.get('PFM', '0'))
ROT = eval(os.environ.get('ROT', '(2,1)')); NT = os.environ.get('NT', '')
ST = eval(os.environ.get('ST', '[]'))
SS = int(os.environ.get('SS', '2'))
STC = int(os.environ.get('STC', '6')); MB = int(os.environ.get('MB', '4'))
PFS = int(os.environ.get('PFS', '0')); PG = int(os.environ.get('PG', '254')); PD = int(os.environ.get('PD', '2'))
def k1():
    a = Asm(); N = "k1"
    head(a, N, 2); stamp0(a)
    pX, pQ, pI, pD, pWS, pWo, pWout, pSp, pB = [a.sg(2) for _ in range(9)]
    for p, o in ((pX, 0), (pQ, 8), (pI, 32), (pD, 72), (pWS, 80), (pWo, 16), (pWout, 56), (pSp, 40), (pB, 48)): a(f"s_load_dwordx2 {S(p,2)}, s[0:1], {o}")
    rX, rWA, rWB, rS, rD = [a.sg(4) for _ in range(5)]
    sw, srb, scg, b0, b1, t0, t1, t2, t3, oX, oW, mX, mW, sblk, scs, spin, phi = [a.sg() for _ in range(17)]; kk = [phi] + [a.sg() for _ in range(4)]
    acc = [a.v(16) for _ in range(8)]
    aW = [[[a.v() for _ in range(4)] for jp in range(2)] for hh in range(2)]
    aX = [a.v() for _ in range(4)]; gX = [a.v() for _ in range(4)]; gW = [[a.v() for _ in range(4)] for ph in range(3)]
    sel = a.v(4); cs = [a.v(4), a.v(4)]; sx = a.v(4); sq = [a.v(4), a.v(4)]
    xe = a.v(2); we = [a.v(2) for _ in range(2)]; aCr = [a.v(), a.v()]
    ln, l16, c1, c2, ir, rr, s1, s2, gS, aC, aTw, aTr, gD, cq, aTw2, aTr2 = [a.v() for _ in range(16)]
    T = a.v(16, 4); P = a.v(14, 4)
    xf = [a.a(4) for _ in range(40)]; Wf = [a.a(4) for _ in range(8)]
    a(f"""v_lshrrev_b32 v{T}, 6, v0
    v_and_b32 v{ln}, 63, v0
    v_readfirstlane_b32 s{sw}, v{T}
    s_and_b32 s{t0}, s2, 1
    s_bfe_u32 s{t1}, s2, 0x30003
    s_lshl_b32 s{t0}, s{t0}, 3
    s_add_u32 s{srb}, s{t0}, s{t1}
    s_bfe_u32 s{t0}, s2, 0x20001
    s_lshr_b32 s{t1}, s2, 6
    s_lshl_b32 s{t0}, s{t0}, 2
    s_add_u32 s{scg}, s{t0}, s{t1}
    v_lshlrev_b32 v{l16}, 4, v{ln}
    s_cmp_eq_u32 s{scg}, 15
    s_cbranch_scc1 {N}_side
    s_and_b32 s{b0}, s{sw}, 1
    s_mov_b32 s{spin}, 0
    s_lshr_b32 s{b1}, s{sw}, 1
    s_lshl_b32 s{sblk}, s{srb}, 2
    s_add_u32 s{sblk}, s{sblk}, s{sw}
    s_mul_i32 s{t0}, s{sblk}, 40960
    s_lshl_b32 s{mX}, s{sw}, 14
    s_add_u32 s{mX}, s{mX}, {XB}
    s_lshl_b32 s{mW}, s{sw}, 12
    v_lshrrev_b32 v{T}, 3, v{ln}
    v_lshrrev_b32 v{T+1}, 4, v{ln}
    v_and_b32 v{T+2}, 7, v{ln}
    v_mul_u32_u24 v{T}, 1280, v{T}
    v_xor_b32 v{T+2}, v{T+2}, v{T+1}
    v_lshl_add_u32 v{gX[0]}, v{T+2}, 4, v{T}
    v_xor_b32 v{gX[1]}, 64, v{gX[0]}
    v_add_u32 v{gX[1]}, {10240-1024}, v{gX[1]}
    v_add_u32 v{gX[2]}, {20480-2048}, v{gX[0]}
    v_add_u32 v{gX[3]}, {20480-2048}, v{gX[1]}
    s_cmp_lt_u32 s{scg}, 14
    s_cselect_b32 s{t1}, {640*3456}, 0
    s_movk_i32 s{t3}, 3456
    s_waitcnt lgkmcnt(0)""")
    ST or stamp(a, 7)
    srd(a, rX, pX, f"s{t0}", 0 if 'x' in X else 40960); srd(a, rWA, pI, 0, 0 if 'w' in X else f"s{t1}"); srd(a, rWB, pQ, 0, 0 if 'b' in X else 640 * 3840)
    a(f"""v_bfe_u32 v{T+2}, v{ln}, 2, 2
    v_xor_b32 v{T+2}, v{T+2}, v{T+1}
    v_and_b32 v{T+3}, 3, v{ln}
    v_and_b32 v{T+4}, 1, v{T+2}
    v_lshlrev_b32 v{T+3}, 4, v{T+3}
    v_lshl_add_u32 v{T+3}, v{T+4}, 6, v{T+3}
    v_lshrrev_b32 v{T+2}, 1, v{T+2}
    s_lshl_b32 s{t0}, s{sw}, 4
    v_lshl_add_u32 v{T+1}, v{T+2}, 6, v{T+1}
    v_add_u32 v{T+1}, s{t0}, v{T+1}
    s_lshl_b32 s{t0}, s{scg}, 7
    v_add_u32 v{T+3}, s{t0}, v{T+3}
    s_cmp_eq_u32 s{scg}, 0
    s_cselect_b32 s{t2}, {OOB}, 0
    v_xor_b32 v{T+4}, 1, v{T+4}
    v_mul_lo_u32 v{T+4}, v{T+4}, s{t2}
    v_mad_u32_u24 v{gW[1][0]}, v{T+1}, s{t3}, v{T+3}
    v_add_u32 v{gW[0][0]}, v{gW[1][0]}, v{T+4}
    v_add_u32 v{gW[0][0]}, 1664, v{gW[0][0]}
    s_bfe_u32 s{t0}, s2, 0x30003
    s_lshr_b32 s{t1}, s2, 6
    s_mul_i32 s{t0}, s{t0}, {ROT[0]}
    s_mul_i32 s{t1}, s{t1}, {ROT[1]}
    s_add_u32 s{t0}, s{t0}, s{t1}
    s_mul_i32 s{t1}, s{t0}, 13108
    s_lshr_b32 s{t1}, s{t1}, 16
    s_mul_i32 s{t1}, s{t1}, 5
    s_sub_u32 s{phi}, s{t0}, s{t1}""")
    for i in range(1, 4): a(f"v_add_u32 v{gW[0][i]}, {i*(4*3456-1024)}, v{gW[0][0]}")
    DQ = sorted([(8 * u - 6.5, 'X', u, i) for u in range(10) for i in range(4)] + [(16 * g - 6, 'W', g, i) for g in range(20) for i in range(4)])
    rot = lambda g, o, mul: f"s_mul_i32 s{o}, s{kk[g]}, {mul}"
    def dma():
        _, k, g, i = DQ.pop(0)
        if k == 'X':
            if i == 0: a(f"s_add_u32 m0, s{mX}, {g%4*4096}\n" + (rot(g // 2, oX, 256) if g % 2 == 0 else f"s_add_u32 s{oX}, s{oX}, 128"))
            a.vmem(f"buffer_load_dwordx4 v{gX[i]}, {S(rX,4)}, s{oX} offen offset:{1024*i} lds", ('X', g))
        else:
            P = g // 5
            if i == 0: a(f"s_add_u32 m0, s{mW}, {g%6*16384}\n" + rot(g % 5, oW, 128 * (3456, 3840)[P // 2]) + (f"\ns_add_u32 s{rWB}, s{rWB}, 1920\ns_addc_u32 s{rWB+1}, s{rWB+1}, 0\ns_sub_u32 s{rWB+2}, s{rWB+2}, 1920" if g == 15 and 'b' not in X else ''))
            a.vmem(f"buffer_load_dwordx4 v{gW[min(P,2)][i]}, {S((rWA,rWB)[P//2],4)}, s{oW} offen offset:{1024*i} lds", ('W', g))
    def dma_ok(gap):
        if not DQ: return False
        _, k, g, i = DQ[0]
        return gap >= (8 * (g - 4) + 1 if k == 'X' else 16 * (g - 4) - 6)
    ST or stamp(a, 8)
    for _ in range(8): dma()
    for g in range(1, 5): a(f"s_cmp_ge_u32 s{phi}, {5-g}\ns_cselect_b32 s{kk[g]}, {g-5}, {g}\ns_add_u32 s{kk[g]}, s{kk[g]}, s{phi}")
    a(f"s_movk_i32 s{t3}, 3840\nv_mad_u32_u24 v{gW[2][0]}, v{T+1}, s{t3}, v{T+3}")
    for i in range(1, 4): a(f"v_add_u32 v{gW[1][i]}, {i*(4*3456-1024)}, v{gW[1][0]}\nv_add_u32 v{gW[2][i]}, {i*(4*3840-1024)}, v{gW[2][0]}")
    srd(a, rS, pWS, 0, WS_PROF); srd(a, rD, pD, 0, 256)
    a(f"""s_lshl_b32 s{t0}, s{sblk}, 12
    s_add_u32 s{t0}, s{t0}, {WS_ST}
    s_lshl_b32 s{scs}, s{scg}, 8
    v_lshl_add_u32 v{gS}, v{ln}, 2, s{t0}
    s_lshl_b32 s{t0}, s{sblk}, 2
    v_mov_b32 v{gD}, s{t0}""")
    for _ in range(4): dma()
    a(f"""v_and_b32 v{T}, 31, v{ln}
    v_lshrrev_b32 v{T+1}, 5, v{ln}
    v_bfe_u32 v{T+2}, v{ln}, 1, 3
    v_xor_b32 v{T+2}, v{T+2}, v{T+1}
    v_lshlrev_b32 v{T+2}, 4, v{T+2}
    v_lshl_add_u32 v{T+2}, v{T}, 7, v{T+2}
    s_lshl_b32 s{t0}, s{b1}, 5
    v_xor_b32 v{T+2}, s{t0}, v{T+2}""")
    for j in range(4): a(f"v_xor_b32 v{T+3}, {32*j}, v{T+2}\nv_add_u32 v{aX[j]}, s{mX}, v{T+3}")
    a(f"""v_lshlrev_b32 v{T+3}, 6, v{T}
    v_lshl_add_u32 v{T+3}, v{T+1}, 4, v{T+3}
    s_add_u32 s{t0}, s{mX}, 4096
    v_bfe_u32 v{T+4}, v{ln}, 1, 2
    v_lshlrev_b32 v{T+4}, 4, v{T+4}
    v_xor_b32 v{T+3}, v{T+3}, v{T+4}
    v_add_u32 v{aTw}, s{t0}, v{T+3}
    v_xor_b32 v{aTw2}, 32, v{aTw}
    v_lshlrev_b32 v{T+3}, 3, v{T}
    v_add_u32 v{aC}, s{mX}, v{T+3}
    v_lshl_add_u32 v{T+9}, v{T+1}, 15, v{T+3}
    v_bfe_u32 v{T+2}, v{ln}, 2, 2
    v_lshl_add_u32 v{T+3}, v{T+1}, 3, v{T+2}
    v_and_b32 v{T+4}, 1, v{ln}
    v_bfe_u32 v{T+5}, v{ln}, 1, 1
    v_bfe_u32 v{T+6}, v{ln}, 4, 1
    v_lshlrev_b32 v{T+4}, 4, v{T+4}
    v_lshl_add_u32 v{T+4}, v{T+5}, 3, v{T+4}
    v_lshl_add_u32 v{T+4}, v{T+6}, 5, v{T+4}
    v_lshl_add_u32 v{T+5}, v{T+3}, 6, v{T+4}
    v_and_b32 v{T+7}, 8, v{ln}
    v_lshlrev_b32 v{T+7}, 1, v{T+7}
    v_xor_b32 v{T+5}, v{T+5}, v{T+7}
    v_add_u32 v{aTr}, s{t0}, v{T+5}
    v_xor_b32 v{aTr2}, 32, v{aTr}
    v_lshl_add_u32 v{T+4}, v{T+3}, 8, v{T+4}
    v_xor_b32 v{T+2}, s{b0}, v{T+2}
    v_lshl_add_u32 v{T+4}, v{T+2}, 6, v{T+4}
    s_lshl_b32 s{t0}, s{b1}, 12
    v_xor_b32 v{T+4}, s{t0}, v{T+4}""")
    for jp in range(2):
        for p in range(4):
            a(f"v_xor_b32 v{aW[0][jp][p]}, {jp*4096 + p*64}, v{T+4}\nv_add_u32 v{aW[1][jp][p]}, 49152, v{aW[0][jp][p]}")
    for _ in range(4 * (PRE - 3)): dma()
    a(f"""s_lshl_b32 s{t0}, s{b0}, 14
    s_add_u32 s{t1}, s{t0}, {XB}
    s_xor_b32 s{t0}, s{t0}, 16384
    s_add_u32 s{t0}, s{t0}, {XB}
    v_add_u32 v{aCr[0]}, s{t1}, v{T+9}
    v_add_u32 v{aCr[1]}, s{t0}, v{T+9}
    v_bfe_u32 v{T}, v{ln}, 2, 1
    v_and_b32 v{T+1}, 3, v{ln}
    v_xor_b32 v{T}, v{T}, v{T+6}
    v_or_b32 v{T}, v{T}, v{T+1}
    v_cmp_eq_u32 vcc, 0, v{T}
    v_mov_b32 v{T+1}, 0x3f803f80
    v_mov_b32 v{s1}, 0
    v_mov_b32 v{s2}, 0""")
    for i in range(4): a(f"v_cndmask_b32 v{sel+i}, 0, v{T+1}, vcc")
    dec = lambda m: (m // 80, m // 16, m % 16 // 8, m % 8 // 2, m % 2)
    def rdW(m):
        if m >= 320: return
        _, G, h, j, t = dec(m); sl = G % 6
        for r in range(2):
            a.ds(f"ds_read_b64_tr_b16 {A(Wf[m%8]+2*r,2)}, v{aW[sl//3][j%2][2*h+t]} offset:{sl%3*16384 + j//2*8192 + 1024*r}", ('W', m))
    def rdX(q):
        if q < 40: a.ds(f"ds_read_b128 {A(xf[q],4)}, v{aX[q%4]} offset:{q//4%4*4096}", ('X', q))
    ST or stamp(a, 9); a.need(vm=[('X', 0), ('W', 0)]); a("s_barrier"); stamp(a, 1); a("s_waitcnt lgkmcnt(0)" if PROF else "")
    rdX(0); rdW(0); rdW(1); rdX(1); rdW(2); rdW(3); rdX(2); rdX(3); rdW(4); rdW(5)
    a.need(lg=[('W', 1)])
    Q = []; gate = [0]
    op = lambda t, c=1: Q.append((c, t, gate[0]))
    ops = lambda txt: [op(t) for t in txt.split("\n")]
    def split_cs(P_):
        c = cs[P_ % 2]
        a(f"""v_cvt_pk_bf16_f32 v{c+1}, v{c}, v{c}
        v_and_b32 v{c+2}, 0xffff0000, v{c+1}
        v_sub_f32 v{c+2}, v{c}, v{c+2}
        v_cvt_pk_bf16_f32 v{c}, v{c}, v{c+2}
        v_and_b32 v{c+1}, 0xffff, v{c+1}""")
    def wrC(P_): a.ds(f"ds_write_b64 v{aC}, {V(cs[P_%2],2)} offset:{P_*256}", ('cw', P_))
    def rdE(P_):
        for t in range(2): a.ds(f"ds_read_b64 {V(we[t],2)}, v{aCr[t]} offset:{P_*256}", ('we', P_))
    def fold(P_, t): a(f"v_mfma_f32_32x32x8_bf16 {V(acc[2*P_+t],16)}, {V(we[t],2)}, {V(xe,2)}, {V(acc[2*P_+t],16)}")
    def zaddr(p, mul, base, dst):
        return f"""s_xor_b32 s{t1}, s{b0}, {p&1}
        s_lshl_b32 s{t2}, s{scg}, 1
        s_add_u32 s{t1}, s{t1}, s{t2}
        s_sub_u32 s{t1}, s{t1}, {1 if p < 2 else 0}
        s_mul_i32 s{t2}, s{t1}, {mul}
        s_add_u32 s{t2}, s{t2}, s{base}
        s_cmp_lt_u32 s{t1}, 27
        s_cselect_b32 s{t2}, s{t2}, {OOB}
        v_add_u32 v{dst}, s{t2}, v{l16}"""
    ZG = int(os.environ.get('ZG', '68')); gate[0] = ZG
    txt = f"s_mul_i32 s{t3}, s{sblk}, 55296\ns_add_u32 s{t3}, s{t3}, {WS_Z1}\n" + zaddr(2, 2048, t3, gX[2]) + "\n" + zaddr(3, 2048, t3, gX[3])
    txt += f"\ns_lshl_b32 s{t3}, s{sblk}, 11\ns_add_u32 s{t3}, s{t3}, {WS_Z2}\n" + zaddr(0, 131072, t3, gX[0]) + "\n" + zaddr(1, 131072, t3, gX[1])
    txt += f"""
    s_mul_i32 s{t3}, s{sblk}, 81920
    s_lshl_b32 s{t1}, s{scg}, 12
    s_add_u32 s{t3}, s{t3}, s{t1}
    s_lshl_b32 s{t1}, s{b0}, 11
    v_add_u32 v{T+4}, s{t3}, v{l16}
    v_xor_b32 v{T+4}, s{t1}, v{T+4}
    v_xor_b32 v{T+5}, 2048, v{T+4}"""
    tl = [x.strip() for x in txt.split("\n")]
    while tl:
        x = tl.pop(0)
        if x.startswith("s_cmp"): op(x + "\n" + tl.pop(0), 2)
        else: op(x)
    gate[0] = 82
    for i in range(4): op(f"v_add_f32 v{sq[0]+i}, v{sq[0]+i}, v{sq[1]+i}")
    op(f"v_and_b32 v{T}, 3, v{ln}")
    fill = [(f"v_mul_f32 v{T+1}, {F(-1/640)}, v{sx}", f"v_cvt_pk_bf16_f32 v{xe}, v{T+1}, v{T+1}"),
            (f"v_and_b32 v{T+3}, 0xffff0000, v{xe}", f"v_sub_f32 v{T+3}, v{T+1}, v{T+3}"),
            (f"v_cvt_pk_bf16_f32 v{xe+1}, v{T+3}, 0", f"v_mul_f32 v{T+1}, v{T+1}, v{T+1}")]
    for i in range(1, 4):
        op(f"v_cmp_eq_u32 vcc, {i}, v{T}"); op(fill[i-1][0]); op(fill[i-1][1]); op(f"v_cndmask_b32 v{sq[0]}, v{sq[0]}, v{sq[0]+i}, vcc")
    nxe = len(Q)
    ops(f"""v_mov_b32 v{T+2}, v{sq[0]}
    s_mov_b32 s{t0}, {F(1/640)}
    s_nop 0
    v_permlane32_swap_b32 v{T+2}, v{sq[0]}
    s_nop 1
    v_add_f32 v{T+2}, v{T+2}, v{sq[0]}
    v_fma_f32 v{T+2}, v{T+2}, s{t0}, -v{T+1}
    v_max_f32 v{T+2}, 0, v{T+2}
    v_add_f32 v{T+2}, {F(1e-5)}, v{T+2}
    v_rsq_f32 v{rr}, v{T+2}
    s_nop 0
    v_mul_f32 v{ir}, v{T+2}, v{rr}
    v_mul_f32 v{c1}, {F(-2*0.7978845608028654*1.4426950408889634)}, v{rr}
    v_mul_f32 v{c2}, v{rr}, v{rr}
    v_mul_f32 v{c2}, v{c1}, v{c2}
    v_mul_f32 v{c2}, {F(0.044715)}, v{c2}""")
    op(f"s_cmp_lt_u32 s{scg}, 10\ns_cselect_b32 s{t0}, {F(20**-0.5*1.4426950408889634)}, 1.0\nv_mul_f32 v{cq}, s{t0}, v{rr}", 3)
    pfs = f"""s_and_b32 s{t1}, s2, 7
            s_lshl_b32 s{t1}, s{t1}, 5
            s_lshr_b32 s{t2}, s2, 3
            s_add_u32 s{t1}, s{t1}, s{t2}
            s_lshl_b32 s{t1}, s{t1}, 15
            s_add_u32 s{rX}, s{pSp}, s{t1}
            s_addc_u32 s{rX+1}, s{pSp+1}, 0
            s_mov_b32 s{rX+2}, 32768
            v_lshrrev_b32 v{T+11}, 5, v0
            v_and_b32 v{T+12}, 31, v0
            v_lshlrev_b32 v{T+11}, 12, v{T+11}
            v_lshl_add_u32 v{T+11}, v{T+12}, {7 - PFS.bit_length() + 1}, v{T+11}
            v_and_b32 v{T+11}, {os.environ.get('PM', '-1')}, v{T+11}
            s_and_b32 s{t2}, s2, {os.environ.get('RM', '0')}
            s_lshl_b32 s{t2}, s{t2}, 9
            v_xor_b32 v{T+11}, s{t2}, v{T+11}
            v_lshlrev_b32 v{T+12}, 7, v{T+12}
            v_lshlrev_b32 v254, 6, v0
            v_min_u32 v254, k2_end-k2_kernel, v254
            v_add_u32 v254, k2_kernel-k1_pc, v254"""
    def pf(i):
        if i < PFS: a.vmem(f"buffer_load_dword v255, v{T+11}, {S(rX,4)}, 0 offen offset:{i*4096//PFS}", 'pf')
        elif i == PFS: a.vmem(f"global_load_dword v255, v254, s[96:97]", 'pf')
        else: a.vmem(f"global_load_dword v255, v{T+12}, {S(pB,2)}", 'pf')
    if PFS:
        tl = [x.strip() for x in pfs.split("\n")]
        while tl:
            x = tl.pop(0)
            if tl and tl[0].startswith("s_addc"): op(x + "\n" + tl.pop(0), 2)
            else: op(x)
        npf = len(Q)
    def gelu(r0, stats):
        R = range(4)
        for i in R: op(f"v_mul_f32 v{T+i}, v{r0+i}, v{r0+i}")
        for i in R: op(f"v_fma_f32 v{T+i}, v{T+i}, v{c2}, v{c1}")
        for i in R: op(f"v_mul_f32 v{T+i}, v{T+i}, v{r0+i}")
        for i in R: op(f"v_exp_f32 v{T+i}, v{T+i}", 2)
        for i in R: op(f"v_fma_f32 v{T+i}, v{T+i}, v{ir}, v{ir}")
        for i in R: op(f"v_rcp_f32 v{T+i}, v{T+i}", 2)
        for i in R: op(f"v_mul_f32 v{r0+i}, v{r0+i}, v{T+i}")
        if stats:
            for i in R: op(f"v_add_f32 v{s1}, v{s1}, v{r0+i}"); op(f"v_fmac_f32 v{s2}, v{r0+i}, v{r0+i}")
    TOT = int(os.environ.get('TOT', '7')); DC = int(os.environ.get('DC', '2')); C16 = int(os.environ.get('C16', '2')); PH = int(os.environ.get('PH', '0')); CR = int(os.environ.get('CR', '20')); FG = int(os.environ.get('FG', '8')); R1 = float(os.environ.get('R1', '0.25'))
    gate[0] = 80 + FG + 5
    for p in range(2):
        for b in range(4): gelu(acc[p] + 4 * b, True)
    def chk():
        a.need(vm=['cnt'])
        a(f"""{N}_c0:
        v_readfirstlane_b32 s{oX}, v{T+10}
        s_cmp_eq_u32 s{oX}, 15
        s_cbranch_scc1 {N}_c1
        s_add_u32 s{spin}, s{spin}, 0x4000
        s_cbranch_scc1 {N}_c1
        buffer_load_dword v{T+10}, v{gD}, {S(rD,4)}, 0 offen sc1
        s_waitcnt vmcnt(0)
        s_branch {N}_c0
        {N}_c1:""")
    op(chk, 3); op(f"v_permlane32_swap_b32 v{s1}, v{s2}"); op("s_nop 1"); op(f"v_add_f32 v{s1}, v{s1}, v{s2}"); op(f"v_min_u32 v{s1}, -2, v{s1}")
    op(lambda: a.vmem(f"buffer_store_dword v{s1}, v{gS}, {S(rS,4)}, s{scs} offen sc0 sc1", 'pub'))
    st4 = lambda r, ad, so, off: 'S' in X or a.vmem(f"buffer_store_dwordx4 {V(r,4)}, v{ad}, {S(rS,4)}, {so} offen offset:{off}{WT}", 'st')
    gate[0] = 160 + FG + 5
    for p in range(2, 4):
        for b in range(4):
            gelu(acc[p] + 4 * b, False)
            for i in range(2): op(f"v_cvt_pk_bf16_f32 v{acc[p]+2*b+i}, v{acc[p]+4*b+2*i}, v{acc[p]+4*b+2*i+1}")
            if b % 2: op(lambda p=p, b=b: st4(acc[p] + 2 * b - 2, gX[p], 0, b // 2 * 1024), STC)
    PS = [P + i for i in range(14)]
    def ldS(lo=0, hi=14):
        for i in range(lo, hi): a.vmem(f"buffer_load_dword v{PS[i]}, v{gS}, {S(rS,4)}, 0 offen offset:{256*i} sc1", 'S')
    gate[0] = 240 + FG + 5
    for t in range(2):
        d = acc[4 + t]
        for r in range(2):
            for i in range(8): op(f"v_mul_f32 v{d+8*r+i}, v{d+8*r+i}, v{cq}")
            for i in range(4): op(f"v_cvt_pk_bf16_f32 v{d+4*r+i}, v{d+8*r+2*i}, v{d+8*r+2*i+1}")
            op(lambda d=d, t=t, r=r: st4(d + 4 * r, T + 4 + t, 0, 1024 * r), STC)
    def poll():
        a.need(vm=['S'])
        a(f"{N}_s0:\nv_max_u32 v{T}, v{PS[0]}, v{PS[1]}")
        for i in range(1, 7): a(f"v_max3_u32 v{T}, v{PS[2*i]}, v{PS[2*i+1]}, v{T}")
        a(f"v_cmp_eq_u32 vcc, -1, v{T}\ns_nop 1\ns_cbranch_vccz {N}_s1\ns_add_u32 s{spin}, s{spin}, 0x4000\ns_cbranch_scc1 {N}_s1")
        sv = list(a.vm); ldS(); a.vm = sv; a(f"s_waitcnt vmcnt(0)\ns_branch {N}_s0\n{N}_s1:")
    gate[0] = max(gate[0], SG + 14 * SS + int(os.environ.get('SL', '20'))); op(poll, 11)
    for i in range(7): op(f"v_add_f32 v{PS[i]}, v{PS[i]}, v{PS[i+7]}")
    for i, k in ((0, 1), (2, 3), (4, 5), (0, 6), (2, 4), (0, 2)): op(f"v_add_f32 v{PS[i]}, v{PS[i]}, v{PS[k]}")
    ops(f"""v_mul_f32 v{T}, {F(1/864)}, v{PS[0]}
    v_mov_b32 v{T+1}, v{T}
    s_nop 1
    v_permlane32_swap_b32 v{T}, v{T+1}
    s_nop 1
    v_fma_f32 v{T+1}, -v{T}, v{T}, v{T+1}
    v_max_f32 v{T+1}, 0, v{T+1}
    v_add_f32 v{T+1}, {F(1e-5)}, v{T+1}
    v_rsq_f32 v{T+2}, v{T+1}
    s_nop 0
    v_mul_f32 v{T}, v{T}, v{T+2}""")
    def trw(src, slot, r): a.ds(f"ds_write_b128 v{(aTw,aTw2)[r]}, {V(src+4*r,4)} offset:{slot*2048}", ('tw', slot))
    def trr(dst, slot):
        for i in range(4): a.ds(f"ds_read_b64_tr_b16 {V(dst+2*i,2)}, v{(aTr,aTr2)[i%2]} offset:{slot*2048 + i//2*1024 + i%2*256}", ('tr', slot))
    def z2st(p, r):
        a.need(lg=[('tr', 4 + p)]); st4(acc[p] + 8 + 4 * r, gX[p], 0, 1024 * r)
    for p in range(2):
        d = acc[p]
        for r in range(2):
            for i in range(8): op(f"v_fma_f32 v{d+8*r+i}, v{d+8*r+i}, v{T+2}, -v{T}")
            for i in range(4): op(f"v_cvt_pk_bf16_f32 v{d+4*r+i}, v{d+8*r+2*i}, v{d+8*r+2*i+1}")
            op(lambda d=d, p=p, r=r: trw(d, 4 + p, r), 2)
            if p == 1 and r == 0: op(lambda: trr(acc[0] + 8, 4), 4)
    op(lambda: trr(acc[1] + 8, 5), 4); [op(lambda p=p, r=r: z2st(p, r), max(STC, 6)) for p in range(2) for r in range(2)]
    print("k1 filler slots", sum(c for c, _, _ in Q))
    def pop(budget, m):
        while Q and budget >= min(Q[0][0], MB) and Q[0][2] <= m:
            c, t, _ = Q.pop(0); budget -= c
            t() if callable(t) else a(t if 'f' not in X else '')
        return min(budget, 0)
    credit = 0; dcredit = 0.0; nq0 = len(Q)
    for m in range(320):
        P_, G, h, j, t = dec(m); q = m % 80 // 2; d = acc[2 * P_ + t]; mm = m % 80
        a(f"v_mfma_f32_32x32x16_bf16 {V(d,16)}, {A(Wf[m%8],4)}, {A(xf[q],4)}, {V(d,16) if q else 0}")
        vm, lg = [], []; L0 = len(a.L)
        if m % 2 == 1: lg += [('W', m + 1), ('W', m + 2), ('X', q + 1)]
        if (m + 6) % 8 == 0: vm += [('X', (m + 6) // 8)]
        bar = (m + 6) % 16 == 0 and m + 6 < 320
        if bar: vm += [('W', (m + 6) // 16)]
        if P_ and mm == FG - 3: lg += [('cw', P_ - 1)]; bar = True
        if P_ and mm == FG: lg += [('we', P_ - 1)]
        a.need(vm=vm, lg=lg)
        if bar and 'n' not in X: a("s_barrier")
        bud = BUD
        if P_ and mm == FG - 3: rdE(P_ - 1); bud -= 2
        if P_ and mm == 2: wrC(P_ - 1); bud -= 1
        if P_ == 0 and m % 8 in (2, 3): rdX((m + 6) // 8 * 4 + m % 2 * 2); rdX((m + 6) // 8 * 4 + m % 2 * 2 + 1)
        rdW(m + 6)
        dcredit += RATE if P_ == 0 else R1
        if (dcredit >= 1 if P_ == 0 else m % 4 == PH) and dma_ok(m): dma(); dcredit -= 1; bud -= 1
        dcredit = min(dcredit, 1.5 if P_ == 0 else 1 - R1)
        if m == 70: a.vmem(f"buffer_load_dword v{T+10}, v{gD}, {S(rD,4)}, 0 offen", 'cnt')
        if m == ZG: assert not any(k == 'X' for _, k, g, i in DQ)
        if SG <= m < SG + 14 * SS and (m - SG) % SS == 0 and 'L' not in X: ldS((m - SG) // SS, (m - SG) // SS + 1)
        if PFS and m == PG: assert len(Q) <= nq0 - npf
        if PFS and m >= PG and (m - PG) % PD == 0 and (m - PG) // PD < PFS + 2: pf((m - PG) // PD)
        if P_ and mm == 1: split_cs(P_ - 1); bud -= 5
        used = sum((1 if x.text() else 0) if isinstance(x, Wait) else (DC if 'buffer' in x else 1) for x in a.L[L0:])
        credit = pop(max(credit, -CR) + TOT - used, m)
        if j % 2 == 0 and t == 0 and 'c' not in X:
            a(f"v_mfma_f32_16x16x32_bf16 {V(cs[P_%2],4)}, {V(sel,4)}, {A(Wf[m%8],4)}, {V(cs[P_%2],4) if q else 0}"); credit = pop(credit + C16, m)
        if P_ == 0 and t == 0 and 's' not in X: a(f"v_mfma_f32_16x16x32_bf16 {V(sx,4)}, {V(sel,4)}, {A(xf[q],4)}, {V(sx,4) if q else 0}")
        if P_ == 0 and t == 1 and 'q' not in X:
            for r in range(2): a(f"v_mfma_f32_4x4x4_16b_bf16 {V(sq[r],4)}, {A(xf[q]+2*r,2)}, {A(xf[q]+2*r,2)}, {V(sq[r],4) if q else 0}")
        if P_ and mm in (FG, FG + 1):
            assert len(Q) <= nq0 - nxe
            a("s_nop 1"); fold(P_ - 1, mm - FG); credit = pop(credit + 5, m)
        if m == 79: stamp(a, 2)
        if m in ST: stamp(a, 7 + ST.index(m))
        if m == 159: stamp(a, 3)
        if m == 239: stamp(a, 4)
    print("k1 filler left", sum(c for c, _, _ in Q)); assert not DQ
    stamp(a, 5)
    a("s_nop 3"); split_cs(3); wrC(3)
    pop(1e9, 999)
    a.need(lg=[('cw', 3)]); a("s_barrier"); rdE(3)
    a(f"""v_and_b32 v{T}, 19, v{ln}
    v_bfe_u32 v{T+1}, v{ln}, 2, 1
    v_bfe_u32 v{T+2}, v{ln}, 3, 1
    v_lshl_add_u32 v{T}, v{T+1}, 3, v{T}
    v_lshl_add_u32 v{T}, v{T+2}, 2, v{T}
    s_sub_u32 s{t1}, s{scg}, 5
    s_lshl_b32 s{t1}, s{t1}, 1
    s_add_u32 s{t1}, s{t1}, s{b0}
    s_lshl_b32 s{t1}, s{t1}, 5
    v_add_u32 v{T}, s{t1}, v{T}
    v_lshrrev_b32 v{T+1}, 5, v{ln}
    v_mul_u32_u24 v{T+1}, 320, v{T+1}
    s_mul_i32 s{t1}, s{sblk}, 1280
    s_add_u32 s{t1}, s{t1}, {WS_VT}
    v_add_u32 v{T+1}, s{t1}, v{T+1}
    v_mov_b32 v{c1}, v{rr}
    v_mov_b32 v{c2}, v{rr}""")
    assert c1 % 2 == 0 and c2 == c1 + 1
    a.need(lg=[('we', 3)])
    for t in range(2): fold(3, t)
    for t in range(2):
        a(f"""v_xor_b32 v{T+2}, {32*t}, v{T}
        v_mul_u32_u24 v{T+3}, 52429, v{T+2}
        v_lshrrev_b32 v{T+3}, 20, v{T+3}
        v_mul_u32_u24 v{T+3}, {81920-320}, v{T+3}
        v_lshl_add_u32 v{T+2}, v{T+2}, 4, v{T+3}
        v_add_u32 v{T+6+t}, v{T+2}, v{T+1}""")
    def scale(t, r):
        d = acc[6 + t]
        for i in range(4): a(f"v_pk_mul_f32 {V(d+8*r+2*i,2)}, {V(d+8*r+2*i,2)}, {V(c1,2)}")
        for i in range(4): a(f"v_cvt_pk_bf16_f32 v{d+4*r+i}, v{d+8*r+2*i}, v{d+8*r+2*i+1}")
    a(f"s_mov_b32 s{t1}, {15*4096}\ns_cmp_ge_u32 s{scg}, 5\ns_cbranch_scc1 {N}_v")
    for t in range(2):
        for r in range(2): scale(t, r); st4(acc[6 + t] + 4 * r, T + 4 + t, f"s{t1}", 1024 * r)
    a(f"s_branch {N}_fin\n{N}_v:")
    for t in range(2):
        for r in range(2): scale(t, r); trw(acc[6 + t], t, r)
    for t in range(2): trr(acc[6 + t] + 8, t)
    for t in range(2):
        a.need(lg=[('tr', t)])
        for r in range(2): st4(acc[6 + t] + 8 + 4 * r, T + 6 + t, 0, 640 * r)
    a(f"{N}_fin:")
    stamp(a, 6); a("s_waitcnt vmcnt(0)"); stamp_out(a, 1, 10); a("s_endpgm")
    a.vm = []; a.lg = []
    a(f"""{N}_side:
    s_lshl_b32 s{sblk}, s{srb}, 2
    s_add_u32 s{sblk}, s{sblk}, s{sw}
    s_lshl_b32 s{t0}, s{sblk}, 12
    s_add_u32 s{t0}, s{t0}, {WS_ST}
    s_lshl_b32 s{sblk}, s{sblk}, 2
    v_mov_b32 v{T+4}, -1
    v_mov_b32 v{T+5}, -1
    v_mov_b32 v{T+6}, -1
    v_mov_b32 v{T+7}, -1
    v_mov_b32 v{T+8}, 15
    v_mov_b32 v{T+9}, s{sblk}
    s_waitcnt lgkmcnt(0)""")
    srd(a, rS, pWS, f"s{t0}", 4096); srd(a, rD, pD, 0, 256)
    for i in range(4): a(f"buffer_store_dwordx4 {V(T+4,4)}, v{l16}, {S(rS,4)}, 0 offen offset:{1024*i} sc0 sc1")
    a(f"""s_mul_i32 s{mX}, s{sw}, 10240
    v_add_u32 v{T}, s{mX}, v{l16}
    s_mul_i32 s{srb}, s{srb}, 3""")
    srd(a, rS, pWS, WS_WT, 8 * 47 * 5120)
    for kk in range(3):
        a(f"""s_add_u32 s{t0}, s{srb}, {kk}
        s_sub_u32 s{t1}, s{t0}, 20
        s_cmp_lt_u32 s{t0}, 20
        s_cselect_b32 s{t1}, s{t0}, s{t1}
        s_cselect_b32 s{t2}, s{pWo}, s{pWout}
        s_cselect_b32 s{t3}, s{pWo+1}, s{pWout+1}
        s_mul_i32 s{t1}, s{t1}, 40960
        s_add_u32 s{rX}, s{t2}, s{t1}
        s_addc_u32 s{rX+1}, s{t3}, 0
        s_cmp_lt_u32 s{t0}, 47
        s_cselect_b32 s{rX+2}, 40960, 0
        s_mov_b32 s{rX+3}, 0x20000""")
        for i in range(10):
            if i % 4 == 0: a(f"s_add_u32 m0, s{mX}, {kk*40960 + i*1024}\ns_mov_b32 s{oX}, {i*1024}")
            a(f"buffer_load_dwordx4 v{T}, {S(rX,4)}, s{oX} offen offset:{i%4*1024} lds")
        if kk == 0: a(f"s_waitcnt vmcnt(10)\nbuffer_store_dword v{T+8}, v{T+9}, {S(rD,4)}, 0 offen sc0 sc1")
    a(f"""v_lshrrev_b32 v{T+1}, 4, v{ln}
    v_bfe_u32 v{T+2}, v{ln}, 2, 2
    v_lshl_add_u32 v{T+1}, v{T+1}, 3, v{T+2}
    v_mul_u32_u24 v{T+1}, 1280, v{T+1}
    v_and_b32 v{T+2}, 3, v{ln}
    v_mul_u32_u24 v{T+2}, 40, v{T+2}
    s_mul_i32 s{t0}, s{sw}, 320
    v_add3_u32 v{T+1}, v{T+1}, v{T+2}, s{t0}""")
    for kk in range(3):
        a(f"s_waitcnt vmcnt({(21, 20, 20)[kk]})\ns_barrier")
        for c in range(2):
            for nt in range(5):
                for h in range(2): a(f"ds_read_b64_tr_b16 {V(acc[0]+40*kk+20*c+4*nt+2*h,2)}, v{T+1} offset:{160*c + 8*nt + 5120*h}")
        a(f"v_add_u32 v{T+1}, 40960, v{T+1}")
        a(f"""s_add_u32 s{t0}, s{srb}, {kk}
        s_cmp_lt_u32 s{t0}, 47
        s_cselect_b32 s{rS+2}, s{rS+2}, 0
        s_mul_i32 s{t1}, s{sw}, 94
        s_add_u32 s{t0}, s{t0}, s{t1}
        s_mul_i32 s{t0}, s{t0}, 5120
        s_waitcnt lgkmcnt(0)""")
        for c in range(2):
            for nt in range(5):
                a(f"s_add_u32 s{t1}, s{t0}, {c*47*5120 + nt*1024}\nbuffer_store_dwordx4 {V(acc[0]+40*kk+20*c+4*nt,4)}, v{l16}, {S(rS,4)}, s{t1} offen{WT}")
    NP = int(os.environ.get('NP', '2'))
    if NP:
        a(f"""s_lshr_b32 s{t0}, s{sblk}, 4
        s_lshl_b32 s{t1}, s{t0}, 19
        s_mul_i32 s{t0}, s{sblk}, 10240
        s_add_u32 s{t0}, s{t0}, {WS_O + 1024}
        v_lshrrev_b32 v{T}, 1, v0
        v_and_b32 v{T+1}, 1, v0
        v_lshlrev_b32 v{T}, 12, v{T}
        v_lshl_add_u32 v{T}, v{T+1}, 7, v{T}
        v_add_u32 v{T}, s{t1}, v{T}
        v_lshrrev_b32 v{T+1}, 2, v{ln}
        v_and_b32 v{T+2}, 3, v{ln}
        v_mul_u32_u24 v{T+1}, 2560, v{T+1}
        v_lshl_add_u32 v{T+1}, v{T+2}, 7, v{T+1}
        v_add_u32 v{T+1}, s{t0}, v{T+1}
        s_lshl_b32 s{t0}, s{sblk}, 7
        v_lshl_add_u32 v{T+2}, v{T+2}, 7, s{t0}
        v_min_u32 v{T+3}, k3_end-k2_kernel, v{T+2}
        v_add_u32 v{T+3}, k2_kernel-k1_pc, v{T+3}
        v_and_b32 v{T+2}, 0xf80, v{T+2}
        global_load_dword v255, v{T+3}, s[96:97]
        global_load_dword v255, v{T+2}, {S(pB,2)}""")
        for i in range(NP):
            a(f"global_load_dword v255, v{T}, {S(pSp,2)} offset:{256*i}")
            if i == min(NP - 1, 2): a(f"global_load_dword v255, v{T+1}, {S(pWS,2)}")
    stamp(a, 1); a("s_waitcnt vmcnt(0)")
    for i in range(2, 10): stamp(a, i)
    stamp_out(a, 1, 10)
    a(f"{N}_end:\ns_endpgm")
    return a
```

```python
from asm import *
KVB, ONES, FLAG = 65536, 114688, 114688 + 5120
LDS2 = FLAG + 64
X = os.environ.get('X2', ''); PFW = int(os.environ.get('PFW', '0')); PFO = int(os.environ.get('PFO', '0')); RM = int(os.environ.get('RM', '0')); ZL = int(os.environ.get('ZL', '12'))
def k2():
    a = Asm(); N = "k2"
    head(a, N); stamp0(a)
    pW, pB, pWS, oE = [a.sg(2) for _ in range(4)]; rP = a.sg(4); gP = a.v(2)
    a(f"""s_load_dwordx2 {S(pW,2)}, s[0:1], 40
    s_load_dwordx2 {S(pB,2)}, s[0:1], 48
    s_load_dwordx2 {S(pWS,2)}, s[0:1], 80""")
    rW, rKV, rZ, rE, rO, rB = [a.sg(4) for _ in range(6)]
    sw, shd, sqg, sfb, sodd, sm5, t0, t1, t2, oW, oKV, oZ, incKV, mW, mKV, cnt, retry, szW, szZ, szE = [a.sg() for _ in range(20)]
    SB = [a.v(16), a.v(16)]; O = [a.v(16), a.v(16)]; G = [a.v(16), a.v(16)]
    Qm = [a.v(4), a.v(4)]; Qr = [a.v(2), a.v(2)]
    Km = [a.v(4), a.v(4)]; Kr = [a.v(2), a.v(2)]
    V1 = [a.v(4), a.v(4)]; V2 = [a.v(4), a.v(4)]; W0 = [a.v(4), a.v(4)]; W1 = [a.v(4), a.v(4)]
    Z1 = [a.v(8), a.v(8)]; bs = [a.v(), a.v()]
    aW = [a.v() for _ in range(8)]; aKm = a.v(); aKr = [a.v() for _ in range(4)]; aV = [a.v() for _ in range(4)]
    gW = [a.v() for _ in range(4)]; gKV = [a.v() for _ in range(3)]; gZ = a.v(); gQm, gQr, gE, gOm, gOr = [a.v() for _ in range(5)]
    idx, ln, l31, hf = [a.v() for _ in range(4)]; T = a.v(8, 4)
    Z = [a.a(4) for _ in range(16)]
    a(f"""v_lshrrev_b32 v{T}, 6, v0
    v_and_b32 v{ln}, 63, v0
    v_readfirstlane_b32 s{sw}, v{T}
    s_and_b32 s{t0}, s2, 7
    s_lshr_b32 s{t1}, s2, 6
    s_lshl_b32 s{t0}, s{t0}, 2
    s_add_u32 s{shd}, s{t0}, s{t1}
    s_bfe_u32 s{sqg}, s2, 0x30003
    s_lshl_b32 s{sfb}, s{sqg}, 2
    s_add_u32 s{sfb}, s{sfb}, s{sw}
    s_and_b32 s{sodd}, s{shd}, 1
    s_lshr_b32 s{sm5}, s{shd}, 1
    s_mul_i32 s{sm5}, s{sm5}, 2560
    s_mov_b32 s{retry}, 0
    v_and_b32 v{l31}, 31, v0
    v_bfe_u32 v{hf}, v0, 5, 1
    v_mov_b32 v{idx}, 0xdddddddd
    s_cmp_lt_u32 s{sqg}, 7
    s_cselect_b32 s{szW}, {64*4096}, 0
    s_cmp_lt_u32 s{sfb}, 27
    s_cselect_b32 s{szZ}, 0x20000, 0
    s_cselect_b32 s{szE}, {WS_WT}, 0
    s_lshl_b32 s{mW}, s{sw}, 12
    s_mul_i32 s{mKV}, s{sw}, 3072
    s_add_u32 s{mKV}, s{mKV}, {KVB}
    s_mov_b32 s{incKV}, 5120
    s_cmp_lt_u32 s{sw}, 2
    s_cselect_b32 s{incKV}, 327680, s{incKV}
    s_lshl_b32 s{t0}, s{shd}, 18
    s_lshl_b32 s{t1}, s{sfb}, 17
    s_add_u32 s{t1}, s{t1}, {WS_Z2}
    s_waitcnt lgkmcnt(0)""")
    srd(a, rW, pW, f"s{t0}", f"s{szW}"); srd(a, rKV, pWS, 0, WS_Z1); srd(a, rZ, pWS, f"s{t1}", f"s{szZ}")
    srd(a, rE, pWS, 0, f"s{szE}"); srd(a, rO, pWS, WS_O, 2621440); srd(a, rB, pB, 0, 4096)
    a(f"""s_lshl_b32 s{t0}, s{sqg}, 2
    s_add_u32 s{t0}, s{t0}, s{sw}
    s_mul_i32 s{t1}, s{t0}, 163840
    s_add_u32 s{t1}, s{t1}, s{sm5}
    s_mul_i32 s{t2}, s{sodd}, 1536
    s_add_u32 s{t2}, s{t2}, s{t1}
    v_lshlrev_b32 v{gZ}, 4, v{ln}
    v_add_u32 v{gQm}, s{t2}, v{gZ}
    s_lshl_b32 s{t2}, s{sodd}, 3
    s_add_u32 s{t2}, s{t2}, s{t1}
    s_add_u32 s{t2}, s{t2}, 1024
    v_add_u32 v{gQr}, s{t2}, v{gZ}
    v_mov_b32 v{T}, {OOB}
    v_cmp_gt_u32 vcc, 32, v{ln}
    s_mov_b32 s{t2}, 81920
    s_nop 0
    v_cndmask_b32 v{gQr}, v{T}, v{gQr}, vcc""")
    for q in range(2):
        so = f"s{t2}" if q else "0"
        a.vmem(f"buffer_load_dwordx4 {V(Qm[q],4)}, v{gQm}, {S(rKV,4)}, {so} offen", ('Q', q))
        a.vmem(f"buffer_load_dwordx2 {V(Qr[q],2)}, v{gQr}, {S(rKV,4)}, {so} offen", ('Q', q))
    a(f"""s_mul_i32 s{t0}, s{t0}, 81920
    v_subrev_u32 v{gOm}, s{t0}, v{gQm}
    v_subrev_u32 v{gOr}, s{t0}, v{gQr}""")
    a(f"""s_mul_i32 s{t0}, s{sw}, 163840
    s_add_u32 s{t0}, s{t0}, s{sm5}
    s_lshl_b32 s{t1}, s{sodd}, 10
    s_add_u32 s{t0}, s{t0}, s{t1}
    s_add_u32 s{t0}, s{t0}, 40960
    s_mul_i32 s{t1}, s{shd}, 81920
    s_mul_i32 s{t2}, s{sw}, 3072
    s_add_u32 s{t1}, s{t1}, s{t2}
    s_add_u32 s{t1}, s{t1}, {WS_VT - 6144}
    s_cmp_lt_u32 s{sw}, 2
    s_cselect_b32 s{t0}, s{t0}, s{t1}
    s_cselect_b32 s{t1}, 80384, 0
    s_cmp_eq_u32 s{sw}, 3
    s_cselect_b32 s{t2}, {OOB}, s{t1}
    v_add_u32 v{gKV[0]}, s{t0}, v{gZ}
    v_mul_lo_u32 v{T}, v{hf}, s{t1}
    v_add_u32 v{gKV[2]}, s{t2}, v{gKV[0]}
    v_add_u32 v{gKV[1]}, v{T}, v{gKV[0]}""")
    a(f"s_mov_b32 s{sm5}, 40960")
    a(f"""v_lshrrev_b32 v{T}, 4, v{ln}
    v_and_b32 v{T+1}, 15, v{ln}
    s_lshl_b32 s{t0}, s{sw}, 16""")
    for i in range(4):
        a(f"""v_add_u32 v{T+2}, {4*i}, v{T}
        v_xor_b32 v{T+3}, v{T+1}, v{T+2}
        v_lshlrev_b32 v{T+2}, 12, v{T+2}
        v_lshl_add_u32 v{T+2}, v{T+3}, 4, v{T+2}
        v_add_u32 v{gW[i]}, s{t0}, v{T+2}""")
        if i: a(f"v_subrev_u32 v{gW[i]}, {1024*i}, v{gW[i]}")
    def dmaW(i, st): 'D' in X or a.vmem(f"buffer_load_dwordx4 v{gW[i]}, {S(rW,4)}, s{oW} offen offset:{1024*i} lds", ('D', st))
    def dmaKV(i, st): 'd' in X or a.vmem(f"buffer_load_dwordx4 v{gKV[i]}, {S(rKV,4)}, s{oKV} offen offset:{1024*i} lds", ('D', st))
    def ldZ(n): 'Z' in X or a.vmem(f"buffer_load_dwordx4 {A(Z[n%16],4)}, v{gZ}, {S(rZ,4)}, s{oZ} offen offset:{(n%4)*1024}", ('Z', n))
    a(f"""{N}_restart:
    s_and_b32 s{oW}, s2, {RM}
    s_lshl_b32 s{oZ}, s{oW}, 14
    s_lshl_b32 s{oW}, s{oW}, 9
    s_mov_b32 s{oKV}, 0
    s_mov_b32 m0, s{mKV}
    s_mov_b32 s{cnt}, 0""")
    for i in range(3): dmaKV(i, 0)
    a(f"s_mov_b32 m0, s{mW}\ns_lshl_b32 s{t0}, s{shd}, 7")
    for i in range(4): dmaW(i, 0)
    a(f"v_lshl_add_u32 v{T}, v{l31}, 1, s{t0}")
    ldZ(0); ldZ(1)
    for tb in range(2): a.vmem(f"buffer_load_ushort v{bs[tb]}, v{T}, {S(rB,4)}, 0 offen offset:{64*tb}", 'b')
    a(f"s_add_u32 s{oKV}, s{oKV}, s{incKV}\ns_add_u32 m0, s{mKV}, 12288\ns_add_u32 s{oW}, s{oW}, 256")
    for i in range(3): dmaKV(i, 1)
    a(f"s_add_u32 m0, s{mW}, 16384\ns_nop 0")
    for i in range(4): dmaW(i, 1)
    for n in range(2, ZL):
        if n % 4 == 0: a(f"s_add_u32 s{oZ}, s{oZ}, 4096")
        ldZ(n)
    a(f"s_add_u32 m0, s{mW}, 32768\ns_add_u32 s{oW}, s{oW}, 256\ns_bitset0_b32 s{oW}, 12")
    dmaW(0, 2); dmaW(1, 2)
    a(f"""s_mul_i32 s{t0}, s{shd}, {2*55296}
    s_lshl_b32 s{t1}, s{sfb}, 11
    s_add_u32 s{t0}, s{t0}, s{t1}
    v_add_u32 v{gE}, s{t0}, v{gZ}
    s_mov_b32 s{oE}, {WS_Z1}
    s_mov_b32 s{oE+1}, {WS_Z1 + 55296}
    s_lshr_b32 s{t0}, s2, 3
    s_lshl_b32 s{t0}, s{t0}, 2
    s_add_u32 s{t0}, s{t0}, s{sw}
    s_mul_i32 s{t0}, s{t0}, 15040
    s_and_b32 s{t0}, s{t0}, 0xffffff80
    s_add_u32 s{t0}, s{t0}, {WS_WT}
    v_lshlrev_b32 v{gP}, 7, v{ln}
    v_add_u32 v{gP+1}, 8192, v{gP}
    v_min_u32 v254, k3_end-k3_kernel, v253
    v_add_u32 v254, k3_kernel-k2_pc, v254""")
    srd(a, rP, pWS, f"s{t0}", 0)
    def ldE(tb, r): a.vmem(f"buffer_load_dwordx4 {V(Z1[tb]+4*r,4)}, v{gE}, {S(rE,4)}, s{oE+tb} offen offset:{1024*r}", 'z1')
    a(f"v_and_b32 v{T+1}, 15, v{ln}\nv_lshlrev_b32 v{T+2}, 8, v{l31}")
    for j in range(8):
        a(f"""v_add_u32 v{T}, {2*j}, v{hf}
        v_xor_b32 v{T}, v{T}, v{T+1}
        v_lshl_add_u32 v{aW[j]}, v{T}, 4, v{T+2}""")
    a(f"""s_lshl_b32 s{t0}, s{sodd}, 9
    s_add_u32 s{t0}, s{t0}, {KVB}
    v_add_u32 v{aKm}, s{t0}, v{gZ}
    s_cmp_eq_u32 s{sodd}, 0
    s_cselect_b32 s{t0}, 1024, 8
    s_cselect_b32 s{t1}, 0, 4
    s_cselect_b32 s{t2}, 0, 16
    s_add_u32 s{t0}, s{t0}, {KVB}
    v_cmp_gt_u32 vcc, 32, v{ln}
    v_mov_b32 v{T+4}, {ONES}
    v_add_u32 v{T}, s{t0}, v{gZ}""")
    for s in range(4):
        a(f"v_cndmask_b32 v{aKr[s]}, v{T+4}, v{T}, vcc")
        if s < 3: a(f"v_add_u32 v{T}, 12288, v{T}")
    a(f"""v_and_b32 v{T}, 3, v{l31}
    v_bfe_u32 v{T+1}, v{l31}, 2, 1
    v_bfe_u32 v{T+2}, v{l31}, 3, 1
    v_lshl_add_u32 v{T}, v{T+1}, 3, v{T}
    v_lshl_add_u32 v{T}, v{T+2}, 2, v{T}
    v_add_u32 v{T}, s{t1}, v{T}
    v_subrev_u32 v{T+1}, s{t2}, v{l31}
    v_cmp_gt_u32 vcc, 16, v{l31}
    v_mul_u32_u24 v{T+2}, 320, v{hf}
    v_add_u32 v{T+2}, {KVB+6144}, v{T+2}
    v_cndmask_b32 v{T}, v{T+1}, v{T}, vcc
    v_cmp_gt_u32 vcc, 20, v{l31}
    v_lshl_add_u32 v{T}, v{T}, 4, v{T+2}
    s_nop 0""")
    for s in range(4):
        a(f"v_cndmask_b32 v{aV[s]}, v{T+4}, v{T}, vcc")
        if s < 3: a(f"v_add_u32 v{T}, 12288, v{T}")
    for i in range(4): a(f"v_mov_b32 v{T+i}, {0 if '0' in X else 0x3f803f80}")
    a(f"v_lshl_add_u32 v{T+4}, v0, 4, v{T+4}\nv_mov_b32 v{T+5}, {FLAG}\nv_mov_b32 v{T+6}, 0")
    a.ds(f"ds_write_b128 v{T+4}, {V(T,4)}"); a.ds(f"ds_write_b128 v{T+4}, {V(T,4)} offset:1024"); a.ds(f"ds_write_b32 v{T+5}, v{T+6}")
    for r in list(range(O[0], O[0]+16)) + list(range(O[1], O[1]+16)) + list(range(SB[1]+8, SB[1]+16)) + list(range(V2[1], V2[1]+4)) + list(range(W1[1], W1[1]+4)):
        a(f"v_mov_b32 v{r}, 0")
    for i in range(4): a(f"v_accvgpr_write_b32 a{Z[15]+i}, 0")
    stamp(a, 6); a.need(vm=['b']); stamp(a, 7)
    for tb in range(2):
        a(f"v_lshlrev_b32 v{G[tb]}, 16, v{bs[tb]}")
        for i in range(1, 16): a(f"v_mov_b32 v{G[tb]+i}, v{G[tb]}")
    a.drain(vm=False)
    a("s_barrier"); stamp(a, 1); stamp(a, 4, 1); a("s_waitcnt lgkmcnt(0)" if PROF else "")
    def rdKm(kb): 'K' in X or a.ds(f"ds_read_b128 {V(Km[kb%2],4)}, v{aKm} offset:{(kb//4%4)*12288 + kb%4*1536}", ('Km', kb))
    def rdKr(kb): 'K' in X or a.ds(f"ds_read_b64 {V(Kr[kb%2],2)}, v{aKr[kb//4%4]} offset:{kb%4*1536}", ('Kr', kb))
    def rdV(h, kb): 'V' in X or a.ds(f"ds_read_b128 {V((V1,V2)[h][kb%2],4)}, v{aV[kb//4%4]} offset:{kb%4*1280 + 640*h}", ('V', h, kb))
    def rdW(tb, n): 'W' in X or a.ds(f"ds_read_b128 {V((W0,W1)[tb][n%2],4)}, v{aW[n%8]} offset:{(n//8%4)*16384 + 8192*tb}", ('W', tb, n))
    def mM(n): 'M' in X or a(f"v_mfma_f32_32x32x16_bf16 {V(SB[n%2],16)}, {V(Km[n//2%2],4)}, {V(Qm[n%2],4)}, 0")
    def mm(n): 'm' in X or a(f"v_mfma_f32_32x32x8_bf16 {V(SB[n%2],16)}, {V(Kr[n//2%2],2)}, {V(Qr[n%2],2)}, {V(SB[n%2],16)}")
    def mS(h, n): 'S' in X or a(f"v_smfmac_f32_32x32x32_bf16 {V(O[n%2],16)}, {V((V1,V2)[h][n//2%2],4)}, {V(SB[n%2]+8*h,8)}, v{idx}")
    def mG(tb, n): 'G' in X or a(f"v_mfma_f32_32x32x16_bf16 {V(G[tb],16)}, {A(Z[n%16],4)}, {V((W0,W1)[tb][n%2],4)}, {V(G[tb],16)}")
    rdKm(0); rdKr(0); rdW(0, 0); rdV(0, 0); rdV(1, 0)
    a.need(lg=[('Kr', 0)])
    mM(0); a("s_nop 1"); mm(0); a("s_nop 7\ns_nop 3")
    a(f"{N}_loop:")
    def body(it):
        for t in range(32):
            n = it * 32 + t; kb = n // 2; st = n // 8; tt = t % 8; ev = t % 2 == 0
            ex = lambda lo, hi: [a(f"v_exp_f32 v{SB[n%2]+i}, v{SB[n%2]+i}") for i in range(lo, hi) if 'E' not in X]
            sF, sA, sC, sE = [], [], [], []
            if tt == 5: sF.append(f"s_add_u32 s{oW}, s{oW}, 256"); sC.append(f"s_add_u32 m0, s{mW}, {(st+3)%4*16384}")
            if tt == 2: sA.append(f"s_add_u32 s{oKV}, s{oKV}, s{incKV}"); sC.append(f"s_add_u32 m0, s{mKV}, {(st+2)%4*12288}")
            if tt == 5 and st % 2: sA.append(f"s_bitset0_b32 s{oW}, 12")
            if (n + ZL) % 4 == 0: sF.append(f"s_add_u32 s{oZ}, s{oZ}, 4096")
            if (n + ZL) % 16 == 0: sA.append(f"s_bitset0_b32 s{oZ}, 17")
            cmp3 = f"s_cmp_eq_u32 s{cnt}, 3"
            if t == 0: sA.append(cmp3); sC.append(f"s_cselect_b32 s{rE+2}, s{szE}, 0"); sE.append(f"s_cselect_b32 s{rP+2}, {PFW*16384}, 0")
            if t == 12: sA.append(cmp3); sC.append(f"s_cselect_b32 s{rW+2}, 0, s{rW+2}")
            if t == 16: sA.append(cmp3); sC.append(f"s_cselect_b32 s{rKV+2}, 0, s{rKV+2}")
            if t == 31 - ZL: sF.append(cmp3); sC.append(f"s_cselect_b32 s{rZ+2}, 0, s{rZ+2}")
            if t == 28: sA.append(f"s_add_u32 s{cnt}, s{cnt}, 1")
            if t == 31: sC.append(f"s_cmp_lt_u32 s{cnt}, 4")
            mG(1, n - 1); a.need(lg=[('V', 1, (n - 1) // 2)]); [a(x) for x in sF]
            rdW(1, n); ex(0, 3)
            mS(1, n - 1); a.need(lg=[('Km', (n + 1) // 2)], vm=[('D', st + 1)] if tt == 6 else []); [a(x) for x in sA]
            if tt == 6 and 'B' not in X: a("s_barrier")
            ldZ(n + ZL); ex(3, 5)
            mM(n + 1); a.need(lg=[('W', 0, n)], vm=[('Z', n)])
            if ev: rdKm(kb + 1); rdKr(kb + 1)
            else: rdV(0, kb + 1); rdV(1, kb + 1)
            ex(5, 7)
            mG(0, n); a.need(lg=[('V', 0, kb), ('Kr', (n + 1) // 2)]); [a(x) for x in sC]
            rdW(0, n + 1); ex(7, 10)
            mm(n + 1); ex(10, 14)
            mS(0, n); a.need(lg=[('W', 1, n)]); [a(x) for x in sE]
            if tt >= 6: dmaW(tt - 6, st + 3)
            elif tt < 2: dmaW(tt + 2, st + 2)
            elif tt < 5: dmaKV(tt - 2, st + 2)
            elif t < 16: ldE(t // 8, 0); ldE(t // 8, 1)
            elif t == 21:
                for i in range(2): a.vmem(f"buffer_load_dword v255, v{gP+i}, {S(rP,4)}, 0 offen" if not PFO else f"buffer_load_dword v255, v{gOr}, {S(rO,4)}, {f's{sm5}' if i else 0} offen", 'pf')
            else: a.vmem(f"global_load_dword v255, v254, s[96:97]", 'pf')
            ex(14, 16)
        a(f"s_cbranch_scc1 {N}_loop")
    a.loop(body, 3)
    mG(1, 127); a("s_nop 0"); mS(1, 127); stamp(a, 2); stamp(a, 5, 1)
    U = [SB[0], V1[0]]
    a(f"s_mov_b32 s{t0}, 0x2b800000\ns_mov_b32 s{t1}, 0x53800000\ns_mov_b32 s{t2}, 0xffff0000")
    def unpack(tb, d):
        for i in range(8): a(f"v_lshlrev_b32 v{d+2*i}, 16, v{Z1[tb]+i}\nv_and_b32 v{d+2*i+1}, s{t2}, v{Z1[tb]+i}")
    a.need(vm=['z1']); a.lg = []; a("s_waitcnt lgkmcnt(0)")
    unpack(0, SB[0])
    sA, sB = a.sg(2), a.sg(2)
    a(f"""v_cmp_le_f32 vcc, s{t0}, v{O[0]+12}
    v_cmp_ge_f32 {S(sA,2)}, s{t1}, v{O[0]+12}
    s_and_b64 {S(sB,2)}, vcc, {S(sA,2)}
    v_cmp_le_f32 vcc, s{t0}, v{O[1]+12}
    v_cmp_ge_f32 {S(sA,2)}, s{t1}, v{O[1]+12}
    s_and_b64 {S(sB,2)}, vcc, {S(sB,2)}
    s_and_b64 {S(sB,2)}, {S(sA,2)}, {S(sB,2)}
    v_mov_b32 v{T+5}, {FLAG}
    s_cmp_eq_u64 {S(sB,2)}, -1
    s_cbranch_scc1 {N}_ok
    ds_write_b32 v{T+5}, v{T+5}
    s_waitcnt lgkmcnt(0)
    {N}_ok:
    s_barrier
    ds_read_b32 v{T+6}, v{T+5}""")
    unpack(1, SB[1])
    a(f"s_mov_b32 s{t0}, {WS_H}\ns_mov_b32 s{t1}, {WS_H + 55296}")
    for tb in range(2):
        for i in range(8): a(f"v_pk_mul_f32 {V(G[tb]+2*i,2)}, {V(G[tb]+2*i,2)}, {V(SB[tb]+2*i,2)}")
        for i in range(8): a(f"v_cvt_pk_bf16_f32 v{SB[tb]+i}, v{G[tb]+2*i}, v{G[tb]+2*i+1}")
        for r in range(2): a(f"buffer_store_dwordx4 {V(SB[tb]+4*r,4)}, v{gE}, {S(rE,4)}, s{t0+tb} offen offset:{1024*r}{WT}")
    a(f"""s_waitcnt lgkmcnt(0)
    v_readfirstlane_b32 s{t2}, v{T+6}
    s_mov_b32 s{t0}, 40960
    s_andn2_b32 s{t2}, s{t2}, s{retry}
    {'s_nop 0 ;' if X else ''}s_cbranch_scc1 {N}_fall""")
    for q in range(2):
        a(f"v_rcp_f32 v{T}, v{O[q]+12}\ns_nop 0")
        for i in range(12): a(f"v_mul_f32 v{O[q]+i}, v{O[q]+i}, v{T}")
        for i in range(6): a(f"v_cvt_pk_bf16_f32 v{G[q]+i}, v{O[q]+2*i}, v{O[q]+2*i+1}")
        so = f"s{t0}" if q else "0"
        a(f"buffer_store_dwordx4 {V(G[q],4)}, v{gOm}, {S(rO,4)}, {so} offen{WT}\nbuffer_store_dwordx2 {V(G[q]+4,2)}, v{gOr}, {S(rO,4)}, {so} offen{WT}")
    stamp(a, 3); a("s_waitcnt vmcnt(0)"); stamp_out(a, 2, 8); a("s_endpgm")
    mx = [G[0], G[0] + 1]; gK, gKr = G[0] + 2, G[0] + 3
    a(f"""{N}_fall:
    s_waitcnt vmcnt(0)
    s_mov_b32 s{retry}, -1
    s_mov_b32 s{rW+2}, s{szW}
    s_mov_b32 s{rKV+2}, {WS_Z1}
    s_mov_b32 s{rZ+2}, s{szZ}
    s_lshl_b32 s{t0}, s{sqg}, 2
    s_add_u32 s{t0}, s{t0}, s{sw}
    s_mul_i32 s{t0}, s{t0}, 163840
    v_subrev_u32 v{gK}, s{t0}, v{gQm}
    v_subrev_u32 v{gKr}, s{t0}, v{gQr}
    v_mov_b32 v{mx[0]}, 0xff800000
    v_mov_b32 v{mx[1]}, 0xff800000
    s_mov_b32 s{t0}, 40960
    {N}_fl:
    buffer_load_dwordx4 {V(Km[0],4)}, v{gK}, {S(rKV,4)}, s{t0} offen
    buffer_load_dwordx2 {V(Kr[0],2)}, v{gKr}, {S(rKV,4)}, s{t0} offen
    s_waitcnt vmcnt(0)""")
    mM(0); mM(1); mm(0); mm(1); a("s_nop 7\ns_nop 7")
    for q in range(2):
        for i in range(8): a(f"v_max3_f32 v{mx[q]}, v{SB[q]+2*i}, v{SB[q]+2*i+1}, v{mx[q]}")
    a(f"""s_add_u32 s{t0}, s{t0}, 81920
    s_cmp_lt_u32 s{t0}, {64*81920}
    s_cbranch_scc1 {N}_fl
    v_cmp_gt_u32 vcc, 32, v{ln}
    s_mov_b32 s{t2}, 0xffff0000""")
    for q in range(2):
        a(f"""v_mov_b32 v{T}, v{mx[q]}
        s_nop 1
        v_permlane32_swap_b32 v{T}, v{mx[q]}
        s_nop 1
        v_max_f32 v{T}, v{T}, v{mx[q]}
        v_sub_f32 v{T}, 0, v{T}
        v_and_b32 v{T+1}, s{t2}, v{T}
        v_sub_f32 v{T}, v{T}, v{T+1}
        v_and_b32 v{T+2}, s{t2}, v{T}
        v_sub_f32 v{T}, v{T}, v{T+2}
        v_lshrrev_b32 v{T+1}, 16, v{T+1}
        v_or_b32 v{T+1}, v{T+1}, v{T+2}
        v_lshrrev_b32 v{T}, 16, v{T}
        v_cndmask_b32 v{Qr[q]}, v{T+1}, v{Qr[q]}, vcc
        v_cndmask_b32 v{Qr[q]+1}, v{T}, v{Qr[q]+1}, vcc""")
    a(f"s_barrier\ns_branch {N}_restart\n{N}_end:\ns_endpgm")
    return a
```

```python
from asm import *
import struct
LDS1 = 163840
XB = 98304
F = lambda x: hex(struct.unpack("<I", struct.pack("<f", x))[0])
PRE = int(os.environ.get("K1PRE", "4")); RATE = float(os.environ.get("RATE", "0.8")); BUD = float(os.environ.get("BUD", "4")); SG = int(os.environ.get("SG", "226"))
X = os.environ.get('X1', '')
PFM = int(os.environ.get('PFM', '0'))
ROT = eval(os.environ.get('ROT', '(2,1)')); NT = os.environ.get('NT', '')
ST = eval(os.environ.get('ST', '[]'))
SS = int(os.environ.get('SS', '2'))
STC = int(os.environ.get('STC', '6')); MB = int(os.environ.get('MB', '4'))
PFS = int(os.environ.get('PFS', '0')); PG = int(os.environ.get('PG', '254')); PD = int(os.environ.get('PD', '2'))
def k1():
    a = Asm(); N = "k1"
    head(a, N, 2); stamp0(a)
    pX, pQ, pI, pD, pWS, pWo, pWout, pSp, pB = [a.sg(2) for _ in range(9)]
    for p, o in ((pX, 0), (pQ, 8), (pI, 32), (pD, 72), (pWS, 80), (pWo, 16), (pWout, 56), (pSp, 40), (pB, 48)): a(f"s_load_dwordx2 {S(p,2)}, s[0:1], {o}")
    rX, rWA, rWB, rS, rD = [a.sg(4) for _ in range(5)]
    sw, srb, scg, b0, b1, t0, t1, t2, t3, oX, oW, mX, mW, sblk, scs, spin, phi = [a.sg() for _ in range(17)]; kk = [phi] + [a.sg() for _ in range(4)]
    acc = [a.v(16) for _ in range(8)]
    aW = [[[a.v() for _ in range(4)] for jp in range(2)] for hh in range(2)]
    aX = [a.v() for _ in range(4)]; gX = [a.v() for _ in range(4)]; gW = [[a.v() for _ in range(4)] for ph in range(3)]
    sel = a.v(4); cs = [a.v(4), a.v(4)]; sx = a.v(4); sq = [a.v(4), a.v(4)]
    xe = a.v(2); we = [a.v(2) for _ in range(2)]; aCr = [a.v(), a.v()]
    ln, l16, c1, c2, ir, rr, s1, s2, gS, aC, aTw, aTr, gD, cq, aTw2, aTr2 = [a.v() for _ in range(16)]
    T = a.v(16, 4); P = a.v(14, 4)
    xf = [a.a(4) for _ in range(40)]; Wf = [a.a(4) for _ in range(8)]
    a(f"""v_lshrrev_b32 v{T}, 6, v0
    v_and_b32 v{ln}, 63, v0
    v_readfirstlane_b32 s{sw}, v{T}
    s_and_b32 s{t0}, s2, 1
    s_bfe_u32 s{t1}, s2, 0x30003
    s_lshl_b32 s{t0}, s{t0}, 3
    s_add_u32 s{srb}, s{t0}, s{t1}
    s_bfe_u32 s{t0}, s2, 0x20001
    s_lshr_b32 s{t1}, s2, 6
    s_lshl_b32 s{t0}, s{t0}, 2
    s_add_u32 s{scg}, s{t0}, s{t1}
    v_lshlrev_b32 v{l16}, 4, v{ln}
    s_cmp_eq_u32 s{scg}, 15
    s_cbranch_scc1 {N}_side
    s_and_b32 s{b0}, s{sw}, 1
    s_mov_b32 s{spin}, 0
    s_lshr_b32 s{b1}, s{sw}, 1
    s_lshl_b32 s{sblk}, s{srb}, 2
    s_add_u32 s{sblk}, s{sblk}, s{sw}
    s_mul_i32 s{t0}, s{sblk}, 40960
    s_lshl_b32 s{mX}, s{sw}, 14
    s_add_u32 s{mX}, s{mX}, {XB}
    s_lshl_b32 s{mW}, s{sw}, 12
    v_lshrrev_b32 v{T}, 3, v{ln}
    v_lshrrev_b32 v{T+1}, 4, v{ln}
    v_and_b32 v{T+2}, 7, v{ln}
    v_mul_u32_u24 v{T}, 1280, v{T}
    v_xor_b32 v{T+2}, v{T+2}, v{T+1}
    v_lshl_add_u32 v{gX[0]}, v{T+2}, 4, v{T}
    v_xor_b32 v{gX[1]}, 64, v{gX[0]}
    v_add_u32 v{gX[1]}, {10240-1024}, v{gX[1]}
    v_add_u32 v{gX[2]}, {20480-2048}, v{gX[0]}
    v_add_u32 v{gX[3]}, {20480-2048}, v{gX[1]}
    s_cmp_lt_u32 s{scg}, 14
    s_cselect_b32 s{t1}, {640*3456}, 0
    s_movk_i32 s{t3}, 3456
    s_waitcnt lgkmcnt(0)""")
    ST or stamp(a, 7)
    srd(a, rX, pX, f"s{t0}", 0 if 'x' in X else 40960); srd(a, rWA, pI, 0, 0 if 'w' in X else f"s{t1}"); srd(a, rWB, pQ, 0, 0 if 'b' in X else 640 * 3840)
    a(f"""v_bfe_u32 v{T+2}, v{ln}, 2, 2
    v_xor_b32 v{T+2}, v{T+2}, v{T+1}
    v_and_b32 v{T+3}, 3, v{ln}
    v_and_b32 v{T+4}, 1, v{T+2}
    v_lshlrev_b32 v{T+3}, 4, v{T+3}
    v_lshl_add_u32 v{T+3}, v{T+4}, 6, v{T+3}
    v_lshrrev_b32 v{T+2}, 1, v{T+2}
    s_lshl_b32 s{t0}, s{sw}, 4
    v_lshl_add_u32 v{T+1}, v{T+2}, 6, v{T+1}
    v_add_u32 v{T+1}, s{t0}, v{T+1}
    s_lshl_b32 s{t0}, s{scg}, 7
    v_add_u32 v{T+3}, s{t0}, v{T+3}
    s_cmp_eq_u32 s{scg}, 0
    s_cselect_b32 s{t2}, {OOB}, 0
    v_xor_b32 v{T+4}, 1, v{T+4}
    v_mul_lo_u32 v{T+4}, v{T+4}, s{t2}
    v_mad_u32_u24 v{gW[1][0]}, v{T+1}, s{t3}, v{T+3}
    v_add_u32 v{gW[0][0]}, v{gW[1][0]}, v{T+4}
    v_add_u32 v{gW[0][0]}, 1664, v{gW[0][0]}
    s_bfe_u32 s{t0}, s2, 0x30003
    s_lshr_b32 s{t1}, s2, 6
    s_mul_i32 s{t0}, s{t0}, {ROT[0]}
    s_mul_i32 s{t1}, s{t1}, {ROT[1]}
    s_add_u32 s{t0}, s{t0}, s{t1}
    s_mul_i32 s{t1}, s{t0}, 13108
    s_lshr_b32 s{t1}, s{t1}, 16
    s_mul_i32 s{t1}, s{t1}, 5
    s_sub_u32 s{phi}, s{t0}, s{t1}""")
    for i in range(1, 4): a(f"v_add_u32 v{gW[0][i]}, {i*(4*3456-1024)}, v{gW[0][0]}")
    DQ = sorted([(8 * u - 6.5, 'X', u, i) for u in range(10) for i in range(4)] + [(16 * g - 6, 'W', g, i) for g in range(20) for i in range(4)])
    rot = lambda g, o, mul: f"s_mul_i32 s{o}, s{kk[g]}, {mul}"
    def dma():
        _, k, g, i = DQ.pop(0)
        if k == 'X':
            if i == 0: a(f"s_add_u32 m0, s{mX}, {g%4*4096}\n" + (rot(g // 2, oX, 256) if g % 2 == 0 else f"s_add_u32 s{oX}, s{oX}, 128"))
            a.vmem(f"buffer_load_dwordx4 v{gX[i]}, {S(rX,4)}, s{oX} offen offset:{1024*i} lds", ('X', g))
        else:
            P = g // 5
            if i == 0: a(f"s_add_u32 m0, s{mW}, {g%6*16384}\n" + rot(g % 5, oW, 128 * (3456, 3840)[P // 2]) + (f"\ns_add_u32 s{rWB}, s{rWB}, 1920\ns_addc_u32 s{rWB+1}, s{rWB+1}, 0\ns_sub_u32 s{rWB+2}, s{rWB+2}, 1920" if g == 15 and 'b' not in X else ''))
            a.vmem(f"buffer_load_dwordx4 v{gW[min(P,2)][i]}, {S((rWA,rWB)[P//2],4)}, s{oW} offen offset:{1024*i} lds", ('W', g))
    def dma_ok(gap):
        if not DQ: return False
        _, k, g, i = DQ[0]
        return gap >= (8 * (g - 4) + 1 if k == 'X' else 16 * (g - 4) - 6)
    ST or stamp(a, 8)
    for _ in range(8): dma()
    for g in range(1, 5): a(f"s_cmp_ge_u32 s{phi}, {5-g}\ns_cselect_b32 s{kk[g]}, {g-5}, {g}\ns_add_u32 s{kk[g]}, s{kk[g]}, s{phi}")
    a(f"s_movk_i32 s{t3}, 3840\nv_mad_u32_u24 v{gW[2][0]}, v{T+1}, s{t3}, v{T+3}")
    for i in range(1, 4): a(f"v_add_u32 v{gW[1][i]}, {i*(4*3456-1024)}, v{gW[1][0]}\nv_add_u32 v{gW[2][i]}, {i*(4*3840-1024)}, v{gW[2][0]}")
    srd(a, rS, pWS, 0, WS_PROF); srd(a, rD, pD, 0, 256)
    a(f"""s_lshl_b32 s{t0}, s{sblk}, 12
    s_add_u32 s{t0}, s{t0}, {WS_ST}
    s_lshl_b32 s{scs}, s{scg}, 8
    v_lshl_add_u32 v{gS}, v{ln}, 2, s{t0}
    s_lshl_b32 s{t0}, s{sblk}, 2
    v_mov_b32 v{gD}, s{t0}""")
    for _ in range(4): dma()
    a(f"""v_and_b32 v{T}, 31, v{ln}
    v_lshrrev_b32 v{T+1}, 5, v{ln}
    v_bfe_u32 v{T+2}, v{ln}, 1, 3
    v_xor_b32 v{T+2}, v{T+2}, v{T+1}
    v_lshlrev_b32 v{T+2}, 4, v{T+2}
    v_lshl_add_u32 v{T+2}, v{T}, 7, v{T+2}
    s_lshl_b32 s{t0}, s{b1}, 5
    v_xor_b32 v{T+2}, s{t0}, v{T+2}""")
    for j in range(4): a(f"v_xor_b32 v{T+3}, {32*j}, v{T+2}\nv_add_u32 v{aX[j]}, s{mX}, v{T+3}")
    a(f"""v_lshlrev_b32 v{T+3}, 6, v{T}
    v_lshl_add_u32 v{T+3}, v{T+1}, 4, v{T+3}
    s_add_u32 s{t0}, s{mX}, 4096
    v_bfe_u32 v{T+4}, v{ln}, 1, 2
    v_lshlrev_b32 v{T+4}, 4, v{T+4}
    v_xor_b32 v{T+3}, v{T+3}, v{T+4}
    v_add_u32 v{aTw}, s{t0}, v{T+3}
    v_xor_b32 v{aTw2}, 32, v{aTw}
    v_lshlrev_b32 v{T+3}, 3, v{T}
    v_add_u32 v{aC}, s{mX}, v{T+3}
    v_lshl_add_u32 v{T+9}, v{T+1}, 15, v{T+3}
    v_bfe_u32 v{T+2}, v{ln}, 2, 2
    v_lshl_add_u32 v{T+3}, v{T+1}, 3, v{T+2}
    v_and_b32 v{T+4}, 1, v{ln}
    v_bfe_u32 v{T+5}, v{ln}, 1, 1
    v_bfe_u32 v{T+6}, v{ln}, 4, 1
    v_lshlrev_b32 v{T+4}, 4, v{T+4}
    v_lshl_add_u32 v{T+4}, v{T+5}, 3, v{T+4}
    v_lshl_add_u32 v{T+4}, v{T+6}, 5, v{T+4}
    v_lshl_add_u32 v{T+5}, v{T+3}, 6, v{T+4}
    v_and_b32 v{T+7}, 8, v{ln}
    v_lshlrev_b32 v{T+7}, 1, v{T+7}
    v_xor_b32 v{T+5}, v{T+5}, v{T+7}
    v_add_u32 v{aTr}, s{t0}, v{T+5}
    v_xor_b32 v{aTr2}, 32, v{aTr}
    v_lshl_add_u32 v{T+4}, v{T+3}, 8, v{T+4}
    v_xor_b32 v{T+2}, s{b0}, v{T+2}
    v_lshl_add_u32 v{T+4}, v{T+2}, 6, v{T+4}
    s_lshl_b32 s{t0}, s{b1}, 12
    v_xor_b32 v{T+4}, s{t0}, v{T+4}""")
    for jp in range(2):
        for p in range(4):
            a(f"v_xor_b32 v{aW[0][jp][p]}, {jp*4096 + p*64}, v{T+4}\nv_add_u32 v{aW[1][jp][p]}, 49152, v{aW[0][jp][p]}")
    for _ in range(4 * (PRE - 3)): dma()
    TP = int(os.environ.get('TP', '-5'))
    TW = int(os.environ.get('TW', '254'))
    a(f"v_and_b32 v254, 1, v{ln}\nv_bfe_u32 v253, v{ln}, 1, 1\nv_mul_u32_u24 v254, 0x700000, v254\nv_mul_u32_u24 v253, 0x3f0000, v253\nv_add_u32 v253, v253, v254\nv_cmp_eq_u32 vcc, 0, v254\nv_add_u32 v253, 0x500000, v253\nv_mov_b32 v254, 0x500000\nv_cndmask_b32 v253, v253, v254, vcc")
    a(f"""s_lshl_b32 s{t0}, s{b0}, 14
    s_add_u32 s{t1}, s{t0}, {XB}
    s_xor_b32 s{t0}, s{t0}, 16384
    s_add_u32 s{t0}, s{t0}, {XB}
    v_add_u32 v{aCr[0]}, s{t1}, v{T+9}
    v_add_u32 v{aCr[1]}, s{t0}, v{T+9}
    v_bfe_u32 v{T}, v{ln}, 2, 1
    v_and_b32 v{T+1}, 3, v{ln}
    v_xor_b32 v{T}, v{T}, v{T+6}
    v_or_b32 v{T}, v{T}, v{T+1}
    v_cmp_eq_u32 vcc, 0, v{T}
    v_mov_b32 v{T+1}, 0x3f803f80
    v_mov_b32 v{s1}, 0
    v_mov_b32 v{s2}, 0""")
    for i in range(4): a(f"v_cndmask_b32 v{sel+i}, 0, v{T+1}, vcc")
    dec = lambda m: (m // 80, m // 16, m % 16 // 8, m % 8 // 2, m % 2)
    def rdW(m):
        if m >= 320: return
        _, G, h, j, t = dec(m); sl = G % 6
        for r in range(2):
            a.ds(f"ds_read_b64_tr_b16 {A(Wf[m%8]+2*r,2)}, v{aW[sl//3][j%2][2*h+t]} offset:{sl%3*16384 + j//2*8192 + 1024*r}", ('W', m))
    def rdX(q):
        if q < 40: a.ds(f"ds_read_b128 {A(xf[q],4)}, v{aX[q%4]} offset:{q//4%4*4096}", ('X', q))
    ST or stamp(a, 9); a.need(vm=[('X', 0), ('W', 0)]); a("s_barrier"); stamp(a, 1); a("s_waitcnt lgkmcnt(0)" if PROF else "")
    rdX(0); rdW(0); rdW(1); rdX(1); rdW(2); rdW(3); rdX(2); rdX(3); rdW(4); rdW(5)
    a.need(lg=[('W', 1)])
    Q = []; gate = [0]
    op = lambda t, c=1: Q.append((c, t, gate[0]))
    ops = lambda txt: [op(t) for t in txt.split("\n")]
    def split_cs(P_):
        c = cs[P_ % 2]
        a(f"""v_cvt_pk_bf16_f32 v{c+1}, v{c}, v{c}
        v_and_b32 v{c+2}, 0xffff0000, v{c+1}
        v_sub_f32 v{c+2}, v{c}, v{c+2}
        v_cvt_pk_bf16_f32 v{c}, v{c}, v{c+2}
        v_and_b32 v{c+1}, 0xffff, v{c+1}""")
    def wrC(P_): a.ds(f"ds_write_b64 v{aC}, {V(cs[P_%2],2)} offset:{P_*256}", ('cw', P_))
    def rdE(P_):
        for t in range(2): a.ds(f"ds_read_b64 {V(we[t],2)}, v{aCr[t]} offset:{P_*256}", ('we', P_))
    def fold(P_, t): a(f"v_mfma_f32_32x32x8_bf16 {V(acc[2*P_+t],16)}, {V(we[t],2)}, {V(xe,2)}, {V(acc[2*P_+t],16)}")
    def zaddr(p, mul, base, dst):
        return f"""s_xor_b32 s{t1}, s{b0}, {p&1}
        s_lshl_b32 s{t2}, s{scg}, 1
        s_add_u32 s{t1}, s{t1}, s{t2}
        s_sub_u32 s{t1}, s{t1}, {1 if p < 2 else 0}
        s_mul_i32 s{t2}, s{t1}, {mul}
        s_add_u32 s{t2}, s{t2}, s{base}
        s_cmp_lt_u32 s{t1}, 27
        s_cselect_b32 s{t2}, s{t2}, {OOB}
        v_add_u32 v{dst}, s{t2}, v{l16}"""
    ZG = int(os.environ.get('ZG', '68')); gate[0] = ZG
    txt = f"s_mul_i32 s{t3}, s{sblk}, 55296\ns_add_u32 s{t3}, s{t3}, {WS_Z1}\n" + zaddr(2, 2048, t3, gX[2]) + "\n" + zaddr(3, 2048, t3, gX[3])
    txt += f"\ns_lshl_b32 s{t3}, s{sblk}, 11\ns_add_u32 s{t3}, s{t3}, {WS_Z2}\n" + zaddr(0, 131072, t3, gX[0]) + "\n" + zaddr(1, 131072, t3, gX[1])
    txt += f"""
    s_mul_i32 s{t3}, s{sblk}, 81920
    s_lshl_b32 s{t1}, s{scg}, 12
    s_add_u32 s{t3}, s{t3}, s{t1}
    s_lshl_b32 s{t1}, s{b0}, 11
    v_add_u32 v{T+4}, s{t3}, v{l16}
    v_xor_b32 v{T+4}, s{t1}, v{T+4}
    v_xor_b32 v{T+5}, 2048, v{T+4}"""
    tl = [x.strip() for x in txt.split("\n")]
    while tl:
        x = tl.pop(0)
        if x.startswith("s_cmp"): op(x + "\n" + tl.pop(0), 2)
        else: op(x)
    gate[0] = 82
    for i in range(4): op(f"v_add_f32 v{sq[0]+i}, v{sq[0]+i}, v{sq[1]+i}")
    op(f"v_and_b32 v{T}, 3, v{ln}")
    fill = [(f"v_mul_f32 v{T+1}, {F(-1/640)}, v{sx}", f"v_cvt_pk_bf16_f32 v{xe}, v{T+1}, v{T+1}"),
            (f"v_and_b32 v{T+3}, 0xffff0000, v{xe}", f"v_sub_f32 v{T+3}, v{T+1}, v{T+3}"),
            (f"v_cvt_pk_bf16_f32 v{xe+1}, v{T+3}, 0", f"v_mul_f32 v{T+1}, v{T+1}, v{T+1}")]
    for i in range(1, 4):
        op(f"v_cmp_eq_u32 vcc, {i}, v{T}"); op(fill[i-1][0]); op(fill[i-1][1]); op(f"v_cndmask_b32 v{sq[0]}, v{sq[0]}, v{sq[0]+i}, vcc")
    nxe = len(Q)
    ops(f"""v_mov_b32 v{T+2}, v{sq[0]}
    s_mov_b32 s{t0}, {F(1/640)}
    s_nop 0
    v_permlane32_swap_b32 v{T+2}, v{sq[0]}
    s_nop 1
    v_add_f32 v{T+2}, v{T+2}, v{sq[0]}
    v_fma_f32 v{T+2}, v{T+2}, s{t0}, -v{T+1}
    v_max_f32 v{T+2}, 0, v{T+2}
    v_add_f32 v{T+2}, {F(1e-5)}, v{T+2}
    v_rsq_f32 v{rr}, v{T+2}
    s_nop 0
    v_mul_f32 v{ir}, v{T+2}, v{rr}
    v_mul_f32 v{c1}, {F(-2*0.7978845608028654*1.4426950408889634)}, v{rr}
    v_mul_f32 v{c2}, v{rr}, v{rr}
    v_mul_f32 v{c2}, v{c1}, v{c2}
    v_mul_f32 v{c2}, {F(0.044715)}, v{c2}""")
    op(f"s_cmp_lt_u32 s{scg}, 10\ns_cselect_b32 s{t0}, {F(20**-0.5*1.4426950408889634)}, 1.0\nv_mul_f32 v{cq}, s{t0}, v{rr}", 3)
    pfs = f"""s_and_b32 s{t1}, s2, 7
            s_lshl_b32 s{t1}, s{t1}, 5
            s_lshr_b32 s{t2}, s2, 3
            s_add_u32 s{t1}, s{t1}, s{t2}
            s_lshl_b32 s{t1}, s{t1}, 15
            s_add_u32 s{rX}, s{pSp}, s{t1}
            s_addc_u32 s{rX+1}, s{pSp+1}, 0
            s_mov_b32 s{rX+2}, 32768
            v_lshrrev_b32 v{T+11}, 5, v0
            v_and_b32 v{T+12}, 31, v0
            v_lshlrev_b32 v{T+11}, 12, v{T+11}
            v_lshl_add_u32 v{T+11}, v{T+12}, {7 - PFS.bit_length() + 1}, v{T+11}
            v_and_b32 v{T+11}, {os.environ.get('PM', '-1')}, v{T+11}
            s_and_b32 s{t2}, s2, {os.environ.get('RM', '0')}
            s_lshl_b32 s{t2}, s{t2}, 9
            v_xor_b32 v{T+11}, s{t2}, v{T+11}
            v_lshlrev_b32 v{T+12}, 7, v{T+12}
            v_lshlrev_b32 v254, 6, v0
            v_min_u32 v254, k2_end-k2_kernel, v254
            v_add_u32 v254, k2_kernel-k1_pc, v254"""
    def pf(i):
        if i < PFS: a.vmem(f"buffer_load_dword v255, v{T+11}, {S(rX,4)}, 0 offen offset:{i*4096//PFS}", 'pf')
        elif i == PFS: a.vmem(f"global_load_dword v255, v254, s[96:97]", 'pf')
        else: a.vmem(f"global_load_dword v255, v{T+12}, {S(pB,2)}", 'pf')
    if PFS:
        tl = [x.strip() for x in pfs.split("\n")]
        while tl:
            x = tl.pop(0)
            if tl and tl[0].startswith("s_addc"): op(x + "\n" + tl.pop(0), 2)
            else: op(x)
        npf = len(Q)
    def gelu(r0, stats):
        R = range(4)
        for i in R: op(f"v_mul_f32 v{T+i}, v{r0+i}, v{r0+i}")
        for i in R: op(f"v_fma_f32 v{T+i}, v{T+i}, v{c2}, v{c1}")
        for i in R: op(f"v_mul_f32 v{T+i}, v{T+i}, v{r0+i}")
        for i in R: op(f"v_exp_f32 v{T+i}, v{T+i}", 2)
        for i in R: op(f"v_fma_f32 v{T+i}, v{T+i}, v{ir}, v{ir}")
        for i in R: op(f"v_rcp_f32 v{T+i}, v{T+i}", 2)
        for i in R: op(f"v_mul_f32 v{r0+i}, v{r0+i}, v{T+i}")
        if stats:
            for i in R: op(f"v_add_f32 v{s1}, v{s1}, v{r0+i}"); op(f"v_fmac_f32 v{s2}, v{r0+i}, v{r0+i}")
    TOT = int(os.environ.get('TOT', '7')); DC = int(os.environ.get('DC', '2')); C16 = int(os.environ.get('C16', '2')); PH = int(os.environ.get('PH', '0')); CR = int(os.environ.get('CR', '20')); FG = int(os.environ.get('FG', '8')); R1 = float(os.environ.get('R1', '0.25'))
    gate[0] = 80 + FG + 5
    for p in range(2):
        for b in range(4): gelu(acc[p] + 4 * b, True)
    def chk():
        a.need(vm=['cnt'])
        a(f"""{N}_c0:
        v_readfirstlane_b32 s{oX}, v{T+10}
        s_cmp_eq_u32 s{oX}, 15
        s_cbranch_scc1 {N}_c1
        s_add_u32 s{spin}, s{spin}, 0x4000
        s_cbranch_scc1 {N}_c1
        buffer_load_dword v{T+10}, v{gD}, {S(rD,4)}, 0 offen sc1
        s_waitcnt vmcnt(0)
        s_branch {N}_c0
        {N}_c1:""")
    op(chk, 3); op(f"v_permlane32_swap_b32 v{s1}, v{s2}"); op("s_nop 1"); op(f"v_add_f32 v{s1}, v{s1}, v{s2}"); op(f"v_min_u32 v{s1}, -2, v{s1}")
    op(lambda: a.vmem(f"buffer_store_dword v{s1}, v{gS}, {S(rS,4)}, s{scs} offen sc0 sc1", 'pub'))
    st4 = lambda r, ad, so, off: 'S' in X or a.vmem(f"buffer_store_dwordx4 {V(r,4)}, v{ad}, {S(rS,4)}, {so} offen offset:{off}{WT}", 'st')
    gate[0] = 160 + FG + 5
    for p in range(2, 4):
        for b in range(4):
            gelu(acc[p] + 4 * b, False)
            for i in range(2): op(f"v_cvt_pk_bf16_f32 v{acc[p]+2*b+i}, v{acc[p]+4*b+2*i}, v{acc[p]+4*b+2*i+1}")
            if b % 2: op(lambda p=p, b=b: st4(acc[p] + 2 * b - 2, gX[p], 0, b // 2 * 1024), STC)
    PS = [P + i for i in range(14)]
    def ldS(lo=0, hi=14):
        for i in range(lo, hi): a.vmem(f"buffer_load_dword v{PS[i]}, v{gS}, {S(rS,4)}, 0 offen offset:{256*i} sc1", 'S')
    gate[0] = 240 + FG + 5
    for t in range(2):
        d = acc[4 + t]
        for r in range(2):
            for i in range(8): op(f"v_mul_f32 v{d+8*r+i}, v{d+8*r+i}, v{cq}")
            for i in range(4): op(f"v_cvt_pk_bf16_f32 v{d+4*r+i}, v{d+8*r+2*i}, v{d+8*r+2*i+1}")
            op(lambda d=d, t=t, r=r: st4(d + 4 * r, T + 4 + t, 0, 1024 * r), STC)
    def poll():
        a.need(vm=['S'])
        a(f"{N}_s0:\nv_max_u32 v{T}, v{PS[0]}, v{PS[1]}")
        for i in range(1, 7): a(f"v_max3_u32 v{T}, v{PS[2*i]}, v{PS[2*i+1]}, v{T}")
        a(f"v_cmp_eq_u32 vcc, -1, v{T}\ns_nop 1\ns_cbranch_vccz {N}_s1\ns_add_u32 s{spin}, s{spin}, 0x4000\ns_cbranch_scc1 {N}_s1")
        sv = list(a.vm); ldS(); a.vm = sv; a(f"s_waitcnt vmcnt(0)\ns_branch {N}_s0\n{N}_s1:")
    gate[0] = max(gate[0], SG + 14 * SS + int(os.environ.get('SL', '20'))); op(poll, 11)
    for i in range(7): op(f"v_add_f32 v{PS[i]}, v{PS[i]}, v{PS[i+7]}")
    for i, k in ((0, 1), (2, 3), (4, 5), (0, 6), (2, 4), (0, 2)): op(f"v_add_f32 v{PS[i]}, v{PS[i]}, v{PS[k]}")
    ops(f"""v_mul_f32 v{T}, {F(1/864)}, v{PS[0]}
    v_mov_b32 v{T+1}, v{T}
    s_nop 1
    v_permlane32_swap_b32 v{T}, v{T+1}
    s_nop 1
    v_fma_f32 v{T+1}, -v{T}, v{T}, v{T+1}
    v_max_f32 v{T+1}, 0, v{T+1}
    v_add_f32 v{T+1}, {F(1e-5)}, v{T+1}
    v_rsq_f32 v{T+2}, v{T+1}
    s_nop 0
    v_mul_f32 v{T}, v{T}, v{T+2}""")
    def trw(src, slot, r): a.ds(f"ds_write_b128 v{(aTw,aTw2)[r]}, {V(src+4*r,4)} offset:{slot*2048}", ('tw', slot))
    def trr(dst, slot):
        for i in range(4): a.ds(f"ds_read_b64_tr_b16 {V(dst+2*i,2)}, v{(aTr,aTr2)[i%2]} offset:{slot*2048 + i//2*1024 + i%2*256}", ('tr', slot))
    def z2st(p, r):
        a.need(lg=[('tr', 4 + p)]); st4(acc[p] + 8 + 4 * r, gX[p], 0, 1024 * r)
    for p in range(2):
        d = acc[p]
        for r in range(2):
            for i in range(8): op(f"v_fma_f32 v{d+8*r+i}, v{d+8*r+i}, v{T+2}, -v{T}")
            for i in range(4): op(f"v_cvt_pk_bf16_f32 v{d+4*r+i}, v{d+8*r+2*i}, v{d+8*r+2*i+1}")
            op(lambda d=d, p=p, r=r: trw(d, 4 + p, r), 2)
            if p == 1 and r == 0: op(lambda: trr(acc[0] + 8, 4), 4)
    op(lambda: trr(acc[1] + 8, 5), 4); [op(lambda p=p, r=r: z2st(p, r), max(STC, 6)) for p in range(2) for r in range(2)]
    print("k1 filler slots", sum(c for c, _, _ in Q))
    def pop(budget, m):
        while Q and budget >= min(Q[0][0], MB) and Q[0][2] <= m:
            c, t, _ = Q.pop(0); budget -= c
            t() if callable(t) else a(t if 'f' not in X else '')
        return min(budget, 0)
    credit = 0; dcredit = 0.0; nq0 = len(Q)
    for m in range(320):
        P_, G, h, j, t = dec(m); q = m % 80 // 2; d = acc[2 * P_ + t]; mm = m % 80
        a(f"v_mfma_f32_32x32x16_bf16 {V(d,16)}, {A(Wf[m%8],4)}, {A(xf[q],4)}, {V(d,16) if q else 0}")
        vm, lg = [], []; L0 = len(a.L)
        if m % 2 == 1: lg += [('W', m + 1), ('W', m + 2), ('X', q + 1)]
        if (m + 6) % 8 == 0: vm += [('X', (m + 6) // 8)]
        bar = (m + 6) % 16 == 0 and m + 6 < 320
        if bar: vm += [('W', (m + 6) // 16)]
        if P_ and mm == FG - 3: lg += [('cw', P_ - 1)]; bar = True
        if P_ and mm == FG: lg += [('we', P_ - 1)]
        a.need(vm=vm, lg=lg)
        if bar and 'n' not in X: a("s_barrier")
        bud = BUD
        if P_ and mm == FG - 3: rdE(P_ - 1); bud -= 2
        if P_ and mm == 2: wrC(P_ - 1); bud -= 1
        if P_ == 0 and m % 8 in (2, 3): rdX((m + 6) // 8 * 4 + m % 2 * 2); rdX((m + 6) // 8 * 4 + m % 2 * 2 + 1)
        rdW(m + 6)
        dcredit += RATE if P_ == 0 else R1
        if (dcredit >= 1 if P_ == 0 else m % 4 == PH) and dma_ok(m): dma(); dcredit -= 1; bud -= 1
        dcredit = min(dcredit, 1.5 if P_ == 0 else 1 - R1)
        if m == 70: a.vmem(f"buffer_load_dword v{T+10}, v{gD}, {S(rD,4)}, 0 offen", 'cnt')
        if m == TW: a.vmem(f"buffer_load_dword v255, v253, {S(rS,4)}, 0 offen", 'pf')
        if m == TP: a(f"s_and_b32 s{oX}, s2, 7\ns_lshl_b32 s{oX}, s{oX}, 20\nv_mov_b32 v254, s{oX}"); a.vmem(f"global_load_dword v255, v254, {S(pSp,2)}", 'pf')
        if m == TP + 1: a("v_mov_b32 v254, 0"); a.vmem(f"global_load_dword v255, v254, {S(pB,2)}", 'pf')
        if m == ZG: assert not any(k == 'X' for _, k, g, i in DQ)
        if SG <= m < SG + 14 * SS and (m - SG) % SS == 0 and 'L' not in X: ldS((m - SG) // SS, (m - SG) // SS + 1)
        if PFS and m == PG: assert len(Q) <= nq0 - npf
        if PFS and m >= PG and (m - PG) % PD == 0 and (m - PG) // PD < PFS + 2: pf((m - PG) // PD)
        if P_ and mm == 1: split_cs(P_ - 1); bud -= 5
        used = sum((1 if x.text() else 0) if isinstance(x, Wait) else (DC if 'buffer' in x else 1) for x in a.L[L0:])
        credit = pop(max(credit, -CR) + TOT - used, m)
        if j % 2 == 0 and t == 0 and 'c' not in X:
            a(f"v_mfma_f32_16x16x32_bf16 {V(cs[P_%2],4)}, {V(sel,4)}, {A(Wf[m%8],4)}, {V(cs[P_%2],4) if q else 0}"); credit = pop(credit + C16, m)
        if P_ == 0 and t == 0 and 's' not in X: a(f"v_mfma_f32_16x16x32_bf16 {V(sx,4)}, {V(sel,4)}, {A(xf[q],4)}, {V(sx,4) if q else 0}")
        if P_ == 0 and t == 1 and 'q' not in X:
            for r in range(2): a(f"v_mfma_f32_4x4x4_16b_bf16 {V(sq[r],4)}, {A(xf[q]+2*r,2)}, {A(xf[q]+2*r,2)}, {V(sq[r],4) if q else 0}")
        if P_ and mm in (FG, FG + 1):
            assert len(Q) <= nq0 - nxe
            a("s_nop 1"); fold(P_ - 1, mm - FG); credit = pop(credit + 5, m)
        if m == 79: stamp(a, 2)
        if m in ST: stamp(a, 7 + ST.index(m))
        if m == 159: stamp(a, 3)
        if m == 239: stamp(a, 4)
    print("k1 filler left", sum(c for c, _, _ in Q)); assert not DQ
    stamp(a, 5)
    a("s_nop 3"); split_cs(3); wrC(3)
    pop(1e9, 999)
    a.need(lg=[('cw', 3)]); a("s_barrier"); rdE(3)
    a(f"""v_and_b32 v{T}, 19, v{ln}
    v_bfe_u32 v{T+1}, v{ln}, 2, 1
    v_bfe_u32 v{T+2}, v{ln}, 3, 1
    v_lshl_add_u32 v{T}, v{T+1}, 3, v{T}
    v_lshl_add_u32 v{T}, v{T+2}, 2, v{T}
    s_sub_u32 s{t1}, s{scg}, 5
    s_lshl_b32 s{t1}, s{t1}, 1
    s_add_u32 s{t1}, s{t1}, s{b0}
    s_lshl_b32 s{t1}, s{t1}, 5
    v_add_u32 v{T}, s{t1}, v{T}
    v_lshrrev_b32 v{T+1}, 5, v{ln}
    v_mul_u32_u24 v{T+1}, 320, v{T+1}
    s_mul_i32 s{t1}, s{sblk}, 1280
    s_add_u32 s{t1}, s{t1}, {WS_VT}
    v_add_u32 v{T+1}, s{t1}, v{T+1}
    v_mov_b32 v{c1}, v{rr}
    v_mov_b32 v{c2}, v{rr}""")
    assert c1 % 2 == 0 and c2 == c1 + 1
    a.need(lg=[('we', 3)])
    for t in range(2): fold(3, t)
    for t in range(2):
        a(f"""v_xor_b32 v{T+2}, {32*t}, v{T}
        v_mul_u32_u24 v{T+3}, 52429, v{T+2}
        v_lshrrev_b32 v{T+3}, 20, v{T+3}
        v_mul_u32_u24 v{T+3}, {81920-320}, v{T+3}
        v_lshl_add_u32 v{T+2}, v{T+2}, 4, v{T+3}
        v_add_u32 v{T+6+t}, v{T+2}, v{T+1}""")
    def scale(t, r):
        d = acc[6 + t]
        for i in range(4): a(f"v_pk_mul_f32 {V(d+8*r+2*i,2)}, {V(d+8*r+2*i,2)}, {V(c1,2)}")
        for i in range(4): a(f"v_cvt_pk_bf16_f32 v{d+4*r+i}, v{d+8*r+2*i}, v{d+8*r+2*i+1}")
    a(f"s_mov_b32 s{t1}, {15*4096}\ns_cmp_ge_u32 s{scg}, 5\ns_cbranch_scc1 {N}_v")
    for t in range(2):
        for r in range(2): scale(t, r); st4(acc[6 + t] + 4 * r, T + 4 + t, f"s{t1}", 1024 * r)
    a(f"s_branch {N}_fin\n{N}_v:")
    for t in range(2):
        for r in range(2): scale(t, r); trw(acc[6 + t], t, r)
    for t in range(2): trr(acc[6 + t] + 8, t)
    for t in range(2):
        a.need(lg=[('tr', t)])
        for r in range(2): st4(acc[6 + t] + 8 + 4 * r, T + 6 + t, 0, 640 * r)
    a(f"{N}_fin:")
    stamp(a, 6); a("s_waitcnt vmcnt(0)"); stamp_out(a, 1, 10); a("s_endpgm")
    a.vm = []; a.lg = []
    a(f"""{N}_side:
    s_lshl_b32 s{sblk}, s{srb}, 2
    s_add_u32 s{sblk}, s{sblk}, s{sw}
    s_lshl_b32 s{t0}, s{sblk}, 12
    s_add_u32 s{t0}, s{t0}, {WS_ST}
    s_lshl_b32 s{sblk}, s{sblk}, 2
    v_mov_b32 v{T+4}, -1
    v_mov_b32 v{T+5}, -1
    v_mov_b32 v{T+6}, -1
    v_mov_b32 v{T+7}, -1
    v_mov_b32 v{T+8}, 15
    v_mov_b32 v{T+9}, s{sblk}
    s_waitcnt lgkmcnt(0)""")
    srd(a, rS, pWS, f"s{t0}", 4096); srd(a, rD, pD, 0, 256)
    for i in range(4): a(f"buffer_store_dwordx4 {V(T+4,4)}, v{l16}, {S(rS,4)}, 0 offen offset:{1024*i} sc0 sc1")
    a(f"""s_mul_i32 s{mX}, s{sw}, 10240
    v_add_u32 v{T}, s{mX}, v{l16}
    s_mul_i32 s{srb}, s{srb}, 3""")
    srd(a, rS, pWS, WS_WT, 8 * 47 * 5120)
    for kk in range(3):
        a(f"""s_add_u32 s{t0}, s{srb}, {kk}
        s_sub_u32 s{t1}, s{t0}, 27
        s_cmp_lt_u32 s{t0}, 27
        s_cselect_b32 s{t1}, s{t0}, s{t1}
        s_cselect_b32 s{t2}, s{pWout}, s{pWo}
        s_cselect_b32 s{t3}, s{pWout+1}, s{pWo+1}
        s_mul_i32 s{t1}, s{t1}, 40960
        s_add_u32 s{rX}, s{t2}, s{t1}
        s_addc_u32 s{rX+1}, s{t3}, 0
        s_cmp_lt_u32 s{t0}, 47
        s_cselect_b32 s{rX+2}, 40960, 0
        s_mov_b32 s{rX+3}, 0x20000""")
        for i in range(10):
            if i % 4 == 0: a(f"s_add_u32 m0, s{mX}, {kk*40960 + i*1024}\ns_mov_b32 s{oX}, {i*1024}")
            a(f"buffer_load_dwordx4 v{T}, {S(rX,4)}, s{oX} offen offset:{i%4*1024} lds")
        if kk == 0: a(f"s_waitcnt vmcnt(10)\nbuffer_store_dword v{T+8}, v{T+9}, {S(rD,4)}, 0 offen sc0 sc1")
    a(f"""v_lshrrev_b32 v{T+1}, 4, v{ln}
    v_bfe_u32 v{T+2}, v{ln}, 2, 2
    v_lshl_add_u32 v{T+1}, v{T+1}, 3, v{T+2}
    v_mul_u32_u24 v{T+1}, 1280, v{T+1}
    v_and_b32 v{T+2}, 3, v{ln}
    v_mul_u32_u24 v{T+2}, 40, v{T+2}
    s_mul_i32 s{t0}, s{sw}, 320
    v_add3_u32 v{T+1}, v{T+1}, v{T+2}, s{t0}""")
    for kk in range(3):
        a(f"s_waitcnt vmcnt({(21, 20, 20)[kk]})\ns_barrier")
        for c in range(2):
            for nt in range(5):
                for h in range(2): a(f"ds_read_b64_tr_b16 {V(acc[0]+40*kk+20*c+4*nt+2*h,2)}, v{T+1} offset:{160*c + 8*nt + 5120*h}")
        a(f"v_add_u32 v{T+1}, 40960, v{T+1}")
        a(f"""s_add_u32 s{t0}, s{srb}, {kk}
        s_cmp_lt_u32 s{t0}, 47
        s_cselect_b32 s{rS+2}, s{rS+2}, 0
        s_mul_i32 s{t1}, s{sw}, 94
        s_add_u32 s{t0}, s{t0}, s{t1}
        s_mul_i32 s{t0}, s{t0}, 5120
        s_waitcnt lgkmcnt(0)""")
        for c in range(2):
            for nt in range(5):
                a(f"s_add_u32 s{t1}, s{t0}, {c*47*5120 + nt*1024}\nbuffer_store_dwordx4 {V(acc[0]+40*kk+20*c+4*nt,4)}, v{l16}, {S(rS,4)}, s{t1} offen{WT}")
    a(f"s_lshl_b32 s{t0}, s{sblk}, 7\ns_add_u32 s{t0}, s{t0}, 0x11e0000\nv_lshl_add_u32 v{T}, v{ln}, 3, s{t0}\nv_mov_b32 v{T+2}, 0\nv_mov_b32 v{T+3}, 0\nglobal_store_dwordx2 v{T}, {V(T+2,2)}, {S(pWS,2)} sc0 sc1")
    NP = int(os.environ.get('NP', '2'))
    if NP:
        a(f"""s_lshr_b32 s{t0}, s{sblk}, 4
        s_lshl_b32 s{t1}, s{t0}, 19
        s_mul_i32 s{t0}, s{sblk}, 10240
        s_add_u32 s{t0}, s{t0}, {WS_O + 1024}
        v_lshrrev_b32 v{T}, 1, v0
        v_and_b32 v{T+1}, 1, v0
        v_lshlrev_b32 v{T}, 12, v{T}
        v_lshl_add_u32 v{T}, v{T+1}, 7, v{T}
        v_add_u32 v{T}, s{t1}, v{T}
        v_lshrrev_b32 v{T+1}, 2, v{ln}
        v_and_b32 v{T+2}, 3, v{ln}
        v_mul_u32_u24 v{T+1}, 2560, v{T+1}
        v_lshl_add_u32 v{T+1}, v{T+2}, 7, v{T+1}
        v_add_u32 v{T+1}, s{t0}, v{T+1}
        s_lshl_b32 s{t0}, s{sblk}, 7
        v_lshl_add_u32 v{T+2}, v{T+2}, 7, s{t0}
        v_min_u32 v{T+3}, k2_end-k2_kernel, v{T+2}
        v_add_u32 v{T+3}, k2_kernel-k1_pc, v{T+3}
        v_and_b32 v{T+2}, 0xf80, v{T+2}
        global_load_dword v255, v{T+3}, s[96:97]
        global_load_dword v255, v{T+2}, {S(pB,2)}""")
        for i in range(NP):
            a(f"global_load_dword v255, v{T}, {S(pSp,2)} offset:{256*i}")
    stamp(a, 1); a("s_waitcnt vmcnt(0)")
    for i in range(2, 10): stamp(a, i)
    stamp_out(a, 1, 10)
    a(f"{N}_end:\ns_endpgm")
    return a
```

```python
from asm import *
KVB, ONES, FLAG = 65536, 114688, 114688 + 5120
LDS2 = 163840
from k3f import tail3
X = os.environ.get('X2', ''); PFW = int(os.environ.get('PFW', '0')); PFO = int(os.environ.get('PFO', '0')); RM = int(os.environ.get('RM', '0')); WI = int(os.environ.get('WI', '0')); ZL = int(os.environ.get('ZL', '12'))
def k2():
    a = Asm(); N = "k2"
    head(a, N, 2); stamp0(a)
    pWS, pX, pO = [a.sg(2) for _ in range(3)]; sw, shd, sqg = [a.sg() for _ in range(3)]; sfree = a.ns; pW, pB, oE = [a.sg(2) for _ in range(3)]
    a(f"""s_load_dwordx2 {S(pW,2)}, s[0:1], 40
    s_load_dwordx2 {S(pB,2)}, s[0:1], 48
    s_load_dwordx2 {S(pWS,2)}, s[0:1], 80
    s_load_dwordx2 {S(pX,2)}, s[0:1], 0
    s_load_dwordx2 {S(pO,2)}, s[0:1], 64""")
    rW, rKV, rZ, rE, rO, rB = [a.sg(4) for _ in range(6)]
    sfb, sodd, sm5, t0, t1, t2, oW, oKV, oZ, incKV, mW, mKV, cnt, retry, szW, szZ, szE = [a.sg() for _ in range(17)]
    SB = [a.v(16), a.v(16)]; O = [a.v(16), a.v(16)]; G = [a.v(16), a.v(16)]
    Qm = [a.v(4), a.v(4)]; Qr = [a.v(2), a.v(2)]
    Km = [a.v(4), a.v(4)]; Kr = [a.v(2), a.v(2)]
    V1 = [a.v(4), a.v(4)]; V2 = [a.v(4), a.v(4)]; W0 = [a.v(4), a.v(4)]; W1 = [a.v(4), a.v(4)]
    Z1 = [a.v(8), a.v(8)]; bs = [a.v(), a.v()]
    aW = [a.v() for _ in range(8)]; aKm = a.v(); aKr = [a.v() for _ in range(4)]; aV = [a.v() for _ in range(4)]
    gW = [a.v() for _ in range(4)]; gKV = [a.v() for _ in range(3)]; gZ = a.v(); gQm, gQr, gE, gOm, gOr = [a.v() for _ in range(5)]
    idx, ln, l31, hf = [a.v() for _ in range(4)]; T = a.v(8, 4)
    Z = [a.a(4) for _ in range(16)]
    a(f"""v_lshrrev_b32 v{T}, 6, v0
    v_and_b32 v{ln}, 63, v0
    v_readfirstlane_b32 s{sw}, v{T}
    s_and_b32 s{t0}, s2, 7
    s_lshr_b32 s{t1}, s2, 6
    s_lshl_b32 s{t0}, s{t0}, 2
    s_add_u32 s{shd}, s{t0}, s{t1}
    s_bfe_u32 s{sqg}, s2, 0x30003
    s_lshl_b32 s{sfb}, s{sqg}, 2
    s_add_u32 s{sfb}, s{sfb}, s{sw}
    s_and_b32 s{sodd}, s{shd}, 1
    s_lshr_b32 s{sm5}, s{shd}, 1
    s_mul_i32 s{sm5}, s{sm5}, 2560
    s_mov_b32 s{retry}, 0
    v_and_b32 v{l31}, 31, v0
    v_bfe_u32 v{hf}, v0, 5, 1
    v_mov_b32 v{idx}, 0xdddddddd
    s_cmp_lt_u32 s{sqg}, 7
    s_cselect_b32 s{szW}, {64*4096}, 0
    s_cmp_lt_u32 s{sfb}, 27
    s_cselect_b32 s{szZ}, 0x20000, 0
    s_cselect_b32 s{szE}, {WS_WT}, 0
    s_lshl_b32 s{mW}, s{sw}, 12
    s_mul_i32 s{mKV}, s{sw}, 3072
    s_add_u32 s{mKV}, s{mKV}, {KVB}
    s_mov_b32 s{incKV}, 5120
    s_cmp_lt_u32 s{sw}, 2
    s_cselect_b32 s{incKV}, 327680, s{incKV}
    s_lshl_b32 s{t0}, s{shd}, 18
    s_lshl_b32 s{t1}, s{sfb}, 17
    s_add_u32 s{t1}, s{t1}, {WS_Z2}
    s_waitcnt lgkmcnt(0)""")
    srd(a, rW, pW, f"s{t0}", f"s{szW}"); srd(a, rKV, pWS, 0, WS_Z1); srd(a, rZ, pWS, f"s{t1}", f"s{szZ}")
    srd(a, rE, pWS, 0, f"s{szE}"); srd(a, rO, pWS, WS_O, 2621440)
    a(f"""s_lshl_b32 s{t0}, s{sqg}, 2
    s_add_u32 s{t0}, s{t0}, s{sw}
    s_mul_i32 s{t1}, s{t0}, 163840
    s_add_u32 s{t1}, s{t1}, s{sm5}
    s_mul_i32 s{t2}, s{sodd}, 1536
    s_add_u32 s{t2}, s{t2}, s{t1}
    v_lshlrev_b32 v{gZ}, 4, v{ln}
    v_add_u32 v{gQm}, s{t2}, v{gZ}
    s_lshl_b32 s{t2}, s{sodd}, 3
    s_add_u32 s{t2}, s{t2}, s{t1}
    s_add_u32 s{t2}, s{t2}, 1024
    v_add_u32 v{gQr}, s{t2}, v{gZ}
    v_mov_b32 v{T}, {OOB}
    v_cmp_gt_u32 vcc, 32, v{ln}
    s_mov_b32 s{t2}, 81920
    s_nop 0
    v_cndmask_b32 v{gQr}, v{T}, v{gQr}, vcc""")
    for q in range(2):
        so = f"s{t2}" if q else "0"
        a.vmem(f"buffer_load_dwordx4 {V(Qm[q],4)}, v{gQm}, {S(rKV,4)}, {so} offen", ('Q', q))
        a.vmem(f"buffer_load_dwordx2 {V(Qr[q],2)}, v{gQr}, {S(rKV,4)}, {so} offen", ('Q', q))
    a(f"""s_mul_i32 s{t0}, s{t0}, 81920
    v_subrev_u32 v{gOm}, s{t0}, v{gQm}
    v_subrev_u32 v{gOr}, s{t0}, v{gQr}""")
    a(f"{N}_restart:")
    a(f"""s_mul_i32 s{t0}, s{sw}, 163840
    s_add_u32 s{t0}, s{t0}, s{sm5}
    s_lshl_b32 s{t1}, s{sodd}, 10
    s_add_u32 s{t0}, s{t0}, s{t1}
    s_add_u32 s{t0}, s{t0}, 40960
    s_mul_i32 s{t1}, s{shd}, 81920
    s_mul_i32 s{t2}, s{sw}, 3072
    s_add_u32 s{t1}, s{t1}, s{t2}
    s_add_u32 s{t1}, s{t1}, {WS_VT - 6144}
    s_cmp_lt_u32 s{sw}, 2
    s_cselect_b32 s{t0}, s{t0}, s{t1}
    s_cselect_b32 s{t1}, 80384, 0
    s_cmp_eq_u32 s{sw}, 3
    s_cselect_b32 s{t2}, {OOB}, s{t1}
    v_add_u32 v{gKV[0]}, s{t0}, v{gZ}
    v_mul_lo_u32 v{T}, v{hf}, s{t1}
    v_add_u32 v{gKV[2]}, s{t2}, v{gKV[0]}
    v_add_u32 v{gKV[1]}, v{T}, v{gKV[0]}""")
    a(f"""v_lshrrev_b32 v{T}, 4, v{ln}
    v_and_b32 v{T+1}, 15, v{ln}
    s_lshl_b32 s{t0}, s{sw}, 16""")
    for i in range(4):
        a(f"""v_add_u32 v{T+2}, {4*i}, v{T}
        v_xor_b32 v{T+3}, v{T+1}, v{T+2}
        v_lshlrev_b32 v{T+2}, 12, v{T+2}
        v_lshl_add_u32 v{T+2}, v{T+3}, 4, v{T+2}
        v_add_u32 v{gW[i]}, s{t0}, v{T+2}""")
        if i: a(f"v_subrev_u32 v{gW[i]}, {1024*i}, v{gW[i]}")
    def dmaW(i, st): 'D' in X or a.vmem(f"buffer_load_dwordx4 v{gW[i]}, {S(rW,4)}, s{oW} offen offset:{1024*i} lds", ('D', st))
    def dmaKV(i, st): 'd' in X or a.vmem(f"buffer_load_dwordx4 v{gKV[i]}, {S(rKV,4)}, s{oKV} offen offset:{1024*i} lds", ('D', st))
    def ldZ(n): 'Z' in X or a.vmem(f"buffer_load_dwordx4 {A(Z[n%16],4)}, v{gZ}, {S(rZ,4)}, s{oZ} offen offset:{(n%4)*1024}", ('Z', n))
    incW, oP, mP = szW, a.sg(), a.sg()
    a(f"""s_mov_b32 s{oW}, 0
    s_mov_b32 s{oZ}, 0
    s_movk_i32 s{incW}, 256
    s_mov_b32 s{oKV}, 0
    s_mov_b32 m0, s{mKV}
    s_mov_b32 s{cnt}, 0""")
    for i in range(3): dmaKV(i, 0)
    srd(a, rB, pB, 0, 4096)
    a(f"s_mov_b32 m0, s{mW}\ns_lshl_b32 s{t0}, s{shd}, 7")
    for i in range(4): dmaW(i, 0)
    a(f"v_lshl_add_u32 v{T}, v{l31}, 1, s{t0}")
    ldZ(0); ldZ(1)
    for tb in range(2): a.vmem(f"buffer_load_ushort v{bs[tb]}, v{T}, {S(rB,4)}, 0 offen offset:{64*tb}", 'b')
    a(f"s_add_u32 s{oKV}, s{oKV}, s{incKV}\ns_add_u32 m0, s{mKV}, 12288\ns_add_u32 s{oW}, s{oW}, 256")
    for i in range(3): dmaKV(i, 1)
    a(f"s_add_u32 m0, s{mW}, 16384\ns_nop 0")
    for i in range(4): dmaW(i, 1)
    for n in range(2, ZL):
        if n % 4 == 0: a(f"s_add_u32 s{oZ}, s{oZ}, 4096")
        ldZ(n)
    a(f"s_add_u32 m0, s{mW}, 32768\ns_add_u32 s{oW}, s{oW}, 256")
    dmaW(0, 2); dmaW(1, 2)
    a(f"""s_mul_i32 s{t0}, s{shd}, {2*55296}
    s_lshl_b32 s{t1}, s{sfb}, 11
    s_add_u32 s{t0}, s{t0}, s{t1}
    v_add_u32 v{gE}, s{t0}, v{gZ}
    s_mov_b32 s{oE}, {WS_Z1}
    s_mov_b32 s{oE+1}, {WS_Z1 + 55296}""")
    rP = rB; gP = a.v()
    def mkP():
        a(f"s_mul_i32 s{t0}, s{sqg}, {47*5120}\ns_add_u32 s{t0}, s{t0}, {WS_WT}\nv_lshlrev_b32 v{gP}, 4, v0\ns_lshl_b32 s{mP}, s{sw}, 10\ns_mov_b32 s{oP}, {131072-4096}")
        srd(a, rP, pWS, f"s{t0}", 47 * 5120)
    def ldE(tb, r): a.vmem(f"buffer_load_dwordx4 {V(Z1[tb]+4*r,4)}, v{gE}, {S(rE,4)}, s{oE+tb} offen offset:{1024*r}", 'z1')
    a(f"v_and_b32 v{T+1}, 15, v{ln}\nv_lshlrev_b32 v{T+2}, 8, v{l31}")
    for j in range(8):
        a(f"""v_add_u32 v{T}, {2*j}, v{hf}
        v_xor_b32 v{T}, v{T}, v{T+1}
        v_lshl_add_u32 v{aW[j]}, v{T}, 4, v{T+2}""")
    a(f"""s_lshl_b32 s{t0}, s{sodd}, 9
    s_add_u32 s{t0}, s{t0}, {KVB}
    v_add_u32 v{aKm}, s{t0}, v{gZ}
    s_cmp_eq_u32 s{sodd}, 0
    s_cselect_b32 s{t0}, 1024, 8
    s_cselect_b32 s{t1}, 0, 4
    s_cselect_b32 s{t2}, 0, 16
    s_add_u32 s{t0}, s{t0}, {KVB}
    v_cmp_gt_u32 vcc, 32, v{ln}
    v_mov_b32 v{T+4}, {ONES}
    v_add_u32 v{T}, s{t0}, v{gZ}""")
    for s in range(4):
        a(f"v_cndmask_b32 v{aKr[s]}, v{T+4}, v{T}, vcc")
        if s < 3: a(f"v_add_u32 v{T}, 12288, v{T}")
    a(f"""v_and_b32 v{T}, 3, v{l31}
    v_bfe_u32 v{T+1}, v{l31}, 2, 1
    v_bfe_u32 v{T+2}, v{l31}, 3, 1
    v_lshl_add_u32 v{T}, v{T+1}, 3, v{T}
    v_lshl_add_u32 v{T}, v{T+2}, 2, v{T}
    v_add_u32 v{T}, s{t1}, v{T}
    v_subrev_u32 v{T+1}, s{t2}, v{l31}
    v_cmp_gt_u32 vcc, 16, v{l31}
    v_mul_u32_u24 v{T+2}, 320, v{hf}
    v_add_u32 v{T+2}, {KVB+6144}, v{T+2}
    v_cndmask_b32 v{T}, v{T+1}, v{T}, vcc
    v_cmp_gt_u32 vcc, 20, v{l31}
    v_lshl_add_u32 v{T}, v{T}, 4, v{T+2}
    s_nop 0""")
    for s in range(4):
        a(f"v_cndmask_b32 v{aV[s]}, v{T+4}, v{T}, vcc")
        if s < 3: a(f"v_add_u32 v{T}, 12288, v{T}")
    for i in range(4): a(f"v_mov_b32 v{T+i}, {0 if '0' in X else 0x3f803f80}")
    a(f"v_lshl_add_u32 v{T+4}, v0, 4, v{T+4}\nv_mov_b32 v{T+5}, {FLAG}\nv_mov_b32 v{T+6}, 0")
    a.ds(f"ds_write_b128 v{T+4}, {V(T,4)}"); a.ds(f"ds_write_b128 v{T+4}, {V(T,4)} offset:1024"); a.ds(f"ds_write_b32 v{T+5}, v{T+6}")
    for r in list(range(O[0], O[0]+16)) + list(range(O[1], O[1]+16)) + list(range(SB[1]+8, SB[1]+16)) + list(range(V2[1], V2[1]+4)) + list(range(W1[1], W1[1]+4)):
        a(f"v_mov_b32 v{r}, 0")
    for i in range(4): a(f"v_accvgpr_write_b32 a{Z[15]+i}, 0")
    a.need(vm=['b']); mkP()
    for tb in range(2):
        a(f"v_lshlrev_b32 v{G[tb]}, 16, v{bs[tb]}")
        for i in range(1, 16): a(f"v_mov_b32 v{G[tb]+i}, v{G[tb]}")
    a.drain(vm=False)
    a("s_barrier"); stamp(a, 1); a("s_waitcnt lgkmcnt(0)" if PROF else "")
    def rdKm(kb): 'K' in X or a.ds(f"ds_read_b128 {V(Km[kb%2],4)}, v{aKm} offset:{(kb//4%4)*12288 + kb%4*1536}", ('Km', kb))
    def rdKr(kb): 'K' in X or a.ds(f"ds_read_b64 {V(Kr[kb%2],2)}, v{aKr[kb//4%4]} offset:{kb%4*1536}", ('Kr', kb))
    def rdV(h, kb): 'V' in X or a.ds(f"ds_read_b128 {V((V1,V2)[h][kb%2],4)}, v{aV[kb//4%4]} offset:{kb%4*1280 + 640*h}", ('V', h, kb))
    def rdW(tb, n): 'W' in X or a.ds(f"ds_read_b128 {V((W0,W1)[tb][n%2],4)}, v{aW[n%8]} offset:{(n//8%4)*16384 + 8192*tb}", ('W', tb, n))
    def mM(n): 'M' in X or a(f"v_mfma_f32_32x32x16_bf16 {V(SB[n%2],16)}, {V(Km[n//2%2],4)}, {V(Qm[n%2],4)}, 0")
    def mm(n): 'm' in X or a(f"v_mfma_f32_32x32x8_bf16 {V(SB[n%2],16)}, {V(Kr[n//2%2],2)}, {V(Qr[n%2],2)}, {V(SB[n%2],16)}")
    def mS(h, n): 'S' in X or a(f"v_smfmac_f32_32x32x32_bf16 {V(O[n%2],16)}, {V((V1,V2)[h][n//2%2],4)}, {V(SB[n%2]+8*h,8)}, v{idx}")
    def mG(tb, n): 'G' in X or a(f"v_mfma_f32_32x32x16_bf16 {V(G[tb],16)}, {A(Z[n%16],4)}, {V((W0,W1)[tb][n%2],4)}, {V(G[tb],16)}")
    rdKm(0); rdKr(0); rdW(0, 0); rdV(0, 0); rdV(1, 0)
    a.need(lg=[('Kr', 0)])
    mM(0); a("s_nop 1"); mm(0); a("s_nop 7\ns_nop 3")
    a(f"{N}_loop:")
    def body(it):
        for t in range(32):
            n = it * 32 + t; kb = n // 2; st = n // 8; tt = t % 8; ev = t % 2 == 0
            ex = lambda lo, hi: [a(f"v_exp_f32 v{SB[n%2]+i}, v{SB[n%2]+i}") for i in range(lo, hi) if 'E' not in X]
            sF, sA, sC, sE = [], [], [], []
            if t == 13: sF.append(f"s_cbranch_scc1 {N}_sw\n{N}_swr:")
            if tt == 5: sF.append(f"s_add_u32 s{oW}, s{oW}, s{incW}")
            if t in (21, 29): sA.append(f"s_add_u32 s{oP}, s{oP}, 4096"); sC.append(f"s_add_u32 m0, s{mP}, s{oP}")
            if tt == 6: sC.append(f"s_add_u32 m0, s{mW}, {(st+3)%4*16384}")
            if tt == 2: sA.append(f"s_add_u32 s{oKV}, s{oKV}, s{incKV}"); sC.append(f"s_add_u32 m0, s{mKV}, {(st+2)%4*12288}")
            if (n + ZL) % 4 == 0: sF.append(f"s_add_u32 s{oZ}, s{oZ}, 4096")
            cmp3 = f"s_cmp_eq_u32 s{cnt}, 3"
            if t == 0: sA.append(cmp3); sC.append(f"s_cselect_b32 s{rE+2}, s{szE}, 0")
            if t == 12: sA.append(cmp3)
            if t == 31 - ZL: sF.append(cmp3); sC.append(f"s_cselect_b32 s{rZ+2}, 0, s{rZ+2}")
            if t == 28: sA.append(f"s_add_u32 s{cnt}, s{cnt}, 1")
            if t == 31: sC.append(f"s_cmp_lt_u32 s{cnt}, 4")
            mG(1, n - 1); a.need(lg=[('V', 1, (n - 1) // 2)]); [a(x) for x in sF]
            rdW(1, n); ex(0, 3)
            mS(1, n - 1); a.need(lg=[('Km', (n + 1) // 2)], vm=[('D', st + 1)] if tt == 6 else []); [a(x) for x in sA]
            if tt == 6 and 'B' not in X: a("s_barrier")
            ldZ(n + ZL); ex(3, 5)
            mM(n + 1); a.need(lg=[('W', 0, n)], vm=[('Z', n)])
            if ev: rdKm(kb + 1); rdKr(kb + 1)
            else: rdV(0, kb + 1); rdV(1, kb + 1)
            ex(5, 7)
            mG(0, n); a.need(lg=[('V', 0, kb), ('Kr', (n + 1) // 2)]); [a(x) for x in sC]
            rdW(0, n + 1); ex(7, 10)
            mm(n + 1); ex(10, 14)
            mS(0, n); a.need(lg=[('W', 1, n)]); [a(x) for x in sE]
            if tt >= 6: dmaW(tt - 6, st + 3)
            elif tt < 2: dmaW(tt + 2, st + 2)
            elif tt < 5: dmaKV(tt - 2, st + 2)
            elif t < 16: ldE(t // 8, 0); ldE(t // 8, 1)
            else: a.vmem(f"buffer_load_dwordx4 v{gP}, {S(rP,4)}, s{oP} offen lds", 'pf')
            ex(14, 16)
        a(f"s_cbranch_scc1 {N}_loop")
    a.loop(body, 3)
    a(f"{N}_lx:"); mG(1, 127); dmaW(2, 18); mS(1, 127); dmaW(3, 18); stamp(a, 2)
    U = [SB[0], V1[0]]
    a(f"s_mov_b32 s{t0}, 0x2b800000\ns_mov_b32 s{t1}, 0x53800000\ns_mov_b32 s{t2}, 0xffff0000")
    def unpack(tb, d):
        for i in range(8): a(f"v_lshlrev_b32 v{d+2*i}, 16, v{Z1[tb]+i}\nv_and_b32 v{d+2*i+1}, s{t2}, v{Z1[tb]+i}")
    a.need(vm=['z1']); a.lg = []; a("s_waitcnt lgkmcnt(0)")
    unpack(0, SB[0])
    sA, sB = a.sg(2), a.sg(2)
    a(f"""v_cmp_le_f32 vcc, s{t0}, v{O[0]+12}
    v_cmp_ge_f32 {S(sA,2)}, s{t1}, v{O[0]+12}
    s_and_b64 {S(sB,2)}, vcc, {S(sA,2)}
    v_cmp_le_f32 vcc, s{t0}, v{O[1]+12}
    v_cmp_ge_f32 {S(sA,2)}, s{t1}, v{O[1]+12}
    s_and_b64 {S(sB,2)}, vcc, {S(sB,2)}
    s_and_b64 {S(sB,2)}, {S(sA,2)}, {S(sB,2)}
    v_mov_b32 v{T+5}, {FLAG}
    s_cmp_eq_u64 {S(sB,2)}, -1
    s_cbranch_scc1 {N}_ok
    ds_write_b32 v{T+5}, v{T+5}
    s_waitcnt lgkmcnt(0)
    {N}_ok:
    s_barrier
    ds_read_b32 v{T+6}, v{T+5}""")
    unpack(1, SB[1])
    a(f"s_mov_b32 s{t0}, {WS_H}\ns_mov_b32 s{t1}, {WS_H + 55296}")
    for tb in range(2):
        for i in range(8): a(f"v_pk_mul_f32 {V(G[tb]+2*i,2)}, {V(G[tb]+2*i,2)}, {V(SB[tb]+2*i,2)}")
        for i in range(8): a(f"v_cvt_pk_bf16_f32 v{SB[tb]+i}, v{G[tb]+2*i}, v{G[tb]+2*i+1}")
        for r in range(2): a(f"buffer_store_dwordx4 {V(SB[tb]+4*r,4)}, v{gE}, {S(rE,4)}, s{t0+tb} offen offset:{1024*r}{WT}")
    a(f"""s_waitcnt lgkmcnt(0)
    s_barrier
    v_readfirstlane_b32 s{t2}, v{T+6}
    s_mov_b32 s{t0}, 40960
    s_andn2_b32 s{t2}, s{t2}, s{retry}
    {'s_nop 0 ;' if X else ''}s_cbranch_scc1 {N}_fall""")
    for q in range(2):
        a(f"v_rcp_f32 v{T}, v{O[q]+12}\ns_nop 0")
        for i in range(12): a(f"v_mul_f32 v{O[q]+i}, v{O[q]+i}, v{T}")
        for i in range(6): a(f"v_cvt_pk_bf16_f32 v{G[q]+i}, v{O[q]+2*i}, v{O[q]+2*i+1}")
        so = f"s{t0}" if q else "0"
        a(f"buffer_store_dwordx4 {V(G[q],4)}, v{gOm}, {S(rO,4)}, {so} offen{WT}\nbuffer_store_dwordx2 {V(G[q]+4,2)}, v{gOr}, {S(rO,4)}, {so} offen{WT}")
    stamp(a, 3); a.vm = ['st']; nv, ns = a.nv, a.ns; a("s_nop 1")
    tail3(a, N, pX, pO, pWS, sw, shd, sqg, ln, sfree, 2); a.nv, a.ns = nv, ns
    a(f"""{N}_sw:
    s_mov_b64 {S(rW,2)}, {S(rP,2)}
    s_mov_b64 {S(rKV,2)}, {S(rP,2)}
    s_mov_b32 s{rW+2}, s{rP+2}
    s_mov_b32 s{rKV+2}, s{rP+2}
    s_movk_i32 s{incW}, 16384
    s_movk_i32 s{incKV}, 12288
    s_movk_i32 s{oW}, -16384
    s_movk_i32 s{oKV}, -12288""")
    for r in gW: a(f"v_add_u32 v{r}, s{mW}, v{gZ}")
    for r in gKV: a(f"v_add_u32 v{r}, s{mKV}, v{gZ}")
    a(f"v_lshlrev_b32 v254, 6, v0\nv_min_u32 v254, {N}_sw-{N}_lx, v254\nv_add_u32 v254, {N}_lx-{N}_pc, v254\nglobal_load_dword v255, v254, s[96:97]\ns_branch {N}_swr")
    mx = [G[0], G[0] + 1]; gK, gKr = G[0] + 2, G[0] + 3
    a(f"""{N}_fall:
    s_waitcnt vmcnt(0)
    s_mov_b32 s{retry}, -1
    s_lshl_b32 s{t0}, s{shd}, 18
    s_add_u32 s{rW}, s{pW}, s{t0}
    s_addc_u32 s{rW+1}, s{pW+1}, 0
    s_cmp_lt_u32 s{sqg}, 7
    s_cselect_b32 s{rW+2}, {64*4096}, 0
    s_mov_b64 {S(rKV,2)}, {S(pWS,2)}
    s_mov_b32 s{rKV+2}, {WS_Z1}
    s_mov_b32 s{incKV}, 5120
    s_cmp_lt_u32 s{sw}, 2
    s_cselect_b32 s{incKV}, 327680, s{incKV}
    s_mov_b32 s{rZ+2}, s{szZ}
    s_lshl_b32 s{t0}, s{sqg}, 2
    s_add_u32 s{t0}, s{t0}, s{sw}
    s_mul_i32 s{t0}, s{t0}, 163840
    v_subrev_u32 v{gK}, s{t0}, v{gQm}
    v_subrev_u32 v{gKr}, s{t0}, v{gQr}
    v_mov_b32 v{mx[0]}, 0xff800000
    v_mov_b32 v{mx[1]}, 0xff800000
    s_mov_b32 s{t0}, 40960
    {N}_fl:
    buffer_load_dwordx4 {V(Km[0],4)}, v{gK}, {S(rKV,4)}, s{t0} offen
    buffer_load_dwordx2 {V(Kr[0],2)}, v{gKr}, {S(rKV,4)}, s{t0} offen
    s_waitcnt vmcnt(0)""")
    mM(0); mM(1); mm(0); mm(1); a("s_nop 7\ns_nop 7")
    for q in range(2):
        for i in range(8): a(f"v_max3_f32 v{mx[q]}, v{SB[q]+2*i}, v{SB[q]+2*i+1}, v{mx[q]}")
    a(f"""s_add_u32 s{t0}, s{t0}, 81920
    s_cmp_lt_u32 s{t0}, {64*81920}
    s_cbranch_scc1 {N}_fl
    v_cmp_gt_u32 vcc, 32, v{ln}
    s_mov_b32 s{t2}, 0xffff0000""")
    for q in range(2):
        a(f"""v_mov_b32 v{T}, v{mx[q]}
        s_nop 1
        v_permlane32_swap_b32 v{T}, v{mx[q]}
        s_nop 1
        v_max_f32 v{T}, v{T}, v{mx[q]}
        v_sub_f32 v{T}, 0, v{T}
        v_and_b32 v{T+1}, s{t2}, v{T}
        v_sub_f32 v{T}, v{T}, v{T+1}
        v_and_b32 v{T+2}, s{t2}, v{T}
        v_sub_f32 v{T}, v{T}, v{T+2}
        v_lshrrev_b32 v{T+1}, 16, v{T+1}
        v_or_b32 v{T+1}, v{T+1}, v{T+2}
        v_lshrrev_b32 v{T}, 16, v{T}
        v_cndmask_b32 v{Qr[q]}, v{T+1}, v{Qr[q]}, vcc
        v_cndmask_b32 v{Qr[q]+1}, v{T}, v{Qr[q]+1}, vcc""")
    a(f"s_barrier\ns_branch {N}_restart\n{N}_end:\ns_endpgm")
    return a
```

```python
from asm import *
WS_FL = 0x1980000
E_ = lambda k, d: int(os.environ.get(k, d))
P1, PC, A0, LR = E_('P1', 14), E_('PC', 8), E_('A0', 12), float(os.environ.get('LR', 3.5))
def tail3(a, N, pX, pO, pWS, sw, srb, scb, ln, sfree, vfree):
    a.ns, a.nv = sfree, vfree
    rA, rW, rX, rO = [a.sg(4) for _ in range(4)]
    t0, t1, t2, oA, oW, mW = [a.sg() for _ in range(6)]
    s0, y0 = a.v(40), a.v(40); Wf = [a.v(4) for _ in range(10)]
    xr = a.v(10); gO, gH = a.v(2), a.v(2); gW, gX, gF, aE, aF = [a.v() for _ in range(5)]; aW = [a.v() for _ in range(4)]; T = a.v(20); xu = a.v(20); sp = a.sg()
    assert a.nv <= ln
    a.na = 192
    a(f"""{N}_tl:
    s_mul_i32 s{t0}, s{scb}, {47*5120}
    s_add_u32 s{t0}, s{t0}, {WS_WT}
    v_lshlrev_b32 v{gW}, 4, v0
    s_lshl_b32 s{mW}, s{sw}, 10""")
    srd(a, rW, pWS, f"s{t0}", 47 * 5120)
    def dW(c, i):
        a(f"s_add_u32 m0, s{mW}, {(c % 8) * 20480 + i * 4096}\ns_mov_b32 s{oW}, {c * 20480 + i * 4096}")
        a.vmem(f"buffer_load_dwordx4 v{gW}, {S(rW,4)}, s{oW} offen lds", ('C', c))
    PL = [divmod(j, 5) for j in list(range(12, 16)) + list(range(22, 32))]
    def lA(p, r):
        if r == 0: a(f"s_mov_b32 s{oA}, {p * 4096}")
        if p == 13: a(f"v_or_b32 v{gH+r}, s{sp}, v{gH+r}")
        a.vmem(f"buffer_load_dwordx4 {A(8*p+4*r,4)}, v{(gH if p < 14 else gO)+r}, {S(rA,4)}, s{oA} offen sc1", ('A', p))
    su = [x.strip() for x in f"""s_and_b32 s{sp}, s{sw}, 1
    s_mul_i32 s{t0}, s{sp}, 5120
    v_lshl_add_u32 v{aW[0]}, v{ln}, 4, s{t0}
    v_add_u32 v{aW[1]}, 0x10000, v{aW[0]}
    v_add_u32 v{aW[2]}, 0x20000, v{aW[0]}
    s_mul_i32 s{t0}, s{sp}, 163840
    v_subrev_u32 v{aW[3]}, s{t0}, v{aW[2]}
    v_add_u32 v{aW[3]}, {158720 - 0x20000}, v{aW[3]}
    s_mul_i32 s{t0}, s{sw}, 5120
    s_xor_b32 s{t1}, s{sw}, 1
    s_mul_i32 s{t1}, s{t1}, 5120
    s_add_u32 s{t0}, s{t0}, 81920
    s_add_u32 s{t1}, s{t1}, 81920
    v_lshl_add_u32 v{aE}, v{ln}, 4, s{t0}
    v_lshl_add_u32 v{aF}, v{ln}, 4, s{t1}
    s_lshr_b32 s{t0}, s{srb}, 2
    s_lshl_b32 s{t0}, s{t0}, 5
    v_add_u32 v{T}, s{t0}, v{ln}
    v_min_u32 v{T+1}, 38, v{ln}
    v_cmp_gt_u32 vcc, 32, v{ln}
    v_lshl_add_u32 v{T+1}, v{T+1}, 5, s{srb}
    v_subrev_u32 v{T+1}, 1024, v{T+1}
    v_cndmask_b32 v{gF}, v{T+1}, v{T}, vcc
    v_lshlrev_b32 v{gF}, 7, v{gF}
    v_add_u32 v{gF}, {WS_FL}, v{gF}
    s_lshl_b32 s{t0}, s{scb}, 5
    s_add_u32 s{t0}, s{t0}, s{srb}
    s_lshl_b32 s{t0}, s{t0}, 7
    s_add_u32 s{t0}, s{t0}, {WS_FL}
    v_mov_b32 v{T+4}, s{t0}
    v_mov_b32 v{T+5}, 1
    v_and_b32 v{T}, 15, v0
    v_bfe_u32 v{T+1}, v0, 4, 2
    v_bfe_u32 v{T+2}, v0, 6, 1
    v_lshl_add_u32 v{T+2}, v{T+2}, 4, v{T}
    v_lshlrev_b32 v{T+2}, 4, v{T+2}
    v_lshl_add_u32 v{T+2}, v{T+1}, 9, v{T+2}
    v_lshl_add_u32 v{T+2}, s{sp}, 11, v{T+2}
    s_mul_i32 s{sp}, s{sp}, {OOB}
    s_lshr_b32 s{t1}, s{sw}, 1
    s_lshl_b32 s{t2}, s{srb}, 1
    s_add_u32 s{t1}, s{t1}, s{t2}
    s_mul_i32 s{t2}, s{t1}, 40960
    s_add_u32 s{t2}, s{t2}, {WS_O - 14*4096}
    v_add_u32 v{gO}, s{t2}, v{T+2}
    s_mul_i32 s{t2}, s{t1}, 55296
    s_add_u32 s{t2}, s{t2}, {WS_H}
    v_add_u32 v{gH}, s{t2}, v{T+2}
    v_xor_b32 v{gO+1}, 256, v{gO}
    v_xor_b32 v{gH+1}, 256, v{gH}
    s_lshl_b32 s{t1}, s{srb}, 2
    s_add_u32 s{t1}, s{t1}, s{sw}
    s_mul_i32 s{t1}, s{t1}, {16*1280}
    s_mul_i32 s{t2}, s{scb}, 160
    s_add_u32 s{t1}, s{t1}, s{t2}
    v_mul_u32_u24 v{T}, 1280, v{T}
    v_mul_u32_u24 v{T+1}, 40, v{T+1}
    v_add3_u32 v{gX}, v{T}, v{T+1}, s{t1}""".split("\n")]
    for c, i in PL[:P1]: dW(c, i); [a(su.pop(0)) for _ in range(4) if su]
    while su: a(su.pop(0))
    srd(a, rA, pWS, 0, WS_PROF); srd(a, rX, pX, 0, 2621440); srd(a, rO, pO, 0, 2621440)
    for o, n in ((0, 4), (4, 4), (8, 2)): a.vmem(f"buffer_load_dwordx{n} {V(xr+o,n)}, v{gX}, {S(rX,4)}, 0 offen offset:{4*o}", 'x')
    a.need(vm=['st']); a("s_barrier"); stamp(a, 4)
    a(f"""s_cmp_lg_u32 s{sw}, 0
    s_cbranch_scc1 {N}_nf
    s_mov_b64 exec, 1
    buffer_store_dword v{T+5}, v{T+4}, {S(rA,4)}, 0 offen sc0 sc1
    s_mov_b64 exec, -1
    {N}_nf:""")
    for c, i in PL[P1:]: dW(c, i)
    a(f"""s_mov_b32 s{t2}, 0
    s_cmp_lg_u32 s{sw}, 0
    s_cbranch_scc1 {N}_p1
    {N}_p0:
    buffer_load_dword v{T}, v{gF}, {S(rA,4)}, 0 offen sc1
    s_add_u32 s{t2}, s{t2}, 0x2000
    s_cbranch_scc1 {N}_p1
    s_waitcnt vmcnt(0)
    v_cmp_ne_u32 vcc, 1, v{T}
    s_nop 1
    s_cbranch_vccnz {N}_p0
    {N}_p1:""")
    a.drain(); a("s_barrier"); stamp(a, 5)
    L = []
    for p in range(24):
        for c in {15: (8,), 17: (9,), 19: (10,), 21: (11,)}.get(p, ()): L += [(40 if c < 10 else 100, ('C', c), lambda c=c, i=i: dW(c, i)) for i in range(5 if c < 11 else 4)]
        L += [(0, ('A', p), lambda p=p, r=r: lA(p, r)) for r in range(2)]
    RA = 6
    def rd(g):
        p, nt = divmod(g, 5); o = ((10 * p - (5 if p >= 14 else 0) + nt) % 160) * 1024
        if g < 120: a.ds(f"ds_read_b128 {V(Wf[g % 10],4)}, v{aW[3] if p == 16 else aW[o >> 16]} offset:{nt * 1024 if p == 16 else o & 65535}", ('W', g))
    for i in range(A0):
        L.pop(0)[2]()
        if i < RA: rd(i)
        if i < 10: a(f"v_lshlrev_b32 v{xu+2*i}, 16, v{xr+i}\nv_and_b32 v{xu+2*i+1}, 0xffff0000, v{xr+i}")
    a(f"s_mov_b32 s{t0}, 0xbfb8aa3b\ns_mov_b32 s{t1}, 0xffff0000")
    wrE = lambda r, i, o: a.ds(f"ds_write_b128 v{aE}, {V(r+20+4*i,4)} offset:{o + 1024*i}", 'ew')
    rdE = lambda r, i, o: a.ds(f"ds_read_b128 {V(r+20+4*i,4)}, v{aF} offset:{o + 1024*i}", 'er')
    Q = []
    for b in range(0, 20, 4):
        R = range(b, b + 4)
        Q += [f"v_add_f32 v{y0+i}, v{y0+i}, v{y0+20+i}" for i in R]
        Q += [f"v_mul_f32 v{T+i}, s{t0}, v{y0+i}" for i in R] + [f"v_exp_f32 v{T+i}, v{T+i}" for i in R] + [f"v_add_f32 v{T+i}, 1.0, v{T+i}" for i in R]
        Q += [f"v_rcp_f32 v{T+i}, v{T+i}" for i in R] + [f"v_mul_f32 v{y0+i}, v{y0+i}, v{T+i}" for i in R]
    for f in range(240):
        p = f // 10; g, r = f // 2, f % 2
        if p in (13, 23): g, r = 5 * p + f % 5, 1 - f % 10 // 5
        d = (y0 if p < 14 else s0) + 20 * r + 4 * (g % 5)
        vm = [('A', p)] if f % 10 == 0 else []; lg = [('W', g), ('W', g + 1)] if f % 4 == 0 or p in (13, 23) else []
        arr = {2 * (10 * c - RA): (c,) for c in range(8, 12)}.get(f, ())
        vm += [('C', c) for c in arr]
        if 8 in arr: lg += ['ew']
        if f == 158: lg += ['er']
        assert not [1 for e, t, _ in L if t in vm], (f, vm)
        a.need(lg=lg, vm=vm)
        if arr or f in (40, 100): a("s_barrier")
        if f == 0: stamp(a, 6)
        if E_('FS', 0) and f in (40, 100, 140, 160, 200): stamp(a, 1 + (40, 100, 140, 160, 200).index(f))
        a(f"v_mfma_f32_16x16x32_bf16 {V(d,4)}, {V(Wf[g % 10],4)}, {A(8*p+4*r,4)}, {V(d,4) if p not in (0, 14) else 0}")
        n1 = len(a.L)
        if f % 2 == 0: rd(f // 2 + RA)
        if 137 <= f < 146 and f % 2: wrE(y0, (f - 137) // 2, 0)
        if 148 <= f < 153: rdE(y0, f - 148, 0)
        if f >= 237: wrE(s0, f - 237, 20480)
        if int((f + 1) / LR) > int(f / LR) and L:
            k = next(i for i, e in enumerate(L + [(0,)]) if e[0] <= f)
            if k < len(L): n0 = len(a.L); L.pop(k)[2](); a.L = a.L[:n0] if E_('NL', 0) else a.L
        bud = E_('QB', 3) - (len(a.L) - n1) - (f % 4 == 3)
        while f >= 158 and Q and bud >= 1 + ('exp' in Q[0] or 'rcp' in Q[0]): bud -= 1 + ('exp' in Q[0] or 'rcp' in Q[0]); a(Q.pop(0))
    print("k3 left", len(Q)); Q2 = Q; Q = []
    assert not Q and not L
    stamp(a, 7); wrE(s0, 3, 20480); wrE(s0, 4, 20480); [a(x) for x in Q2]; a.need(lg=['ew']); a("s_barrier")
    for i in range(5): rdE(s0, i, 20480)
    for i in range(10): a(f"v_pk_fma_f32 {V(T+2*i,2)}, {V(s0+2*i,2)}, {V(y0+2*i,2)}, {V(xu+2*i,2)}")
    a.need(lg=['er'])
    for i in range(10): a(f"v_pk_fma_f32 {V(s0+2*i,2)}, {V(s0+20+2*i,2)}, {V(y0+2*i,2)}, {V(T+2*i,2)}")
    for o, n in ((0, 4), (4, 4), (8, 2)):
        for i in range(o, o + n): a(f"v_cvt_pk_bf16_f32 v{xr+i}, v{s0+2*i}, v{s0+2*i+1}")
        a(f"buffer_store_dwordx{n} {V(xr+o,n)}, v{gX}, {S(rO,4)}, 0 offen offset:{4*o}{os.environ.get('WO','')}")
    stamp(a, 8); a("s_waitcnt vmcnt(0)"); stamp_out(a, 2, 9); a("s_endpgm")
```

```python
from asm import *
WS_FL = 0x1980000
E_ = lambda k, d: int(os.environ.get(k, d))
P1, PC, A0, LR = E_('P1', 14), E_('PC', 8), E_('A0', 12), float(os.environ.get('LR', 3.5))
def tail3(a, N, pX, pO, pWS, sw, srb, scb, ln, sfree, vfree):
    a.ns, a.nv = sfree, vfree
    rA, rW, rX, rO = [a.sg(4) for _ in range(4)]
    t0, t1, t2, oA, oW, mW = [a.sg() for _ in range(6)]
    s0, y0 = a.v(40), a.v(40); Wf = [a.v(4) for _ in range(10)]
    xr = a.v(10); gO, gH = a.v(2), a.v(2); gW, gX, gF, aE, aF = [a.v() for _ in range(5)]; aW = [a.v() for _ in range(4)]; T = a.v(20); xu = a.v(20); sp = a.sg()
    assert a.nv <= ln
    a.na = 192
    a(f"""{N}_tl:
    s_mul_i32 s{t0}, s{scb}, {47*5120}
    s_add_u32 s{t0}, s{t0}, {WS_WT}
    v_lshlrev_b32 v{gW}, 4, v0
    s_lshl_b32 s{mW}, s{sw}, 10""")
    srd(a, rW, pWS, f"s{t0}", 47 * 5120)
    def dW(c, i):
        a(f"s_add_u32 m0, s{mW}, {(c % 8) * 20480 + i * 4096}\ns_mov_b32 s{oW}, {c * 20480 + i * 4096}")
        a.vmem(f"buffer_load_dwordx4 v{gW}, {S(rW,4)}, s{oW} offen lds", ('C', c))
    PL = [divmod(j, 5) for j in list(range(12, 16)) + list(range(22, 32))]
    def lA(p, r):
        if r == 0: a(f"s_mov_b32 s{oA}, {p * 4096}")
        if p == 13: a(f"v_or_b32 v{gH+r}, s{sp}, v{gH+r}")
        a.vmem(f"buffer_load_dwordx4 {A(8*p+4*r,4)}, v{(gH if p < 14 else gO)+r}, {S(rA,4)}, s{oA} offen sc1", ('A', p))
    su = [x.strip() for x in f"""s_and_b32 s{sp}, s{sw}, 1
    s_mul_i32 s{t0}, s{sp}, 5120
    v_lshl_add_u32 v{aW[0]}, v{ln}, 4, s{t0}
    v_add_u32 v{aW[1]}, 0x10000, v{aW[0]}
    v_add_u32 v{aW[2]}, 0x20000, v{aW[0]}
    s_mul_i32 s{t0}, s{sp}, 163840
    v_subrev_u32 v{aW[3]}, s{t0}, v{aW[2]}
    v_add_u32 v{aW[3]}, {158720 - 0x20000}, v{aW[3]}
    s_mul_i32 s{t0}, s{sw}, 5120
    s_xor_b32 s{t1}, s{sw}, 1
    s_mul_i32 s{t1}, s{t1}, 5120
    s_add_u32 s{t0}, s{t0}, 81920
    s_add_u32 s{t1}, s{t1}, 81920
    v_lshl_add_u32 v{aE}, v{ln}, 4, s{t0}
    v_lshl_add_u32 v{aF}, v{ln}, 4, s{t1}
    s_lshr_b32 s{t0}, s{srb}, 2
    s_lshl_b32 s{t0}, s{t0}, 5
    v_add_u32 v{T}, s{t0}, v{ln}
    v_min_u32 v{T+1}, 38, v{ln}
    v_cmp_gt_u32 vcc, 32, v{ln}
    v_lshl_add_u32 v{T+1}, v{T+1}, 5, s{srb}
    v_subrev_u32 v{T+1}, 1024, v{T+1}
    v_cndmask_b32 v{gF}, v{T+1}, v{T}, vcc
    v_lshlrev_b32 v{gF}, 7, v{gF}
    v_add_u32 v{gF}, {WS_FL}, v{gF}
    s_lshl_b32 s{t0}, s{scb}, 5
    s_add_u32 s{t0}, s{t0}, s{srb}
    s_lshl_b32 s{t0}, s{t0}, 7
    s_add_u32 s{t0}, s{t0}, {WS_FL}
    v_mov_b32 v{T+4}, s{t0}
    v_mov_b32 v{T+5}, 1
    v_and_b32 v{T}, 15, v0
    v_bfe_u32 v{T+1}, v0, 4, 2
    v_bfe_u32 v{T+2}, v0, 6, 1
    v_lshl_add_u32 v{T+2}, v{T+2}, 4, v{T}
    v_lshlrev_b32 v{T+2}, 4, v{T+2}
    v_lshl_add_u32 v{T+2}, v{T+1}, 9, v{T+2}
    v_lshl_add_u32 v{T+2}, s{sp}, 11, v{T+2}
    s_mul_i32 s{sp}, s{sp}, {OOB}
    s_lshr_b32 s{t1}, s{sw}, 1
    s_lshl_b32 s{t2}, s{srb}, 1
    s_add_u32 s{t1}, s{t1}, s{t2}
    s_mul_i32 s{t2}, s{t1}, 40960
    s_add_u32 s{t2}, s{t2}, {WS_O - 14*4096}
    v_add_u32 v{gO}, s{t2}, v{T+2}
    s_mul_i32 s{t2}, s{t1}, 55296
    s_add_u32 s{t2}, s{t2}, {WS_H}
    v_add_u32 v{gH}, s{t2}, v{T+2}
    v_xor_b32 v{gO+1}, 256, v{gO}
    v_xor_b32 v{gH+1}, 256, v{gH}
    s_lshl_b32 s{t1}, s{srb}, 2
    s_add_u32 s{t1}, s{t1}, s{sw}
    s_mul_i32 s{t1}, s{t1}, {16*1280}
    s_mul_i32 s{t2}, s{scb}, 160
    s_add_u32 s{t1}, s{t1}, s{t2}
    v_mul_u32_u24 v{T}, 1280, v{T}
    v_mul_u32_u24 v{T+1}, 40, v{T+1}
    v_add3_u32 v{gX}, v{T}, v{T+1}, s{t1}""".split("\n")]
    for c, i in PL[:P1]: dW(c, i); [a(su.pop(0)) for _ in range(4) if su]
    while su: a(su.pop(0))
    srd(a, rA, pWS, 0, WS_PROF); srd(a, rX, pX, 0, 2621440); srd(a, rO, pO, 0, 2621440)
    for o, n in ((0, 4), (4, 4), (8, 2)): a.vmem(f"buffer_load_dwordx{n} {V(xr+o,n)}, v{gX}, {S(rX,4)}, 0 offen offset:{4*o}", 'x')
    a.need(vm=['st']); a("s_barrier"); stamp(a, 4)
    a(f"""s_cmp_lg_u32 s{sw}, 0
    s_cbranch_scc1 {N}_nf
    s_mov_b64 exec, 1
    buffer_store_dword v{T+5}, v{T+4}, {S(rA,4)}, 0 offen sc0 sc1
    s_mov_b64 exec, -1
    {N}_nf:""")
    for c, i in PL[P1:]: dW(c, i)
    a(f"""s_mov_b32 s{t2}, 0
    s_cmp_lg_u32 s{sw}, 0
    s_cbranch_scc1 {N}_p1
    {N}_p0:
    buffer_load_dword v{T}, v{gF}, {S(rA,4)}, 0 offen sc1
    s_add_u32 s{t2}, s{t2}, 0x2000
    s_cbranch_scc1 {N}_p1
    s_waitcnt vmcnt(0)
    v_cmp_ne_u32 vcc, 1, v{T}
    s_nop 1
    s_cbranch_vccnz {N}_p0
    {N}_p1:""")
    a.drain(); a("s_barrier"); stamp(a, 5)
    L = []
    for p in range(24):
        for c in {15: (8,), 17: (9,), 19: (10,), 21: (11,)}.get(p, ()): L += [(40 if c < 10 else 100, ('C', c), lambda c=c, i=i: dW(c, i)) for i in range(5 if c < 11 else 4)]
        L += [(0, ('A', p), lambda p=p, r=r: lA(p, r)) for r in range(2)]
    RA = 6
    def rd(g):
        p, nt = divmod(g, 5); o = ((10 * p - (5 if p >= 14 else 0) + nt) % 160) * 1024
        if g < 120: a.ds(f"ds_read_b128 {V(Wf[g % 10],4)}, v{aW[3] if p == 16 else aW[o >> 16]} offset:{nt * 1024 if p == 16 else o & 65535}", ('W', g))
    for i in range(A0):
        L.pop(0)[2]()
        if i < RA: rd(i)
        if i < 10: a(f"v_lshlrev_b32 v{xu+2*i}, 16, v{xr+i}\nv_and_b32 v{xu+2*i+1}, 0xffff0000, v{xr+i}")
    a(f"s_mov_b32 s{t0}, 0xbfb8aa3b\ns_mov_b32 s{t1}, 0xffff0000")
    wrE = lambda r, i, o: a.ds(f"ds_write_b128 v{aE}, {V(r+20+4*i,4)} offset:{o + 1024*i}", 'ew')
    rdE = lambda r, i, o: a.ds(f"ds_read_b128 {V(r+20+4*i,4)}, v{aF} offset:{o + 1024*i}", 'er')
    Q = []
    for b in range(0, 20, 4):
        R = range(b, b + 4)
        Q += [f"v_add_f32 v{y0+i}, v{y0+i}, v{y0+20+i}" for i in R]
        Q += [f"v_mul_f32 v{T+i}, s{t0}, v{y0+i}" for i in R] + [f"v_exp_f32 v{T+i}, v{T+i}" for i in R] + [f"v_add_f32 v{T+i}, 1.0, v{T+i}" for i in R]
        Q += [f"v_rcp_f32 v{T+i}, v{T+i}" for i in R] + [f"v_mul_f32 v{y0+i}, v{y0+i}, v{T+i}" for i in R]
    for f in range(240):
        p = f // 10; g, r = f // 2, f % 2
        if p in (13, 23): g, r = 5 * p + f % 5, 1 - f % 10 // 5
        d = (y0 if p < 14 else s0) + 20 * r + 4 * (g % 5)
        vm = [('A', p)] if f % 10 == 0 else []; lg = [('W', g), ('W', g + 1)] if f % 4 == 0 or p in (13, 23) else []
        arr = {2 * (10 * c - RA): (c,) for c in range(8, 12)}.get(f, ())
        vm += [('C', c) for c in arr]
        if 8 in arr: lg += ['ew']
        if f == 158: lg += ['er']
        assert not [1 for e, t, _ in L if t in vm], (f, vm)
        a.need(lg=lg, vm=vm)
        if arr or f in (40, 100): a("s_barrier")
        if f == 0: stamp(a, 6)
        if E_('FS', 0) and f in (40, 100, 140, 160, 200): stamp(a, 1 + (40, 100, 140, 160, 200).index(f))
        a(f"v_mfma_f32_16x16x32_bf16 {V(d,4)}, {V(Wf[g % 10],4)}, {A(8*p+4*r,4)}, {V(d,4) if p not in (0, 14) else 0}")
        n1 = len(a.L)
        if f % 2 == 0: rd(f // 2 + RA)
        if 137 <= f < 146 and f % 2: wrE(y0, (f - 137) // 2, 0)
        if 148 <= f < 153: rdE(y0, f - 148, 0)
        if f >= 237: wrE(s0, f - 237, 20480)
        if int((f + 1) / LR) > int(f / LR) and L:
            k = next(i for i, e in enumerate(L + [(0,)]) if e[0] <= f)
            if k < len(L): n0 = len(a.L); L.pop(k)[2](); a.L = a.L[:n0] if E_('NL', 0) else a.L
        bud = E_('QB', 3) - (len(a.L) - n1) - (f % 4 == 3)
        while f >= 158 and Q and bud >= 1 + ('exp' in Q[0] or 'rcp' in Q[0]): bud -= 1 + ('exp' in Q[0] or 'rcp' in Q[0]); a(Q.pop(0))
    print("k3 left", len(Q)); Q2 = Q; Q = []
    assert not Q and not L
    stamp(a, 7); wrE(s0, 3, 20480); wrE(s0, 4, 20480); [a(x) for x in Q2]; a.need(lg=['ew']); a("s_barrier")
    for i in range(5): rdE(s0, i, 20480)
    for i in range(10): a(f"v_pk_fma_f32 {V(T+2*i,2)}, {V(s0+2*i,2)}, {V(y0+2*i,2)}, {V(xu+2*i,2)}")
    a.need(lg=['er'])
    for i in range(10): a(f"v_pk_fma_f32 {V(s0+2*i,2)}, {V(s0+20+2*i,2)}, {V(y0+2*i,2)}, {V(T+2*i,2)}")
    for o, n in ((0, 4), (4, 4), (8, 2)):
        for i in range(o, o + n): a(f"v_cvt_pk_bf16_f32 v{xr+i}, v{s0+2*i}, v{s0+2*i+1}")
        a(f"buffer_store_dwordx{n} {V(xr+o,n)}, v{gX}, {S(rO,4)}, 0 offen offset:{4*o}{os.environ.get('WO','')}")
    stamp(a, 8); a("s_waitcnt vmcnt(0)"); stamp_out(a, 2, 9)
    if E_('DBG', 0): a(f"""s_load_dwordx2 s[20:21], s[0:1], 72
        s_waitcnt vmcnt(0) lgkmcnt(0)
        s_cmp_lg_u32 s2, 8
        s_cbranch_scc1 {N}_end
        v_cmp_gt_u32 vcc, 6, v0
        v_lshlrev_b32 v1, 2, v0
        v_add_u32 v2, {WS_PROF + 65536 + 2048}, v1
        v_add_u32 v3, {WS_PROF + 2*65536 + 2048 - 24}, v1
        v_cndmask_b32 v2, v3, v2, vcc
        v_cmp_gt_u32 vcc, 16, v0
        s_and_saveexec_b64 s[22:23], vcc
        s_cbranch_execz {N}_end
        global_load_dword v2, v2, {S(pWS,2)} sc1
        s_waitcnt vmcnt(0)
        global_store_dword v1, v2, s[20:21]
        s_waitcnt vmcnt(0)""")
    a("s_endpgm")
```

```python
from asm import *
KVB, ONES, FLAG = 65536, 114688, 114688 + 5120
LDS2 = 163840
from k3f import tail3
X = os.environ.get('X2', ''); PFW = int(os.environ.get('PFW', '0')); PFO = int(os.environ.get('PFO', '0')); RM = int(os.environ.get('RM', '0')); WI = int(os.environ.get('WI', '0')); ZL = int(os.environ.get('ZL', '12'))
def k2():
    a = Asm(); N = "k2"
    head(a, N, 2); stamp0(a)
    pWS, pX, pO = [a.sg(2) for _ in range(3)]; sw, shd, sqg = [a.sg() for _ in range(3)]; sfree = a.ns; pW, pB, oE = [a.sg(2) for _ in range(3)]
    a(f"""s_load_dwordx2 {S(pW,2)}, s[0:1], 40
    s_load_dwordx2 {S(pB,2)}, s[0:1], 48
    s_load_dwordx2 {S(pWS,2)}, s[0:1], 80
    s_load_dwordx2 {S(pX,2)}, s[0:1], 0
    s_load_dwordx2 {S(pO,2)}, s[0:1], 64""")
    rW, rKV, rZ, rE, rO, rB = [a.sg(4) for _ in range(6)]
    sfb, sodd, sm5, t0, t1, t2, oW, oKV, oZ, incKV, mW, mKV, cnt, retry, szW, szZ, szE = [a.sg() for _ in range(17)]
    SB = [a.v(16), a.v(16)]; O = [a.v(16), a.v(16)]; G = [a.v(16), a.v(16)]
    Qm = [a.v(4), a.v(4)]; Qr = [a.v(2), a.v(2)]
    Km = [a.v(4), a.v(4)]; Kr = [a.v(2), a.v(2)]
    V1 = [a.v(4), a.v(4)]; V2 = [a.v(4), a.v(4)]; W0 = [a.v(4), a.v(4)]; W1 = [a.v(4), a.v(4)]
    Z1 = [a.v(8), a.v(8)]; bs = [a.v(), a.v()]
    aW = [a.v() for _ in range(8)]; aKm = a.v(); aKr = [a.v() for _ in range(4)]; aV = [a.v() for _ in range(4)]
    gW = [a.v() for _ in range(4)]; gKV = [a.v() for _ in range(3)]; gZ = a.v(); gQm, gQr, gE, gOm, gOr = [a.v() for _ in range(5)]
    idx, ln, l31, hf = [a.v() for _ in range(4)]; T = a.v(8, 4)
    Z = [a.a(4) for _ in range(16)]
    a(f"""v_lshrrev_b32 v{T}, 6, v0
    v_and_b32 v{ln}, 63, v0
    v_readfirstlane_b32 s{sw}, v{T}
    s_and_b32 s{t0}, s2, 7
    s_lshr_b32 s{t1}, s2, 6
    s_lshl_b32 s{t0}, s{t0}, 2
    s_add_u32 s{shd}, s{t0}, s{t1}
    s_bfe_u32 s{sqg}, s2, 0x30003
    s_lshl_b32 s{sfb}, s{sqg}, 2
    s_add_u32 s{sfb}, s{sfb}, s{sw}
    s_and_b32 s{sodd}, s{shd}, 1
    s_lshr_b32 s{sm5}, s{shd}, 1
    s_mul_i32 s{sm5}, s{sm5}, 2560
    s_mov_b32 s{retry}, 0
    v_and_b32 v{l31}, 31, v0
    v_bfe_u32 v{hf}, v0, 5, 1
    v_mov_b32 v{idx}, 0xdddddddd
    s_cmp_lt_u32 s{sqg}, 7
    s_cselect_b32 s{szW}, {64*4096}, 0
    s_cmp_lt_u32 s{sfb}, 27
    s_cselect_b32 s{szZ}, 0x20000, 0
    s_cselect_b32 s{szE}, {WS_WT}, 0
    s_lshl_b32 s{mW}, s{sw}, 12
    s_mul_i32 s{mKV}, s{sw}, 3072
    s_add_u32 s{mKV}, s{mKV}, {KVB}
    s_mov_b32 s{incKV}, 5120
    s_cmp_lt_u32 s{sw}, 2
    s_cselect_b32 s{incKV}, 327680, s{incKV}
    s_lshl_b32 s{t0}, s{shd}, 18
    s_lshl_b32 s{t1}, s{sfb}, 17
    s_add_u32 s{t1}, s{t1}, {WS_Z2}
    s_waitcnt lgkmcnt(0)""")
    srd(a, rW, pW, f"s{t0}", f"s{szW}"); srd(a, rKV, pWS, 0, WS_Z1); srd(a, rZ, pWS, f"s{t1}", f"s{szZ}")
    srd(a, rE, pWS, 0, f"s{szE}"); srd(a, rO, pWS, 0, WS_VT)
    a(f"""s_lshl_b32 s{t0}, s{sqg}, 2
    s_add_u32 s{t0}, s{t0}, s{sw}
    s_mul_i32 s{t1}, s{t0}, 163840
    s_add_u32 s{t1}, s{t1}, s{sm5}
    s_mul_i32 s{t2}, s{sodd}, 1536
    s_add_u32 s{t2}, s{t2}, s{t1}
    v_lshlrev_b32 v{gZ}, 4, v{ln}
    v_add_u32 v{gQm}, s{t2}, v{gZ}
    s_lshl_b32 s{t2}, s{sodd}, 3
    s_add_u32 s{t2}, s{t2}, s{t1}
    s_add_u32 s{t2}, s{t2}, 1024
    v_add_u32 v{gQr}, s{t2}, v{gZ}
    v_mov_b32 v{T}, {OOB}
    v_cmp_gt_u32 vcc, 32, v{ln}
    s_mov_b32 s{t2}, 81920
    s_nop 0
    v_cndmask_b32 v{gQr}, v{T}, v{gQr}, vcc""")
    for q in range(2):
        so = f"s{t2}" if q else "0"
        a.vmem(f"buffer_load_dwordx4 {V(Qm[q],4)}, v{gQm}, {S(rKV,4)}, {so} offen", ('Q', q))
        a.vmem(f"buffer_load_dwordx2 {V(Qr[q],2)}, v{gQr}, {S(rKV,4)}, {so} offen", ('Q', q))
    gOm, gOr = gQm, gQr
    a(f"{N}_restart:")
    a(f"""s_mul_i32 s{t0}, s{sw}, 163840
    s_add_u32 s{t0}, s{t0}, s{sm5}
    s_lshl_b32 s{t1}, s{sodd}, 10
    s_add_u32 s{t0}, s{t0}, s{t1}
    s_add_u32 s{t0}, s{t0}, 40960
    s_mul_i32 s{t1}, s{shd}, 81920
    s_mul_i32 s{t2}, s{sw}, 3072
    s_add_u32 s{t1}, s{t1}, s{t2}
    s_add_u32 s{t1}, s{t1}, {WS_VT - 6144}
    s_cmp_lt_u32 s{sw}, 2
    s_cselect_b32 s{t0}, s{t0}, s{t1}
    s_cselect_b32 s{t1}, 80384, 0
    s_cmp_eq_u32 s{sw}, 3
    s_cselect_b32 s{t2}, {OOB}, s{t1}
    v_add_u32 v{gKV[0]}, s{t0}, v{gZ}
    v_mul_lo_u32 v{T}, v{hf}, s{t1}
    v_add_u32 v{gKV[2]}, s{t2}, v{gKV[0]}
    v_add_u32 v{gKV[1]}, v{T}, v{gKV[0]}""")
    a(f"""v_lshrrev_b32 v{T}, 4, v{ln}
    v_and_b32 v{T+1}, 15, v{ln}
    s_lshl_b32 s{t0}, s{sw}, 16""")
    for i in range(4):
        a(f"""v_add_u32 v{T+2}, {4*i}, v{T}
        v_xor_b32 v{T+3}, v{T+1}, v{T+2}
        v_lshlrev_b32 v{T+2}, 12, v{T+2}
        v_lshl_add_u32 v{T+2}, v{T+3}, 4, v{T+2}
        v_add_u32 v{gW[i]}, s{t0}, v{T+2}""")
        if i: a(f"v_subrev_u32 v{gW[i]}, {1024*i}, v{gW[i]}")
    def dmaW(i, st): 'D' in X or a.vmem(f"buffer_load_dwordx4 v{gW[i]}, {S(rW,4)}, s{oW} offen offset:{1024*i} lds", ('D', st))
    def dmaKV(i, st): 'd' in X or a.vmem(f"buffer_load_dwordx4 v{gKV[i]}, {S(rKV,4)}, s{oKV} offen offset:{1024*i} lds", ('D', st))
    def ldZ(n): 'Z' in X or a.vmem(f"buffer_load_dwordx4 {A(Z[n%16],4)}, v{gZ}, {S(rZ,4)}, s{oZ} offen offset:{(n%4)*1024}", ('Z', n))
    incW, oP, mP = szW, a.sg(), a.sg()
    a(f"""s_mov_b32 s{oW}, 0
    s_mov_b32 s{oZ}, 0
    s_movk_i32 s{incW}, 256
    s_mov_b32 s{oKV}, 0
    s_mov_b32 m0, s{mKV}
    s_mov_b32 s{cnt}, 0""")
    for i in range(3): dmaKV(i, 0)
    srd(a, rB, pB, 0, 4096)
    a(f"s_mov_b32 m0, s{mW}\ns_lshl_b32 s{t0}, s{shd}, 7")
    for i in range(4): dmaW(i, 0)
    a(f"v_lshl_add_u32 v{T}, v{l31}, 1, s{t0}")
    ldZ(0); ldZ(1)
    for tb in range(2): a.vmem(f"buffer_load_ushort v{bs[tb]}, v{T}, {S(rB,4)}, 0 offen offset:{64*tb}", 'b')
    a(f"s_add_u32 s{oKV}, s{oKV}, s{incKV}\ns_add_u32 m0, s{mKV}, 12288\ns_add_u32 s{oW}, s{oW}, 256")
    for i in range(3): dmaKV(i, 1)
    a(f"s_add_u32 m0, s{mW}, 16384\ns_nop 0")
    for i in range(4): dmaW(i, 1)
    for n in range(2, ZL):
        if n % 4 == 0: a(f"s_add_u32 s{oZ}, s{oZ}, 4096")
        ldZ(n)
    a(f"s_add_u32 m0, s{mW}, 32768\ns_add_u32 s{oW}, s{oW}, 256")
    dmaW(0, 2); dmaW(1, 2)
    if int(os.environ.get('TX', '0')):
        a(f"s_mul_i32 s{t0}, s{shd}, 81920\nv_mov_b32 v254, s{t0}")
        for p in (pX, pO): a.vmem(f"global_load_dword v255, v254, {S(p,2)}", 'pf')
    a(f"""s_mul_i32 s{t0}, s{shd}, {2*55296}
    s_lshl_b32 s{t1}, s{sfb}, 11
    s_add_u32 s{t0}, s{t0}, s{t1}
    v_add_u32 v{gE}, s{t0}, v{gZ}
    s_mov_b32 s{oE}, {WS_Z1}
    s_mov_b32 s{oE+1}, {WS_Z1 + 55296}""")
    rP = rB; gP = a.v()
    def mkP():
        a(f"s_mul_i32 s{t0}, s{sqg}, {47*5120}\ns_add_u32 s{t0}, s{t0}, {WS_WT}\nv_lshlrev_b32 v{gP}, 4, v0\ns_lshl_b32 s{mP}, s{sw}, 10\ns_mov_b32 s{oP}, {131072-4096}")
        srd(a, rP, pWS, f"s{t0}", 47 * 5120)
    def ldE(tb, r): a.vmem(f"buffer_load_dwordx4 {V(Z1[tb]+4*r,4)}, v{gE}, {S(rE,4)}, s{oE+tb} offen offset:{1024*r}", 'z1')
    a(f"v_and_b32 v{T+1}, 15, v{ln}\nv_lshlrev_b32 v{T+2}, 8, v{l31}")
    for j in range(8):
        a(f"""v_add_u32 v{T}, {2*j}, v{hf}
        v_xor_b32 v{T}, v{T}, v{T+1}
        v_lshl_add_u32 v{aW[j]}, v{T}, 4, v{T+2}""")
    a(f"""s_lshl_b32 s{t0}, s{sodd}, 9
    s_add_u32 s{t0}, s{t0}, {KVB}
    v_add_u32 v{aKm}, s{t0}, v{gZ}
    s_cmp_eq_u32 s{sodd}, 0
    s_cselect_b32 s{t0}, 1024, 8
    s_cselect_b32 s{t1}, 0, 4
    s_cselect_b32 s{t2}, 0, 16
    s_add_u32 s{t0}, s{t0}, {KVB}
    v_cmp_gt_u32 vcc, 32, v{ln}
    v_mov_b32 v{T+4}, {ONES}
    v_add_u32 v{T}, s{t0}, v{gZ}""")
    for s in range(4):
        a(f"v_cndmask_b32 v{aKr[s]}, v{T+4}, v{T}, vcc")
        if s < 3: a(f"v_add_u32 v{T}, 12288, v{T}")
    a(f"""v_and_b32 v{T}, 3, v{l31}
    v_bfe_u32 v{T+1}, v{l31}, 2, 1
    v_bfe_u32 v{T+2}, v{l31}, 3, 1
    v_lshl_add_u32 v{T}, v{T+1}, 3, v{T}
    v_lshl_add_u32 v{T}, v{T+2}, 2, v{T}
    v_add_u32 v{T}, s{t1}, v{T}
    v_subrev_u32 v{T+1}, s{t2}, v{l31}
    v_cmp_gt_u32 vcc, 16, v{l31}
    v_mul_u32_u24 v{T+2}, 320, v{hf}
    v_add_u32 v{T+2}, {KVB+6144}, v{T+2}
    v_cndmask_b32 v{T}, v{T+1}, v{T}, vcc
    v_cmp_gt_u32 vcc, 20, v{l31}
    v_lshl_add_u32 v{T}, v{T}, 4, v{T+2}
    s_nop 0""")
    for s in range(4):
        a(f"v_cndmask_b32 v{aV[s]}, v{T+4}, v{T}, vcc")
        if s < 3: a(f"v_add_u32 v{T}, 12288, v{T}")
    for i in range(4): a(f"v_mov_b32 v{T+i}, {0 if '0' in X else 0x3f803f80}")
    a(f"v_lshl_add_u32 v{T+4}, v0, 4, v{T+4}\nv_mov_b32 v{T+5}, {FLAG}\nv_mov_b32 v{T+6}, 0")
    a.ds(f"ds_write_b128 v{T+4}, {V(T,4)}"); a.ds(f"ds_write_b128 v{T+4}, {V(T,4)} offset:1024"); a.ds(f"ds_write_b32 v{T+5}, v{T+6}")
    for r in list(range(O[0], O[0]+16)) + list(range(O[1], O[1]+16)) + list(range(SB[1]+8, SB[1]+16)) + list(range(V2[1], V2[1]+4)) + list(range(W1[1], W1[1]+4)):
        a(f"v_mov_b32 v{r}, 0")
    for i in range(4): a(f"v_accvgpr_write_b32 a{Z[15]+i}, 0")
    a.need(vm=['b']); mkP()
    for tb in range(2):
        a(f"v_lshlrev_b32 v{G[tb]}, 16, v{bs[tb]}")
        for i in range(1, 16): a(f"v_mov_b32 v{G[tb]+i}, v{G[tb]}")
    a.drain(vm=False)
    a("s_barrier"); stamp(a, 1); a("s_waitcnt lgkmcnt(0)" if PROF else "")
    def rdKm(kb): 'K' in X or a.ds(f"ds_read_b128 {V(Km[kb%2],4)}, v{aKm} offset:{(kb//4%4)*12288 + kb%4*1536}", ('Km', kb))
    def rdKr(kb): 'K' in X or a.ds(f"ds_read_b64 {V(Kr[kb%2],2)}, v{aKr[kb//4%4]} offset:{kb%4*1536}", ('Kr', kb))
    def rdV(h, kb): 'V' in X or a.ds(f"ds_read_b128 {V((V1,V2)[h][kb%2],4)}, v{aV[kb//4%4]} offset:{kb%4*1280 + 640*h}", ('V', h, kb))
    def rdW(tb, n): 'W' in X or a.ds(f"ds_read_b128 {V((W0,W1)[tb][n%2],4)}, v{aW[n%8]} offset:{(n//8%4)*16384 + 8192*tb}", ('W', tb, n))
    def mM(n): 'M' in X or a(f"v_mfma_f32_32x32x16_bf16 {V(SB[n%2],16)}, {V(Km[n//2%2],4)}, {V(Qm[n%2],4)}, 0")
    def mm(n): 'm' in X or a(f"v_mfma_f32_32x32x8_bf16 {V(SB[n%2],16)}, {V(Kr[n//2%2],2)}, {V(Qr[n%2],2)}, {V(SB[n%2],16)}")
    def mS(h, n): 'S' in X or a(f"v_smfmac_f32_32x32x32_bf16 {V(O[n%2],16)}, {V((V1,V2)[h][n//2%2],4)}, {V(SB[n%2]+8*h,8)}, v{idx}")
    def mG(tb, n): 'G' in X or a(f"v_mfma_f32_32x32x16_bf16 {V(G[tb],16)}, {A(Z[n%16],4)}, {V((W0,W1)[tb][n%2],4)}, {V(G[tb],16)}")
    rdKm(0); rdKr(0); rdW(0, 0); rdV(0, 0); rdV(1, 0)
    a.need(lg=[('Kr', 0)])
    mM(0); a("s_nop 1"); mm(0); a("s_nop 7\ns_nop 3")
    a(f"{N}_loop:")
    def body(it):
        for t in range(32):
            n = it * 32 + t; kb = n // 2; st = n // 8; tt = t % 8; ev = t % 2 == 0
            ex = lambda lo, hi: [a(f"v_exp_f32 v{SB[n%2]+i}, v{SB[n%2]+i}") for i in range(lo, hi) if 'E' not in X]
            sF, sA, sC, sE = [], [], [], []
            if t == 13: sF.append(f"s_cbranch_scc1 {N}_sw\n{N}_swr:")
            if tt == 5: sF.append(f"s_add_u32 s{oW}, s{oW}, s{incW}")
            if t in (21, 29): sA.append(f"s_add_u32 s{oP}, s{oP}, 4096"); sC.append(f"s_add_u32 m0, s{mP}, s{oP}")
            if tt == 6: sC.append(f"s_add_u32 m0, s{mW}, {(st+3)%4*16384}")
            if tt == 2: sA.append(f"s_add_u32 s{oKV}, s{oKV}, s{incKV}"); sC.append(f"s_add_u32 m0, s{mKV}, {(st+2)%4*12288}")
            if (n + ZL) % 4 == 0: sF.append(f"s_add_u32 s{oZ}, s{oZ}, 4096")
            cmp3 = f"s_cmp_eq_u32 s{cnt}, 3"
            if t == 0: sA.append(cmp3); sC.append(f"s_cselect_b32 s{rE+2}, s{szE}, 0")
            if t == 12: sA.append(cmp3)
            if t == 31 - ZL: sF.append(cmp3); sC.append(f"s_cselect_b32 s{rZ+2}, 0, s{rZ+2}")
            if t == 28: sA.append(f"s_add_u32 s{cnt}, s{cnt}, 1")
            if t == 31: sC.append(f"s_cmp_lt_u32 s{cnt}, 4")
            mG(1, n - 1); a.need(lg=[('V', 1, (n - 1) // 2)]); [a(x) for x in sF]
            rdW(1, n); ex(0, 3)
            mS(1, n - 1); a.need(lg=[('Km', (n + 1) // 2)], vm=[('D', st + 1)] if tt == 6 else []); [a(x) for x in sA]
            if tt == 6 and 'B' not in X: a("s_barrier")
            ldZ(n + ZL); ex(3, 5)
            mM(n + 1); a.need(lg=[('W', 0, n)], vm=[('Z', n)])
            if ev: rdKm(kb + 1); rdKr(kb + 1)
            else: rdV(0, kb + 1); rdV(1, kb + 1)
            ex(5, 7)
            mG(0, n); a.need(lg=[('V', 0, kb), ('Kr', (n + 1) // 2)]); [a(x) for x in sC]
            rdW(0, n + 1); ex(7, 10)
            mm(n + 1); ex(10, 14)
            mS(0, n); a.need(lg=[('W', 1, n)]); [a(x) for x in sE]
            if tt >= 6: dmaW(tt - 6, st + 3)
            elif tt < 2: dmaW(tt + 2, st + 2)
            elif tt < 5: dmaKV(tt - 2, st + 2)
            elif t < 16: ldE(t // 8, 0); ldE(t // 8, 1)
            else: a.vmem(f"buffer_load_dwordx4 v{gP}, {S(rP,4)}, s{oP} offen lds", 'pf')
            ex(14, 16)
        a(f"s_cbranch_scc1 {N}_loop")
    a.loop(body, 3)
    a(f"{N}_lx:"); mG(1, 127); dmaW(2, 18); mS(1, 127); dmaW(3, 18); stamp(a, 2)
    U = [SB[0], V1[0]]
    a(f"s_mov_b32 s{t0}, 0x2b800000\ns_mov_b32 s{t1}, 0x53800000\ns_mov_b32 s{t2}, 0xffff0000")
    def unpack(tb, d):
        for i in range(8): a(f"v_lshlrev_b32 v{d+2*i}, 16, v{Z1[tb]+i}\nv_and_b32 v{d+2*i+1}, s{t2}, v{Z1[tb]+i}")
    a.need(vm=['z1']); a.lg = []; a("s_waitcnt lgkmcnt(0)")
    unpack(0, SB[0])
    sA, sB = a.sg(2), a.sg(2)
    a(f"""v_cmp_le_f32 vcc, s{t0}, v{O[0]+12}
    v_cmp_ge_f32 {S(sA,2)}, s{t1}, v{O[0]+12}
    s_and_b64 {S(sB,2)}, vcc, {S(sA,2)}
    v_cmp_le_f32 vcc, s{t0}, v{O[1]+12}
    v_cmp_ge_f32 {S(sA,2)}, s{t1}, v{O[1]+12}
    s_and_b64 {S(sB,2)}, vcc, {S(sB,2)}
    s_and_b64 {S(sB,2)}, {S(sA,2)}, {S(sB,2)}
    v_mov_b32 v{T+5}, {FLAG}
    s_cmp_eq_u64 {S(sB,2)}, -1
    s_cbranch_scc1 {N}_ok
    ds_write_b32 v{T+5}, v{T+5}
    s_waitcnt lgkmcnt(0)
    {N}_ok:
    s_barrier
    ds_read_b32 v{T+6}, v{T+5}""")
    unpack(1, SB[1])
    a(f"s_mov_b32 s{t0}, {WS_H}\ns_mov_b32 s{t1}, {WS_H + 55296}")
    for tb in range(2):
        for i in range(8): a(f"v_pk_mul_f32 {V(G[tb]+2*i,2)}, {V(G[tb]+2*i,2)}, {V(SB[tb]+2*i,2)}")
        for i in range(8): a(f"v_cvt_pk_bf16_f32 v{SB[tb]+i}, v{G[tb]+2*i}, v{G[tb]+2*i+1}")
        for r in range(2): a(f"buffer_store_dwordx4 {V(SB[tb]+4*r,4)}, v{gE}, {S(rE,4)}, s{t0+tb} offen offset:{1024*r}{WT}")
    a(f"""s_waitcnt lgkmcnt(0)
    s_barrier
    v_readfirstlane_b32 s{t2}, v{T+6}
    s_mov_b32 s{t0}, 81920
    s_andn2_b32 s{t2}, s{t2}, s{retry}
    {'s_nop 0 ;' if X else ''}s_cbranch_scc1 {N}_fall""")
    for q in range(2):
        a(f"v_rcp_f32 v{T}, v{O[q]+12}\ns_nop 0")
        for i in range(12): a(f"v_mul_f32 v{O[q]+i}, v{O[q]+i}, v{T}")
        for i in range(6): a(f"v_cvt_pk_bf16_f32 v{G[q]+i}, v{O[q]+2*i}, v{O[q]+2*i+1}")
        so = f"s{t0}" if q else "0"
        a(f"buffer_store_dwordx4 {V(G[q],4)}, v{gOm}, {S(rO,4)}, {so} offen{WT}\nbuffer_store_dwordx2 {V(G[q]+4,2)}, v{gOr}, {S(rO,4)}, {so} offen{WT}")
    stamp(a, 3); a.vm = ['st']; nv, ns = a.nv, a.ns; a("s_nop 1")
    tail3(a, N, pX, pO, pWS, sw, shd, sqg, ln, sfree, 2); a.nv, a.ns = nv, ns
    a(f"""{N}_sw:
    s_mov_b64 {S(rW,2)}, {S(rP,2)}
    s_mov_b64 {S(rKV,2)}, {S(rP,2)}
    s_mov_b32 s{rW+2}, s{rP+2}
    s_mov_b32 s{rKV+2}, s{rP+2}
    s_movk_i32 s{incW}, 16384
    s_movk_i32 s{incKV}, 12288
    s_movk_i32 s{oW}, -16384
    s_movk_i32 s{oKV}, -12288""")
    for r in gW: a(f"v_add_u32 v{r}, s{mW}, v{gZ}")
    for r in gKV: a(f"v_add_u32 v{r}, s{mKV}, v{gZ}")
    a(f"v_lshlrev_b32 v254, 6, v0\nv_min_u32 v254, {N}_sw-{N}_lx, v254\nv_add_u32 v254, {N}_lx-{N}_pc, v254\nglobal_load_dword v255, v254, s[96:97]\ns_branch {N}_swr")
    mx = [G[0], G[0] + 1]; gK, gKr = G[0] + 2, G[0] + 3
    a(f"""{N}_fall:
    s_waitcnt vmcnt(0)
    s_mov_b32 s{retry}, -1
    s_mov_b32 s{szE}, 0
    s_lshl_b32 s{t0}, s{shd}, 18
    s_add_u32 s{rW}, s{pW}, s{t0}
    s_addc_u32 s{rW+1}, s{pW+1}, 0
    s_cmp_lt_u32 s{sqg}, 7
    s_cselect_b32 s{rW+2}, {64*4096}, 0
    s_mov_b64 {S(rKV,2)}, {S(pWS,2)}
    s_mov_b32 s{rKV+2}, {WS_Z1}
    s_mov_b32 s{incKV}, 5120
    s_cmp_lt_u32 s{sw}, 2
    s_cselect_b32 s{incKV}, 327680, s{incKV}
    s_mov_b32 s{rZ+2}, s{szZ}
    s_lshl_b32 s{t0}, s{sqg}, 2
    s_add_u32 s{t0}, s{t0}, s{sw}
    s_mul_i32 s{t0}, s{t0}, 163840
    v_subrev_u32 v{gK}, s{t0}, v{gQm}
    v_subrev_u32 v{gKr}, s{t0}, v{gQr}
    v_mov_b32 v{mx[0]}, 0xff800000
    v_mov_b32 v{mx[1]}, 0xff800000
    s_mov_b32 s{t0}, 40960
    {N}_fl:
    buffer_load_dwordx4 {V(Km[0],4)}, v{gK}, {S(rKV,4)}, s{t0} offen
    buffer_load_dwordx2 {V(Kr[0],2)}, v{gKr}, {S(rKV,4)}, s{t0} offen
    s_waitcnt vmcnt(0)""")
    mM(0); mM(1); mm(0); mm(1); a("s_nop 7\ns_nop 7")
    for q in range(2):
        for i in range(8): a(f"v_max3_f32 v{mx[q]}, v{SB[q]+2*i}, v{SB[q]+2*i+1}, v{mx[q]}")
    a(f"""s_add_u32 s{t0}, s{t0}, 81920
    s_cmp_lt_u32 s{t0}, {64*81920}
    s_cbranch_scc1 {N}_fl
    v_cmp_gt_u32 vcc, 32, v{ln}
    s_mov_b32 s{t2}, 0xffff0000""")
    for q in range(2):
        a(f"""v_mov_b32 v{T}, v{mx[q]}
        s_nop 1
        v_permlane32_swap_b32 v{T}, v{mx[q]}
        s_nop 1
        v_max_f32 v{T}, v{T}, v{mx[q]}
        v_sub_f32 v{T}, 0, v{T}
        v_and_b32 v{T+1}, s{t2}, v{T}
        v_sub_f32 v{T}, v{T}, v{T+1}
        v_and_b32 v{T+2}, s{t2}, v{T}
        v_sub_f32 v{T}, v{T}, v{T+2}
        v_lshrrev_b32 v{T+1}, 16, v{T+1}
        v_or_b32 v{T+1}, v{T+1}, v{T+2}
        v_lshrrev_b32 v{T}, 16, v{T}
        v_cndmask_b32 v{Qr[q]}, v{T+1}, v{Qr[q]}, vcc
        v_cndmask_b32 v{Qr[q]+1}, v{T}, v{Qr[q]+1}, vcc""")
    a(f"s_barrier\ns_branch {N}_restart\n{N}_end:\ns_endpgm")
    return a
```

```python
from asm import *
WS_FL = 0x11e0000
E_ = lambda k, d: int(os.environ.get(k, d))
P1, PC, A0, LR = E_('P1', 14), E_('PC', 8), E_('A0', 12), float(os.environ.get('LR', 3.5))
def tail3(a, N, pX, pO, pWS, sw, srb, scb, ln, sfree, vfree):
    a.ns, a.nv = sfree, vfree
    rA, rW, rX, rO = [a.sg(4) for _ in range(4)]
    t0, t1, t2, oA, oW, mW = [a.sg() for _ in range(6)]
    s0, y0 = a.v(40), a.v(40); Wf = [a.v(4) for _ in range(10)]
    xr = a.v(10); gO, gH = a.v(2), a.v(2); gW, gX, gF, aE, aF = [a.v() for _ in range(5)]; aW = [a.v() for _ in range(4)]; T = a.v(20); xu = a.v(20); sp = a.sg()
    assert a.nv <= ln
    a.na = 192
    a(f"""{N}_tl:
    s_mul_i32 s{t0}, s{scb}, {47*5120}
    s_add_u32 s{t0}, s{t0}, {WS_WT}
    v_lshlrev_b32 v{gW}, 4, v0
    s_lshl_b32 s{mW}, s{sw}, 10""")
    srd(a, rW, pWS, f"s{t0}", 47 * 5120)
    def dW(c, i):
        a(f"s_add_u32 m0, s{mW}, {(c % 8) * 20480 + i * 4096}\ns_mov_b32 s{oW}, {c * 20480 + i * 4096}")
        a.vmem(f"buffer_load_dwordx4 v{gW}, {S(rW,4)}, s{oW} offen sc1 lds", ('C', c))
    assert P1 <= 4
    PL = [divmod(j, 5) for j in list(range(12, 16)) + list(range(22, 32))]
    def lA(p, r):
        if r == 0: a(f"s_mov_b32 s{oA}, {p % 14 * 4096}")
        if p == 13: a(f"v_or_b32 v{gH+r}, s{sp}, v{gH+r}")
        a.vmem(f"buffer_load_dwordx4 {A(8*p+4*r,4)}, v{(gH if p < 14 else gO)+r}, {S(rA,4)}, s{oA} offen sc1", ('A', p))
    su = [x.strip() for x in f"""s_and_b32 s{sp}, s{sw}, 1
    s_mul_i32 s{t0}, s{sp}, 5120
    v_lshl_add_u32 v{aW[0]}, v{ln}, 4, s{t0}
    v_add_u32 v{aW[1]}, 0x10000, v{aW[0]}
    v_add_u32 v{aW[2]}, 0x20000, v{aW[0]}
    s_mul_i32 s{t0}, s{sp}, 163840
    v_subrev_u32 v{aW[3]}, s{t0}, v{aW[2]}
    v_add_u32 v{aW[3]}, {158720 - 0x20000}, v{aW[3]}
    s_mul_i32 s{t0}, s{sw}, 5120
    s_xor_b32 s{t1}, s{sw}, 1
    s_mul_i32 s{t1}, s{t1}, 5120
    s_add_u32 s{t0}, s{t0}, 81920
    s_add_u32 s{t1}, s{t1}, 81920
    v_lshl_add_u32 v{aE}, v{ln}, 4, s{t0}
    v_lshl_add_u32 v{aF}, v{ln}, 4, s{t1}
    s_lshr_b32 s{t0}, s{srb}, 2
    s_lshl_b32 s{t0}, s{t0}, 5
    v_add_u32 v{T}, s{t0}, v{ln}
    v_min_u32 v{T+1}, 38, v{ln}
    v_cmp_gt_u32 vcc, 32, v{ln}
    v_lshl_add_u32 v{T+1}, v{T+1}, 5, s{srb}
    v_subrev_u32 v{T+1}, 1024, v{T+1}
    v_cndmask_b32 v{gF}, v{T+1}, v{T}, vcc
    v_lshlrev_b32 v{gF}, 7, v{gF}
    v_add_u32 v{gF}, {WS_FL}, v{gF}
    s_lshl_b32 s{t0}, s{scb}, 5
    s_add_u32 s{t0}, s{t0}, s{srb}
    s_lshl_b32 s{t0}, s{t0}, 7
    s_add_u32 s{t0}, s{t0}, {WS_FL}
    v_mov_b32 v{T+4}, s{t0}
    v_mov_b32 v{T+5}, 1
    v_and_b32 v{T}, 15, v0
    v_bfe_u32 v{T+1}, v0, 4, 2
    v_bfe_u32 v{T+2}, v0, 6, 1
    v_lshl_add_u32 v{T+2}, v{T+2}, 4, v{T}
    v_lshlrev_b32 v{T+2}, 4, v{T+2}
    v_lshl_add_u32 v{T+2}, v{T+1}, 9, v{T+2}
    v_lshl_add_u32 v{T+2}, s{sp}, 11, v{T+2}
    s_mul_i32 s{sp}, s{sp}, {OOB}
    s_lshr_b32 s{t1}, s{sw}, 1
    s_lshl_b32 s{t2}, s{srb}, 1
    s_add_u32 s{t1}, s{t1}, s{t2}
    s_mul_i32 s{t2}, s{t1}, 81920
    v_add_u32 v{gO}, s{t2}, v{T+2}
    s_mul_i32 s{t2}, s{t1}, 55296
    s_add_u32 s{t2}, s{t2}, {WS_H}
    v_add_u32 v{gH}, s{t2}, v{T+2}
    v_xor_b32 v{gO+1}, 256, v{gO}
    v_xor_b32 v{gH+1}, 256, v{gH}
    s_lshl_b32 s{t1}, s{srb}, 2
    s_add_u32 s{t1}, s{t1}, s{sw}
    s_mul_i32 s{t1}, s{t1}, {16*1280}
    s_mul_i32 s{t2}, s{scb}, 160
    s_add_u32 s{t1}, s{t1}, s{t2}
    v_mul_u32_u24 v{T}, 1280, v{T}
    v_mul_u32_u24 v{T+1}, 40, v{T+1}
    v_add3_u32 v{gX}, v{T}, v{T+1}, s{t1}""".split("\n")]
    for c, i in PL[:P1]: dW(c, i); [a(su.pop(0)) for _ in range(4) if su]
    while su: a(su.pop(0))
    srd(a, rA, pWS, 0, WS_PROF); srd(a, rX, pX, 0, 2621440); srd(a, rO, pO, 0, 2621440)
    for o, n in ((0, 4), (4, 4), (8, 2)): a.vmem(f"buffer_load_dwordx{n} {V(xr+o,n)}, v{gX}, {S(rX,4)}, 0 offen offset:{4*o}", 'x')
    a.need(vm=['st']); a("s_barrier"); stamp(a, 4)
    a(f"""s_cmp_lg_u32 s{sw}, 0
    s_cbranch_scc1 {N}_nf
    s_mov_b64 exec, 1
    buffer_store_dword v{T+5}, v{T+4}, {S(rA,4)}, 0 offen sc0 sc1
    s_mov_b64 exec, -1
    {N}_nf:""")
    for c, i in PL[P1:]: dW(c, i)
    a(f"""s_mov_b32 s{t2}, 0
    s_cmp_lg_u32 s{sw}, 0
    s_cbranch_scc1 {N}_p1
    {N}_p0:
    buffer_load_dword v{T}, v{gF}, {S(rA,4)}, 0 offen sc1
    s_add_u32 s{t2}, s{t2}, 0x2000
    s_cbranch_scc1 {N}_p1
    s_waitcnt vmcnt(0)
    v_cmp_ne_u32 vcc, 1, v{T}
    s_nop 1
    s_cbranch_vccnz {N}_p0
    {N}_p1:""")
    a.drain(); a("s_barrier"); stamp(a, 5)
    L = []
    for p in range(24):
        for c in {15: (8,), 17: (9,), 19: (10,), 21: (11,)}.get(p, ()): L += [(40 if c < 10 else 100, ('C', c), lambda c=c, i=i: dW(c, i)) for i in range(5 if c < 11 else 4)]
        L += [(0, ('A', p), lambda p=p, r=r: lA(p, r)) for r in range(2)]
    RA = 6
    def rd(g):
        p, nt = divmod(g, 5); o = ((10 * p - (5 if p >= 14 else 0) + nt) % 160) * 1024
        if g < 120: a.ds(f"ds_read_b128 {V(Wf[g % 10],4)}, v{aW[3] if p == 16 else aW[o >> 16]} offset:{nt * 1024 if p == 16 else o & 65535}", ('W', g))
    for i in range(A0):
        L.pop(0)[2]()
        if i < RA: rd(i)
        if i < 10: a(f"v_lshlrev_b32 v{xu+2*i}, 16, v{xr+i}\nv_and_b32 v{xu+2*i+1}, 0xffff0000, v{xr+i}")
    a(f"s_mov_b32 s{t0}, 0xbfb8aa3b\ns_mov_b32 s{t1}, 0xffff0000")
    wrE = lambda r, i, o: a.ds(f"ds_write_b128 v{aE}, {V(r+20+4*i,4)} offset:{o + 1024*i}", 'ew')
    rdE = lambda r, i, o: a.ds(f"ds_read_b128 {V(r+20+4*i,4)}, v{aF} offset:{o + 1024*i}", 'er')
    Q = []
    for b in range(0, 20, 4):
        R = range(b, b + 4)
        Q += [f"v_add_f32 v{y0+i}, v{y0+i}, v{y0+20+i}" for i in R]
        Q += [f"v_mul_f32 v{T+i}, s{t0}, v{y0+i}" for i in R] + [f"v_exp_f32 v{T+i}, v{T+i}" for i in R] + [f"v_add_f32 v{T+i}, 1.0, v{T+i}" for i in R]
        Q += [f"v_rcp_f32 v{T+i}, v{T+i}" for i in R] + [f"v_mul_f32 v{y0+i}, v{y0+i}, v{T+i}" for i in R]
    for f in range(240):
        p = f // 10; g, r = f // 2, f % 2
        if p in (13, 23): g, r = 5 * p + f % 5, 1 - f % 10 // 5
        d = (y0 if p < 14 else s0) + 20 * r + 4 * (g % 5)
        vm = [('A', p)] if f % 10 == 0 else []; lg = [('W', g), ('W', g + 1)] if f % 4 == 0 or p in (13, 23) else []
        arr = {2 * (10 * c - RA): (c,) for c in range(8, 12)}.get(f, ())
        vm += [('C', c) for c in arr]
        if 8 in arr: lg += ['ew']
        if f == 158: lg += ['er']
        assert not [1 for e, t, _ in L if t in vm], (f, vm)
        a.need(lg=lg, vm=vm)
        if arr or f in (40, 100): a("s_barrier")
        if f == 0: stamp(a, 6)
        if E_('FS', 0) and f in (40, 100, 140, 160, 200): stamp(a, 1 + (40, 100, 140, 160, 200).index(f))
        a(f"v_mfma_f32_16x16x32_bf16 {V(d,4)}, {V(Wf[g % 10],4)}, {A(8*p+4*r,4)}, {V(d,4) if p not in (0, 14) else 0}")
        n1 = len(a.L)
        if f % 2 == 0: rd(f // 2 + RA)
        if 137 <= f < 146 and f % 2: wrE(y0, (f - 137) // 2, 0)
        if 148 <= f < 153: rdE(y0, f - 148, 0)
        if f >= 237: wrE(s0, f - 237, 20480)
        if int((f + 1) / LR) > int(f / LR) and L:
            k = next(i for i, e in enumerate(L + [(0,)]) if e[0] <= f)
            if k < len(L): n0 = len(a.L); L.pop(k)[2](); a.L = a.L[:n0] if E_('NL', 0) else a.L
        bud = E_('QB', 3) - (len(a.L) - n1) - (f % 4 == 3)
        while f >= 158 and Q and bud >= 1 + ('exp' in Q[0] or 'rcp' in Q[0]): bud -= 1 + ('exp' in Q[0] or 'rcp' in Q[0]); a(Q.pop(0))
    print("k3 left", len(Q)); Q2 = Q; Q = []
    assert not Q and not L
    stamp(a, 7); wrE(s0, 3, 20480); wrE(s0, 4, 20480); [a(x) for x in Q2]; a.need(lg=['ew']); a("s_barrier")
    for i in range(5): rdE(s0, i, 20480)
    for i in range(10): a(f"v_pk_fma_f32 {V(T+2*i,2)}, {V(s0+2*i,2)}, {V(y0+2*i,2)}, {V(xu+2*i,2)}")
    a.need(lg=['er'])
    for i in range(10): a(f"v_pk_fma_f32 {V(s0+2*i,2)}, {V(s0+20+2*i,2)}, {V(y0+2*i,2)}, {V(T+2*i,2)}")
    for o, n in ((0, 4), (4, 4), (8, 2)):
        for i in range(o, o + n): a(f"v_cvt_pk_bf16_f32 v{xr+i}, v{s0+2*i}, v{s0+2*i+1}")
        a(f"buffer_store_dwordx{n} {V(xr+o,n)}, v{gX}, {S(rO,4)}, 0 offen offset:{4*o}{os.environ.get('WO','')}")
    stamp(a, 8); a("s_waitcnt vmcnt(0)"); stamp_out(a, 1, 11)
    if E_('DBG', 0): a(f"""s_load_dwordx2 s[20:21], s[0:1], 72
        s_waitcnt vmcnt(0) lgkmcnt(0)
        s_cmp_lg_u32 s2, 8
        s_cbranch_scc1 {N}_end
        v_cmp_gt_u32 vcc, 6, v0
        v_lshlrev_b32 v1, 2, v0
        v_add_u32 v2, {WS_PROF + 65536 + 2048}, v1
        v_add_u32 v3, {WS_PROF + 2*65536 + 2048 - 24}, v1
        v_cndmask_b32 v2, v3, v2, vcc
        v_cmp_gt_u32 vcc, 16, v0
        s_and_saveexec_b64 s[22:23], vcc
        s_cbranch_execz {N}_end
        global_load_dword v2, v2, {S(pWS,2)} sc1
        s_waitcnt vmcnt(0)
        global_store_dword v1, v2, s[20:21]
        s_waitcnt vmcnt(0)""")
    a("s_endpgm")
```

```python
from asm import *
KVB, ONES, FLAG = 65536, 114688, 114688 + 5120
LDS2 = 163840
from k3f import tail3
X = os.environ.get('X2', ''); PFW = int(os.environ.get('PFW', '0')); PFO = int(os.environ.get('PFO', '0')); RM = int(os.environ.get('RM', '0')); WI = int(os.environ.get('WI', '0')); ZL = int(os.environ.get('ZL', '12'))
def k2():
    a = Asm(); N = "k2"
    head(a, N, 2); stamp0(a)
    pWS, pX, pO = [a.sg(2) for _ in range(3)]; sw, shd, sqg = [a.sg() for _ in range(3)]; sfree = a.ns; pW, pB, oE = [a.sg(2) for _ in range(3)]
    a(f"""s_load_dwordx2 {S(pW,2)}, s[0:1], 40
    s_load_dwordx2 {S(pB,2)}, s[0:1], 48
    s_load_dwordx2 {S(pWS,2)}, s[0:1], 80
    s_load_dwordx2 {S(pX,2)}, s[0:1], 0
    s_load_dwordx2 {S(pO,2)}, s[0:1], 64""")
    rW, rKV, rZ, rE, rO, rB = [a.sg(4) for _ in range(6)]
    sfb, sodd, sm5, t0, t1, t2, oW, oKV, oZ, incKV, mW, mKV, cnt, retry, szW, szZ, szE = [a.sg() for _ in range(17)]
    SB = [a.v(16), a.v(16)]; O = [a.v(16), a.v(16)]; G = [a.v(16), a.v(16)]
    Qm = [a.v(4), a.v(4)]; Qr = [a.v(2), a.v(2)]
    Km = [a.v(4), a.v(4)]; Kr = [a.v(2), a.v(2)]
    V1 = [a.v(4), a.v(4)]; V2 = [a.v(4), a.v(4)]; W0 = [a.v(4), a.v(4)]; W1 = [a.v(4), a.v(4)]
    Z1 = [a.v(8), a.v(8)]; bs = [a.v(), a.v()]
    aW = [a.v() for _ in range(8)]; aKm = a.v(); aKr = [a.v() for _ in range(4)]; aV = [a.v() for _ in range(4)]
    gW = [a.v() for _ in range(4)]; gKV = [a.v() for _ in range(3)]; gZ = a.v(); gQm, gQr, gE, gOm, gOr = [a.v() for _ in range(5)]
    idx, ln, l31, hf = [a.v() for _ in range(4)]; T = a.v(8, 4)
    Z = [a.a(4) for _ in range(16)]
    a(f"""v_lshrrev_b32 v{T}, 6, v0
    v_and_b32 v{ln}, 63, v0
    v_readfirstlane_b32 s{sw}, v{T}
    s_and_b32 s{t0}, s2, 7
    s_lshr_b32 s{t1}, s2, 6
    s_lshl_b32 s{t0}, s{t0}, 2
    s_add_u32 s{shd}, s{t0}, s{t1}
    s_bfe_u32 s{sqg}, s2, 0x30003
    s_lshl_b32 s{sfb}, s{sqg}, 2
    s_add_u32 s{sfb}, s{sfb}, s{sw}
    s_and_b32 s{sodd}, s{shd}, 1
    s_lshr_b32 s{sm5}, s{shd}, 1
    s_mul_i32 s{sm5}, s{sm5}, 2560
    s_mov_b32 s{retry}, 0
    v_and_b32 v{l31}, 31, v0
    v_bfe_u32 v{hf}, v0, 5, 1
    v_mov_b32 v{idx}, 0xdddddddd
    s_cmp_lt_u32 s{sqg}, 7
    s_cselect_b32 s{szW}, {64*4096}, 0
    s_cmp_lt_u32 s{sfb}, 27
    s_cselect_b32 s{szZ}, 0x20000, 0
    s_cselect_b32 s{szE}, {WS_WT}, 0
    s_lshl_b32 s{mW}, s{sw}, 12
    s_mul_i32 s{mKV}, s{sw}, 3072
    s_add_u32 s{mKV}, s{mKV}, {KVB}
    s_mov_b32 s{incKV}, 5120
    s_cmp_lt_u32 s{sw}, 2
    s_cselect_b32 s{incKV}, 327680, s{incKV}
    s_lshl_b32 s{t0}, s{shd}, 18
    s_lshl_b32 s{t1}, s{sfb}, 17
    s_add_u32 s{t1}, s{t1}, {WS_Z2}
    s_waitcnt lgkmcnt(0)""")
    srd(a, rW, pW, f"s{t0}", f"s{szW}"); srd(a, rKV, pWS, 0, WS_Z1); srd(a, rZ, pWS, f"s{t1}", f"s{szZ}")
    srd(a, rE, pWS, 0, f"s{szE}"); srd(a, rO, pWS, 0, WS_VT)
    a(f"""s_lshl_b32 s{t0}, s{sqg}, 2
    s_add_u32 s{t0}, s{t0}, s{sw}
    s_mul_i32 s{t1}, s{t0}, 163840
    s_add_u32 s{t1}, s{t1}, s{sm5}
    s_mul_i32 s{t2}, s{sodd}, 1536
    s_add_u32 s{t2}, s{t2}, s{t1}
    v_lshlrev_b32 v{gZ}, 4, v{ln}
    v_add_u32 v{gQm}, s{t2}, v{gZ}
    s_lshl_b32 s{t2}, s{sodd}, 3
    s_add_u32 s{t2}, s{t2}, s{t1}
    s_add_u32 s{t2}, s{t2}, 1024
    v_add_u32 v{gQr}, s{t2}, v{gZ}
    v_mov_b32 v{T}, {OOB}
    v_cmp_gt_u32 vcc, 32, v{ln}
    s_mov_b32 s{t2}, 81920
    s_nop 0
    v_cndmask_b32 v{gQr}, v{T}, v{gQr}, vcc""")
    for q in range(2):
        so = f"s{t2}" if q else "0"
        a.vmem(f"buffer_load_dwordx4 {V(Qm[q],4)}, v{gQm}, {S(rKV,4)}, {so} offen", ('Q', q))
        a.vmem(f"buffer_load_dwordx2 {V(Qr[q],2)}, v{gQr}, {S(rKV,4)}, {so} offen", ('Q', q))
    gOm, gOr = gQm, gQr
    a(f"{N}_restart:")
    a(f"""s_mul_i32 s{t0}, s{sw}, 163840
    s_add_u32 s{t0}, s{t0}, s{sm5}
    s_lshl_b32 s{t1}, s{sodd}, 10
    s_add_u32 s{t0}, s{t0}, s{t1}
    s_add_u32 s{t0}, s{t0}, 40960
    s_mul_i32 s{t1}, s{shd}, 81920
    s_mul_i32 s{t2}, s{sw}, 3072
    s_add_u32 s{t1}, s{t1}, s{t2}
    s_add_u32 s{t1}, s{t1}, {WS_VT - 6144}
    s_cmp_lt_u32 s{sw}, 2
    s_cselect_b32 s{t0}, s{t0}, s{t1}
    s_cselect_b32 s{t1}, 80384, 0
    s_cmp_eq_u32 s{sw}, 3
    s_cselect_b32 s{t2}, {OOB}, s{t1}
    v_add_u32 v{gKV[0]}, s{t0}, v{gZ}
    v_mul_lo_u32 v{T}, v{hf}, s{t1}
    v_add_u32 v{gKV[2]}, s{t2}, v{gKV[0]}
    v_add_u32 v{gKV[1]}, v{T}, v{gKV[0]}""")
    a(f"""v_lshrrev_b32 v{T}, 4, v{ln}
    v_and_b32 v{T+1}, 15, v{ln}
    s_lshl_b32 s{t0}, s{sw}, 16""")
    for i in range(4):
        a(f"""v_add_u32 v{T+2}, {4*i}, v{T}
        v_xor_b32 v{T+3}, v{T+1}, v{T+2}
        v_lshlrev_b32 v{T+2}, 12, v{T+2}
        v_lshl_add_u32 v{T+2}, v{T+3}, 4, v{T+2}
        v_add_u32 v{gW[i]}, s{t0}, v{T+2}""")
        if i: a(f"v_subrev_u32 v{gW[i]}, {1024*i}, v{gW[i]}")
    def dmaW(i, st): 'D' in X or a.vmem(f"buffer_load_dwordx4 v{gW[i]}, {S(rW,4)}, s{oW} offen offset:{1024*i} lds", ('D', st))
    def dmaKV(i, st): 'd' in X or a.vmem(f"buffer_load_dwordx4 v{gKV[i]}, {S(rKV,4)}, s{oKV} offen offset:{1024*i} lds", ('D', st))
    def ldZ(n): 'Z' in X or a.vmem(f"buffer_load_dwordx4 {A(Z[n%16],4)}, v{gZ}, {S(rZ,4)}, s{oZ} offen offset:{(n%4)*1024}", ('Z', n))
    incW, oP, mP = szW, a.sg(), a.sg()
    a(f"""s_mov_b32 s{oW}, 0
    s_mov_b32 s{oZ}, 0
    s_movk_i32 s{incW}, 256
    s_mov_b32 s{oKV}, 0
    s_mov_b32 m0, s{mKV}
    s_mov_b32 s{cnt}, 0""")
    for i in range(3): dmaKV(i, 0)
    srd(a, rB, pB, 0, 4096)
    a(f"s_mov_b32 m0, s{mW}\ns_lshl_b32 s{t0}, s{shd}, 7")
    for i in range(4): dmaW(i, 0)
    a(f"v_lshl_add_u32 v{T}, v{l31}, 1, s{t0}")
    ldZ(0); ldZ(1)
    for tb in range(2): a.vmem(f"buffer_load_ushort v{bs[tb]}, v{T}, {S(rB,4)}, 0 offen offset:{64*tb}", 'b')
    a(f"s_add_u32 s{oKV}, s{oKV}, s{incKV}\ns_add_u32 m0, s{mKV}, 12288\ns_add_u32 s{oW}, s{oW}, 256")
    for i in range(3): dmaKV(i, 1)
    a(f"s_add_u32 m0, s{mW}, 16384\ns_nop 0")
    for i in range(4): dmaW(i, 1)
    for n in range(2, ZL):
        if n % 4 == 0: a(f"s_add_u32 s{oZ}, s{oZ}, 4096")
        ldZ(n)
    a(f"s_add_u32 m0, s{mW}, 32768\ns_add_u32 s{oW}, s{oW}, 256")
    dmaW(0, 2); dmaW(1, 2)
    if int(os.environ.get('TX', '1')):
        a(f"s_mul_i32 s{t0}, s{shd}, 81920\nv_mov_b32 v254, s{t0}")
        for p in (pX, pO): a.vmem(f"global_load_dword v255, v254, {S(p,2)}", 'pf')
    a(f"""s_mul_i32 s{t0}, s{shd}, {2*55296}
    s_lshl_b32 s{t1}, s{sfb}, 11
    s_add_u32 s{t0}, s{t0}, s{t1}
    v_add_u32 v{gE}, s{t0}, v{gZ}
    s_mov_b32 s{oE}, {WS_Z1}
    s_mov_b32 s{oE+1}, {WS_Z1 + 55296}""")
    if int(os.environ.get('TK', '0')):
        a(f"v_min_u32 v254, 5, v{ln}\nv_cmp_gt_u32 vcc, 32, v{ln}\nv_mul_u32_u24 v254, {12*81920}, v254\nv_add_u32 v254, {3*81920+40960}, v254\nv_mov_b32 v253, {WS_WT}\nv_cndmask_b32 v254, v253, v254, vcc")
        a.vmem(f"global_load_dword v255, v254, {S(pWS,2)}", 'pf'); a.vmem(f"buffer_load_dword v255, v{gE}, {S(rE,4)}, s{oE} offen", 'pf')
    rP = rB; gP = a.v()
    def mkP():
        a(f"s_mul_i32 s{t0}, s{sqg}, {47*5120}\ns_add_u32 s{t0}, s{t0}, {WS_WT}\nv_lshlrev_b32 v{gP}, 4, v0\ns_lshl_b32 s{mP}, s{sw}, 10\ns_mov_b32 s{oP}, {131072-4096}")
        srd(a, rP, pWS, f"s{t0}", 47 * 5120)
    def ldE(tb, r): a.vmem(f"buffer_load_dwordx4 {V(Z1[tb]+4*r,4)}, v{gE}, {S(rE,4)}, s{oE+tb} offen offset:{1024*r}", 'z1')
    a(f"v_and_b32 v{T+1}, 15, v{ln}\nv_lshlrev_b32 v{T+2}, 8, v{l31}")
    for j in range(8):
        a(f"""v_add_u32 v{T}, {2*j}, v{hf}
        v_xor_b32 v{T}, v{T}, v{T+1}
        v_lshl_add_u32 v{aW[j]}, v{T}, 4, v{T+2}""")
    a(f"""s_lshl_b32 s{t0}, s{sodd}, 9
    s_add_u32 s{t0}, s{t0}, {KVB}
    v_add_u32 v{aKm}, s{t0}, v{gZ}
    s_cmp_eq_u32 s{sodd}, 0
    s_cselect_b32 s{t0}, 1024, 8
    s_cselect_b32 s{t1}, 0, 4
    s_cselect_b32 s{t2}, 0, 16
    s_add_u32 s{t0}, s{t0}, {KVB}
    v_cmp_gt_u32 vcc, 32, v{ln}
    v_mov_b32 v{T+4}, {ONES}
    v_add_u32 v{T}, s{t0}, v{gZ}""")
    for s in range(4):
        a(f"v_cndmask_b32 v{aKr[s]}, v{T+4}, v{T}, vcc")
        if s < 3: a(f"v_add_u32 v{T}, 12288, v{T}")
    a(f"""v_and_b32 v{T}, 3, v{l31}
    v_bfe_u32 v{T+1}, v{l31}, 2, 1
    v_bfe_u32 v{T+2}, v{l31}, 3, 1
    v_lshl_add_u32 v{T}, v{T+1}, 3, v{T}
    v_lshl_add_u32 v{T}, v{T+2}, 2, v{T}
    v_add_u32 v{T}, s{t1}, v{T}
    v_subrev_u32 v{T+1}, s{t2}, v{l31}
    v_cmp_gt_u32 vcc, 16, v{l31}
    v_mul_u32_u24 v{T+2}, 320, v{hf}
    v_add_u32 v{T+2}, {KVB+6144}, v{T+2}
    v_cndmask_b32 v{T}, v{T+1}, v{T}, vcc
    v_cmp_gt_u32 vcc, 20, v{l31}
    v_lshl_add_u32 v{T}, v{T}, 4, v{T+2}
    s_nop 0""")
    for s in range(4):
        a(f"v_cndmask_b32 v{aV[s]}, v{T+4}, v{T}, vcc")
        if s < 3: a(f"v_add_u32 v{T}, 12288, v{T}")
    for i in range(4): a(f"v_mov_b32 v{T+i}, {0 if '0' in X else 0x3f803f80}")
    a(f"v_lshl_add_u32 v{T+4}, v0, 4, v{T+4}\nv_mov_b32 v{T+5}, {FLAG}\nv_mov_b32 v{T+6}, 0")
    a.ds(f"ds_write_b128 v{T+4}, {V(T,4)}"); a.ds(f"ds_write_b128 v{T+4}, {V(T,4)} offset:1024"); a.ds(f"ds_write_b32 v{T+5}, v{T+6}")
    for r in list(range(O[0], O[0]+16)) + list(range(O[1], O[1]+16)) + list(range(SB[1]+8, SB[1]+16)) + list(range(V2[1], V2[1]+4)) + list(range(W1[1], W1[1]+4)):
        a(f"v_mov_b32 v{r}, 0")
    for i in range(4): a(f"v_accvgpr_write_b32 a{Z[15]+i}, 0")
    a.need(vm=['b']); mkP()
    for tb in range(2):
        a(f"v_lshlrev_b32 v{G[tb]}, 16, v{bs[tb]}")
        for i in range(1, 16): a(f"v_mov_b32 v{G[tb]+i}, v{G[tb]}")
    a.drain(vm=False)
    a("s_barrier"); stamp(a, 1); a("s_waitcnt lgkmcnt(0)" if PROF else "")
    def rdKm(kb): 'K' in X or a.ds(f"ds_read_b128 {V(Km[kb%2],4)}, v{aKm} offset:{(kb//4%4)*12288 + kb%4*1536}", ('Km', kb))
    def rdKr(kb): 'K' in X or a.ds(f"ds_read_b64 {V(Kr[kb%2],2)}, v{aKr[kb//4%4]} offset:{kb%4*1536}", ('Kr', kb))
    def rdV(h, kb): 'V' in X or a.ds(f"ds_read_b128 {V((V1,V2)[h][kb%2],4)}, v{aV[kb//4%4]} offset:{kb%4*1280 + 640*h}", ('V', h, kb))
    def rdW(tb, n): 'W' in X or a.ds(f"ds_read_b128 {V((W0,W1)[tb][n%2],4)}, v{aW[n%8]} offset:{(n//8%4)*16384 + 8192*tb}", ('W', tb, n))
    def mM(n): 'M' in X or a(f"v_mfma_f32_32x32x16_bf16 {V(SB[n%2],16)}, {V(Km[n//2%2],4)}, {V(Qm[n%2],4)}, 0")
    def mm(n): 'm' in X or a(f"v_mfma_f32_32x32x8_bf16 {V(SB[n%2],16)}, {V(Kr[n//2%2],2)}, {V(Qr[n%2],2)}, {V(SB[n%2],16)}")
    def mS(h, n): 'S' in X or a(f"v_smfmac_f32_32x32x32_bf16 {V(O[n%2],16)}, {V((V1,V2)[h][n//2%2],4)}, {V(SB[n%2]+8*h,8)}, v{idx}")
    def mG(tb, n): 'G' in X or a(f"v_mfma_f32_32x32x16_bf16 {V(G[tb],16)}, {A(Z[n%16],4)}, {V((W0,W1)[tb][n%2],4)}, {V(G[tb],16)}")
    rdKm(0); rdKr(0); rdW(0, 0); rdV(0, 0); rdV(1, 0)
    a.need(lg=[('Kr', 0)])
    mM(0); a("s_nop 1"); mm(0); a("s_nop 7\ns_nop 3")
    a(f"{N}_loop:")
    def body(it):
        for t in range(32):
            n = it * 32 + t; kb = n // 2; st = n // 8; tt = t % 8; ev = t % 2 == 0
            ex = lambda lo, hi: [a(f"v_exp_f32 v{SB[n%2]+i}, v{SB[n%2]+i}") for i in range(lo, hi) if 'E' not in X]
            sF, sA, sC, sE = [], [], [], []
            if t == 13: sF.append(f"s_cbranch_scc1 {N}_sw\n{N}_swr:")
            if tt == 5: sF.append(f"s_add_u32 s{oW}, s{oW}, s{incW}")
            if t in (21, 29): sA.append(f"s_add_u32 s{oP}, s{oP}, 4096"); sC.append(f"s_add_u32 m0, s{mP}, s{oP}")
            if tt == 6: sC.append(f"s_add_u32 m0, s{mW}, {(st+3)%4*16384}")
            if tt == 2: sA.append(f"s_add_u32 s{oKV}, s{oKV}, s{incKV}"); sC.append(f"s_add_u32 m0, s{mKV}, {(st+2)%4*12288}")
            if (n + ZL) % 4 == 0: sF.append(f"s_add_u32 s{oZ}, s{oZ}, 4096")
            cmp3 = f"s_cmp_eq_u32 s{cnt}, 3"
            if t == 0: sA.append(cmp3); sC.append(f"s_cselect_b32 s{rE+2}, s{szE}, 0")
            if t == 12: sA.append(cmp3)
            if t == 31 - ZL: sF.append(cmp3); sC.append(f"s_cselect_b32 s{rZ+2}, 0, s{rZ+2}")
            if t == 28: sA.append(f"s_add_u32 s{cnt}, s{cnt}, 1")
            if t == 31: sC.append(f"s_cmp_lt_u32 s{cnt}, 4")
            mG(1, n - 1); a.need(lg=[('V', 1, (n - 1) // 2)]); [a(x) for x in sF]
            rdW(1, n); ex(0, 3)
            mS(1, n - 1); a.need(lg=[('Km', (n + 1) // 2)], vm=[('D', st + 1)] if tt == 6 else []); [a(x) for x in sA]
            if tt == 6 and 'B' not in X: a("s_barrier")
            ldZ(n + ZL); ex(3, 5)
            mM(n + 1); a.need(lg=[('W', 0, n)], vm=[('Z', n)])
            if ev: rdKm(kb + 1); rdKr(kb + 1)
            else: rdV(0, kb + 1); rdV(1, kb + 1)
            ex(5, 7)
            mG(0, n); a.need(lg=[('V', 0, kb), ('Kr', (n + 1) // 2)]); [a(x) for x in sC]
            rdW(0, n + 1); ex(7, 10)
            mm(n + 1); ex(10, 14)
            mS(0, n); a.need(lg=[('W', 1, n)]); [a(x) for x in sE]
            if tt >= 6: dmaW(tt - 6, st + 3)
            elif tt < 2: dmaW(tt + 2, st + 2)
            elif tt < 5: dmaKV(tt - 2, st + 2)
            elif t < 16: ldE(t // 8, 0); ldE(t // 8, 1)
            else: a.vmem(f"buffer_load_dwordx4 v{gP}, {S(rP,4)}, s{oP} offen lds", 'pf')
            ex(14, 16)
        a(f"s_cbranch_scc1 {N}_loop")
    a.loop(body, 3)
    a(f"{N}_lx:"); mG(1, 127); dmaW(2, 18); mS(1, 127); dmaW(3, 18); stamp(a, 2)
    U = [SB[0], V1[0]]
    a(f"s_mov_b32 s{t0}, 0x2b800000\ns_mov_b32 s{t1}, 0x53800000\ns_mov_b32 s{t2}, 0xffff0000")
    def unpack(tb, d):
        for i in range(8): a(f"v_lshlrev_b32 v{d+2*i}, 16, v{Z1[tb]+i}\nv_and_b32 v{d+2*i+1}, s{t2}, v{Z1[tb]+i}")
    a.need(vm=['z1']); a.lg = []; a("s_waitcnt lgkmcnt(0)")
    unpack(0, SB[0])
    sA, sB = a.sg(2), a.sg(2)
    a(f"""v_cmp_le_f32 vcc, s{t0}, v{O[0]+12}
    v_cmp_ge_f32 {S(sA,2)}, s{t1}, v{O[0]+12}
    s_and_b64 {S(sB,2)}, vcc, {S(sA,2)}
    v_cmp_le_f32 vcc, s{t0}, v{O[1]+12}
    v_cmp_ge_f32 {S(sA,2)}, s{t1}, v{O[1]+12}
    s_and_b64 {S(sB,2)}, vcc, {S(sB,2)}
    s_and_b64 {S(sB,2)}, {S(sA,2)}, {S(sB,2)}
    v_mov_b32 v{T+5}, {FLAG}
    s_cmp_eq_u64 {S(sB,2)}, -1
    s_cbranch_scc1 {N}_ok
    ds_write_b32 v{T+5}, v{T+5}
    s_waitcnt lgkmcnt(0)
    {N}_ok:
    s_barrier
    ds_read_b32 v{T+6}, v{T+5}""")
    unpack(1, SB[1])
    a(f"s_mov_b32 s{t0}, {WS_H}\ns_mov_b32 s{t1}, {WS_H + 55296}")
    for tb in range(2):
        for i in range(8): a(f"v_pk_mul_f32 {V(G[tb]+2*i,2)}, {V(G[tb]+2*i,2)}, {V(SB[tb]+2*i,2)}")
        for i in range(8): a(f"v_cvt_pk_bf16_f32 v{SB[tb]+i}, v{G[tb]+2*i}, v{G[tb]+2*i+1}")
        for r in range(2): a(f"buffer_store_dwordx4 {V(SB[tb]+4*r,4)}, v{gE}, {S(rE,4)}, s{t0+tb} offen offset:{1024*r}{WT}")
    a(f"""s_waitcnt lgkmcnt(0)
    s_barrier
    v_readfirstlane_b32 s{t2}, v{T+6}
    s_mov_b32 s{t0}, 81920
    s_andn2_b32 s{t2}, s{t2}, s{retry}
    {'s_nop 0 ;' if X else ''}s_cbranch_scc1 {N}_fall""")
    for q in range(2):
        a(f"v_rcp_f32 v{T}, v{O[q]+12}\ns_nop 0")
        for i in range(12): a(f"v_mul_f32 v{O[q]+i}, v{O[q]+i}, v{T}")
        for i in range(6): a(f"v_cvt_pk_bf16_f32 v{G[q]+i}, v{O[q]+2*i}, v{O[q]+2*i+1}")
        so = f"s{t0}" if q else "0"
        a(f"buffer_store_dwordx4 {V(G[q],4)}, v{gOm}, {S(rO,4)}, {so} offen{WT}\nbuffer_store_dwordx2 {V(G[q]+4,2)}, v{gOr}, {S(rO,4)}, {so} offen{WT}")
    stamp(a, 3); a.vm = ['st']; nv, ns = a.nv, a.ns; a("s_nop 1")
    tail3(a, N, pX, pO, pWS, sw, shd, sqg, ln, sfree, 2); a.nv, a.ns = nv, ns
    a(f"""{N}_sw:
    s_mov_b64 {S(rW,2)}, {S(rP,2)}
    s_mov_b64 {S(rKV,2)}, {S(rP,2)}
    s_mov_b32 s{rW+2}, s{rP+2}
    s_mov_b32 s{rKV+2}, s{rP+2}
    s_movk_i32 s{incW}, 16384
    s_movk_i32 s{incKV}, 12288
    s_movk_i32 s{oW}, -16384
    s_movk_i32 s{oKV}, -12288""")
    for r in gW: a(f"v_add_u32 v{r}, s{mW}, v{gZ}")
    for r in gKV: a(f"v_add_u32 v{r}, s{mKV}, v{gZ}")
    a(f"v_lshlrev_b32 v254, 6, v0\nv_min_u32 v254, {N}_sw-{N}_lx, v254\nv_add_u32 v254, {N}_lx-{N}_pc, v254\nglobal_load_dword v255, v254, s[96:97]\ns_branch {N}_swr")
    mx = [G[0], G[0] + 1]; gK, gKr = G[0] + 2, G[0] + 3
    a(f"""{N}_fall:
    s_waitcnt vmcnt(0)
    s_mov_b32 s{retry}, -1
    s_mov_b32 s{szE}, 0
    s_lshl_b32 s{t0}, s{shd}, 18
    s_add_u32 s{rW}, s{pW}, s{t0}
    s_addc_u32 s{rW+1}, s{pW+1}, 0
    s_cmp_lt_u32 s{sqg}, 7
    s_cselect_b32 s{rW+2}, {64*4096}, 0
    s_mov_b64 {S(rKV,2)}, {S(pWS,2)}
    s_mov_b32 s{rKV+2}, {WS_Z1}
    s_mov_b32 s{incKV}, 5120
    s_cmp_lt_u32 s{sw}, 2
    s_cselect_b32 s{incKV}, 327680, s{incKV}
    s_mov_b32 s{rZ+2}, s{szZ}
    s_lshl_b32 s{t0}, s{sqg}, 2
    s_add_u32 s{t0}, s{t0}, s{sw}
    s_mul_i32 s{t0}, s{t0}, 163840
    v_subrev_u32 v{gK}, s{t0}, v{gQm}
    v_subrev_u32 v{gKr}, s{t0}, v{gQr}
    v_mov_b32 v{mx[0]}, 0xff800000
    v_mov_b32 v{mx[1]}, 0xff800000
    s_mov_b32 s{t0}, 40960
    {N}_fl:
    buffer_load_dwordx4 {V(Km[0],4)}, v{gK}, {S(rKV,4)}, s{t0} offen
    buffer_load_dwordx2 {V(Kr[0],2)}, v{gKr}, {S(rKV,4)}, s{t0} offen
    s_waitcnt vmcnt(0)""")
    mM(0); mM(1); mm(0); mm(1); a("s_nop 7\ns_nop 7")
    for q in range(2):
        for i in range(8): a(f"v_max3_f32 v{mx[q]}, v{SB[q]+2*i}, v{SB[q]+2*i+1}, v{mx[q]}")
    a(f"""s_add_u32 s{t0}, s{t0}, 81920
    s_cmp_lt_u32 s{t0}, {64*81920}
    s_cbranch_scc1 {N}_fl
    v_cmp_gt_u32 vcc, 32, v{ln}
    s_mov_b32 s{t2}, 0xffff0000""")
    for q in range(2):
        a(f"""v_mov_b32 v{T}, v{mx[q]}
        s_nop 1
        v_permlane32_swap_b32 v{T}, v{mx[q]}
        s_nop 1
        v_max_f32 v{T}, v{T}, v{mx[q]}
        v_sub_f32 v{T}, 0, v{T}
        v_and_b32 v{T+1}, s{t2}, v{T}
        v_sub_f32 v{T}, v{T}, v{T+1}
        v_and_b32 v{T+2}, s{t2}, v{T}
        v_sub_f32 v{T}, v{T}, v{T+2}
        v_lshrrev_b32 v{T+1}, 16, v{T+1}
        v_or_b32 v{T+1}, v{T+1}, v{T+2}
        v_lshrrev_b32 v{T}, 16, v{T}
        v_cndmask_b32 v{Qr[q]}, v{T+1}, v{Qr[q]}, vcc
        v_cndmask_b32 v{Qr[q]+1}, v{T}, v{Qr[q]+1}, vcc""")
    a(f"s_barrier\ns_branch {N}_restart\n{N}_end:\ns_endpgm")
    return a
```

```python
from asm import *
import struct
LDS1 = 163840
XB = 98304
F = lambda x: hex(struct.unpack("<I", struct.pack("<f", x))[0])
PRE = int(os.environ.get("K1PRE", "4")); RATE = float(os.environ.get("RATE", "0.8")); BUD = float(os.environ.get("BUD", "4")); SG = int(os.environ.get("SG", "226"))
X = os.environ.get('X1', '')
PFM = int(os.environ.get('PFM', '0'))
ROT = eval(os.environ.get('ROT', '(2,1)')); NT = os.environ.get('NT', '')
ST = eval(os.environ.get('ST', '[]'))
SS = int(os.environ.get('SS', '2'))
STC = int(os.environ.get('STC', '6')); MB = int(os.environ.get('MB', '4'))
PFS = int(os.environ.get('PFS', '0')); PG = int(os.environ.get('PG', '254')); PD = int(os.environ.get('PD', '2'))
def k1():
    a = Asm(); N = "k1"
    head(a, N, 2); stamp0(a)
    pX, pQ, pI, pD, pWS, pWo, pWout, pSp, pB = [a.sg(2) for _ in range(9)]
    for p, o in ((pX, 0), (pQ, 8), (pI, 32), (pD, 72), (pWS, 80), (pWo, 16), (pWout, 56), (pSp, 40), (pB, 48)): a(f"s_load_dwordx2 {S(p,2)}, s[0:1], {o}")
    rX, rWA, rWB, rS, rD = [a.sg(4) for _ in range(5)]
    sw, srb, scg, b0, b1, t0, t1, t2, t3, oX, oW, mX, mW, sblk, scs, spin, phi = [a.sg() for _ in range(17)]; kk = [phi] + [a.sg() for _ in range(4)]
    acc = [a.v(16) for _ in range(8)]
    aW = [[[a.v() for _ in range(4)] for jp in range(2)] for hh in range(2)]
    aX = [a.v() for _ in range(4)]; gX = [a.v() for _ in range(4)]; gW = [[a.v() for _ in range(4)] for ph in range(3)]
    sel = a.v(4); cs = [a.v(4), a.v(4)]; sx = a.v(4); sq = [a.v(4), a.v(4)]
    xe = a.v(2); we = [a.v(2) for _ in range(2)]; aCr = [a.v(), a.v()]
    ln, l16, c1, c2, ir, rr, s1, s2, gS, aC, aTw, aTr, gD, cq, aTw2, aTr2 = [a.v() for _ in range(16)]
    T = a.v(16, 4); P = a.v(14, 4)
    xf = [a.a(4) for _ in range(40)]; Wf = [a.a(4) for _ in range(8)]
    a(f"""v_lshrrev_b32 v{T}, 6, v0
    v_and_b32 v{ln}, 63, v0
    v_readfirstlane_b32 s{sw}, v{T}
    s_and_b32 s{t0}, s2, 1
    s_bfe_u32 s{t1}, s2, 0x30003
    s_lshl_b32 s{t0}, s{t0}, 3
    s_add_u32 s{srb}, s{t0}, s{t1}
    s_bfe_u32 s{t0}, s2, 0x20001
    s_lshr_b32 s{t1}, s2, 6
    s_lshl_b32 s{t0}, s{t0}, 2
    s_add_u32 s{scg}, s{t0}, s{t1}
    v_lshlrev_b32 v{l16}, 4, v{ln}
    s_cmp_eq_u32 s{scg}, 15
    s_cbranch_scc1 {N}_side
    s_and_b32 s{b0}, s{sw}, 1
    s_mov_b32 s{spin}, 0
    s_lshr_b32 s{b1}, s{sw}, 1
    s_lshl_b32 s{sblk}, s{srb}, 2
    s_add_u32 s{sblk}, s{sblk}, s{sw}
    s_mul_i32 s{t0}, s{sblk}, 40960
    s_lshl_b32 s{mX}, s{sw}, 14
    s_add_u32 s{mX}, s{mX}, {XB}
    s_lshl_b32 s{mW}, s{sw}, 12
    v_lshrrev_b32 v{T}, 3, v{ln}
    v_lshrrev_b32 v{T+1}, 4, v{ln}
    v_and_b32 v{T+2}, 7, v{ln}
    v_mul_u32_u24 v{T}, 1280, v{T}
    v_xor_b32 v{T+2}, v{T+2}, v{T+1}
    v_lshl_add_u32 v{gX[0]}, v{T+2}, 4, v{T}
    v_xor_b32 v{gX[1]}, 64, v{gX[0]}
    v_add_u32 v{gX[1]}, {10240-1024}, v{gX[1]}
    v_add_u32 v{gX[2]}, {20480-2048}, v{gX[0]}
    v_add_u32 v{gX[3]}, {20480-2048}, v{gX[1]}
    s_cmp_lt_u32 s{scg}, 14
    s_cselect_b32 s{t1}, {640*3456}, 0
    s_movk_i32 s{t3}, 3456
    s_waitcnt lgkmcnt(0)""")
    ST or stamp(a, 7)
    srd(a, rX, pX, f"s{t0}", 0 if 'x' in X else 40960); srd(a, rWA, pI, 0, 0 if 'w' in X else f"s{t1}"); srd(a, rWB, pQ, 0, 0 if 'b' in X else 640 * 3840)
    a(f"""v_bfe_u32 v{T+2}, v{ln}, 2, 2
    v_xor_b32 v{T+2}, v{T+2}, v{T+1}
    v_and_b32 v{T+3}, 3, v{ln}
    v_and_b32 v{T+4}, 1, v{T+2}
    v_lshlrev_b32 v{T+3}, 4, v{T+3}
    v_lshl_add_u32 v{T+3}, v{T+4}, 6, v{T+3}
    v_lshrrev_b32 v{T+2}, 1, v{T+2}
    s_lshl_b32 s{t0}, s{sw}, 4
    v_lshl_add_u32 v{T+1}, v{T+2}, 6, v{T+1}
    v_add_u32 v{T+1}, s{t0}, v{T+1}
    s_lshl_b32 s{t0}, s{scg}, 7
    v_add_u32 v{T+3}, s{t0}, v{T+3}
    s_cmp_eq_u32 s{scg}, 0
    s_cselect_b32 s{t2}, {OOB}, 0
    v_xor_b32 v{T+4}, 1, v{T+4}
    v_mul_lo_u32 v{T+4}, v{T+4}, s{t2}
    v_mad_u32_u24 v{gW[1][0]}, v{T+1}, s{t3}, v{T+3}
    v_add_u32 v{gW[0][0]}, v{gW[1][0]}, v{T+4}
    v_add_u32 v{gW[0][0]}, 1664, v{gW[0][0]}
    s_bfe_u32 s{t0}, s2, 0x30003
    s_lshr_b32 s{t1}, s2, 6
    s_mul_i32 s{t0}, s{t0}, {ROT[0]}
    s_mul_i32 s{t1}, s{t1}, {ROT[1]}
    s_add_u32 s{t0}, s{t0}, s{t1}
    s_mul_i32 s{t1}, s{t0}, 13108
    s_lshr_b32 s{t1}, s{t1}, 16
    s_mul_i32 s{t1}, s{t1}, 5
    s_sub_u32 s{phi}, s{t0}, s{t1}""")
    for i in range(1, 4): a(f"v_add_u32 v{gW[0][i]}, {i*(4*3456-1024)}, v{gW[0][0]}")
    DQ = sorted([(8 * u - 6.5, 'X', u, i) for u in range(10) for i in range(4)] + [(16 * g - 6, 'W', g, i) for g in range(20) for i in range(4)])
    rot = lambda g, o, mul: f"s_mul_i32 s{o}, s{kk[g]}, {mul}"
    def dma():
        _, k, g, i = DQ.pop(0)
        if k == 'X':
            if i == 0: a(f"s_add_u32 m0, s{mX}, {g%4*4096}\n" + (rot(g // 2, oX, 256) if g % 2 == 0 else f"s_add_u32 s{oX}, s{oX}, 128"))
            a.vmem(f"buffer_load_dwordx4 v{gX[i]}, {S(rX,4)}, s{oX} offen offset:{1024*i} lds", ('X', g))
        else:
            P = g // 5
            if i == 0: a(f"s_add_u32 m0, s{mW}, {g%6*16384}\n" + rot(g % 5, oW, 128 * (3456, 3840)[P // 2]) + (f"\ns_add_u32 s{rWB}, s{rWB}, 1920\ns_addc_u32 s{rWB+1}, s{rWB+1}, 0\ns_sub_u32 s{rWB+2}, s{rWB+2}, 1920" if g == 15 and 'b' not in X else ''))
            a.vmem(f"buffer_load_dwordx4 v{gW[min(P,2)][i]}, {S((rWA,rWB)[P//2],4)}, s{oW} offen offset:{1024*i} lds", ('W', g))
    def dma_ok(gap):
        if not DQ: return False
        _, k, g, i = DQ[0]
        return gap >= (8 * (g - 4) + 1 if k == 'X' else 16 * (g - 4) - 6)
    ST or stamp(a, 8)
    for _ in range(8): dma()
    for g in range(1, 5): a(f"s_cmp_ge_u32 s{phi}, {5-g}\ns_cselect_b32 s{kk[g]}, {g-5}, {g}\ns_add_u32 s{kk[g]}, s{kk[g]}, s{phi}")
    a(f"s_movk_i32 s{t3}, 3840\nv_mad_u32_u24 v{gW[2][0]}, v{T+1}, s{t3}, v{T+3}")
    for i in range(1, 4): a(f"v_add_u32 v{gW[1][i]}, {i*(4*3456-1024)}, v{gW[1][0]}\nv_add_u32 v{gW[2][i]}, {i*(4*3840-1024)}, v{gW[2][0]}")
    srd(a, rS, pWS, 0, WS_PROF); srd(a, rD, pD, 0, 256)
    a(f"""s_lshl_b32 s{t0}, s{sblk}, 12
    s_add_u32 s{t0}, s{t0}, {WS_ST}
    s_lshl_b32 s{scs}, s{scg}, 8
    v_lshl_add_u32 v{gS}, v{ln}, 2, s{t0}
    v_lshlrev_b32 v{gD}, 2, v{ln}""")
    for _ in range(4): dma()
    a(f"""v_and_b32 v{T}, 31, v{ln}
    v_lshrrev_b32 v{T+1}, 5, v{ln}
    v_bfe_u32 v{T+2}, v{ln}, 1, 3
    v_xor_b32 v{T+2}, v{T+2}, v{T+1}
    v_lshlrev_b32 v{T+2}, 4, v{T+2}
    v_lshl_add_u32 v{T+2}, v{T}, 7, v{T+2}
    s_lshl_b32 s{t0}, s{b1}, 5
    v_xor_b32 v{T+2}, s{t0}, v{T+2}""")
    for j in range(4): a(f"v_xor_b32 v{T+3}, {32*j}, v{T+2}\nv_add_u32 v{aX[j]}, s{mX}, v{T+3}")
    a(f"""v_lshlrev_b32 v{T+3}, 6, v{T}
    v_lshl_add_u32 v{T+3}, v{T+1}, 4, v{T+3}
    s_add_u32 s{t0}, s{mX}, 4096
    v_bfe_u32 v{T+4}, v{ln}, 1, 2
    v_lshlrev_b32 v{T+4}, 4, v{T+4}
    v_xor_b32 v{T+3}, v{T+3}, v{T+4}
    v_add_u32 v{aTw}, s{t0}, v{T+3}
    v_xor_b32 v{aTw2}, 32, v{aTw}
    v_lshlrev_b32 v{T+3}, 3, v{T}
    v_add_u32 v{aC}, s{mX}, v{T+3}
    v_lshl_add_u32 v{T+9}, v{T+1}, 15, v{T+3}
    v_bfe_u32 v{T+2}, v{ln}, 2, 2
    v_lshl_add_u32 v{T+3}, v{T+1}, 3, v{T+2}
    v_and_b32 v{T+4}, 1, v{ln}
    v_bfe_u32 v{T+5}, v{ln}, 1, 1
    v_bfe_u32 v{T+6}, v{ln}, 4, 1
    v_lshlrev_b32 v{T+4}, 4, v{T+4}
    v_lshl_add_u32 v{T+4}, v{T+5}, 3, v{T+4}
    v_lshl_add_u32 v{T+4}, v{T+6}, 5, v{T+4}
    v_lshl_add_u32 v{T+5}, v{T+3}, 6, v{T+4}
    v_and_b32 v{T+7}, 8, v{ln}
    v_lshlrev_b32 v{T+7}, 1, v{T+7}
    v_xor_b32 v{T+5}, v{T+5}, v{T+7}
    v_add_u32 v{aTr}, s{t0}, v{T+5}
    v_xor_b32 v{aTr2}, 32, v{aTr}
    v_lshl_add_u32 v{T+4}, v{T+3}, 8, v{T+4}
    v_xor_b32 v{T+2}, s{b0}, v{T+2}
    v_lshl_add_u32 v{T+4}, v{T+2}, 6, v{T+4}
    s_lshl_b32 s{t0}, s{b1}, 12
    v_xor_b32 v{T+4}, s{t0}, v{T+4}""")
    for jp in range(2):
        for p in range(4):
            a(f"v_xor_b32 v{aW[0][jp][p]}, {jp*4096 + p*64}, v{T+4}\nv_add_u32 v{aW[1][jp][p]}, 49152, v{aW[0][jp][p]}")
    for _ in range(4 * (PRE - 3)): dma()
    TP = int(os.environ.get('TP', '256'))
    TW = int(os.environ.get('TW', '254'))
    a(f"v_and_b32 v254, 1, v{ln}\nv_bfe_u32 v253, v{ln}, 1, 1\nv_mul_u32_u24 v254, 0x700000, v254\nv_mul_u32_u24 v253, 0x3f0000, v253\nv_add_u32 v253, v253, v254\nv_cmp_eq_u32 vcc, 0, v254\nv_add_u32 v253, 0x500000, v253\nv_mov_b32 v254, 0x500000\nv_cndmask_b32 v253, v253, v254, vcc")
    a(f"""s_lshl_b32 s{t0}, s{b0}, 14
    s_add_u32 s{t1}, s{t0}, {XB}
    s_xor_b32 s{t0}, s{t0}, 16384
    s_add_u32 s{t0}, s{t0}, {XB}
    v_add_u32 v{aCr[0]}, s{t1}, v{T+9}
    v_add_u32 v{aCr[1]}, s{t0}, v{T+9}
    v_bfe_u32 v{T}, v{ln}, 2, 1
    v_and_b32 v{T+1}, 3, v{ln}
    v_xor_b32 v{T}, v{T}, v{T+6}
    v_or_b32 v{T}, v{T}, v{T+1}
    v_cmp_eq_u32 vcc, 0, v{T}
    v_mov_b32 v{T+1}, 0x3f803f80
    v_mov_b32 v{s1}, 0
    v_mov_b32 v{s2}, 0""")
    for i in range(4): a(f"v_cndmask_b32 v{sel+i}, 0, v{T+1}, vcc")
    dec = lambda m: (m // 80, m // 16, m % 16 // 8, m % 8 // 2, m % 2)
    def rdW(m):
        if m >= 320: return
        _, G, h, j, t = dec(m); sl = G % 6
        for r in range(2):
            a.ds(f"ds_read_b64_tr_b16 {A(Wf[m%8]+2*r,2)}, v{aW[sl//3][j%2][2*h+t]} offset:{sl%3*16384 + j//2*8192 + 1024*r}", ('W', m))
    def rdX(q):
        if q < 40: a.ds(f"ds_read_b128 {A(xf[q],4)}, v{aX[q%4]} offset:{q//4%4*4096}", ('X', q))
    ST or stamp(a, 9); a.need(vm=[('X', 0), ('W', 0)]); a("s_barrier"); stamp(a, 1); a("s_waitcnt lgkmcnt(0)" if PROF else "")
    rdX(0); rdW(0); rdW(1); rdX(1); rdW(2); rdW(3); rdX(2); rdX(3); rdW(4); rdW(5)
    a.need(lg=[('W', 1)])
    Q = []; gate = [0]
    op = lambda t, c=1: Q.append((c, t, gate[0]))
    ops = lambda txt: [op(t) for t in txt.split("\n")]
    def split_cs(P_):
        c = cs[P_ % 2]
        a(f"""v_cvt_pk_bf16_f32 v{c+1}, v{c}, v{c}
        v_and_b32 v{c+2}, 0xffff0000, v{c+1}
        v_sub_f32 v{c+2}, v{c}, v{c+2}
        v_cvt_pk_bf16_f32 v{c}, v{c}, v{c+2}
        v_and_b32 v{c+1}, 0xffff, v{c+1}""")
    def wrC(P_): a.ds(f"ds_write_b64 v{aC}, {V(cs[P_%2],2)} offset:{P_*256}", ('cw', P_))
    def rdE(P_):
        for t in range(2): a.ds(f"ds_read_b64 {V(we[t],2)}, v{aCr[t]} offset:{P_*256}", ('we', P_))
    def fold(P_, t): a(f"v_mfma_f32_32x32x8_bf16 {V(acc[2*P_+t],16)}, {V(we[t],2)}, {V(xe,2)}, {V(acc[2*P_+t],16)}")
    def zaddr(p, mul, base, dst):
        return f"""s_xor_b32 s{t1}, s{b0}, {p&1}
        s_lshl_b32 s{t2}, s{scg}, 1
        s_add_u32 s{t1}, s{t1}, s{t2}
        s_sub_u32 s{t1}, s{t1}, {1 if p < 2 else 0}
        s_mul_i32 s{t2}, s{t1}, {mul}
        s_add_u32 s{t2}, s{t2}, s{base}
        s_cmp_lt_u32 s{t1}, 27
        s_cselect_b32 s{t2}, s{t2}, {OOB}
        v_add_u32 v{dst}, s{t2}, v{l16}"""
    ZG = int(os.environ.get('ZG', '68')); gate[0] = ZG
    txt = f"s_mul_i32 s{t3}, s{sblk}, 55296\ns_add_u32 s{t3}, s{t3}, {WS_Z1}\n" + zaddr(2, 2048, t3, gX[2]) + "\n" + zaddr(3, 2048, t3, gX[3])
    txt += f"\ns_lshl_b32 s{t3}, s{sblk}, 11\ns_add_u32 s{t3}, s{t3}, {WS_Z2}\n" + zaddr(0, 131072, t3, gX[0]) + "\n" + zaddr(1, 131072, t3, gX[1])
    txt += f"""
    s_mul_i32 s{t3}, s{sblk}, 81920
    s_lshl_b32 s{t1}, s{scg}, 12
    s_add_u32 s{t3}, s{t3}, s{t1}
    s_lshl_b32 s{t1}, s{b0}, 11
    v_add_u32 v{T+4}, s{t3}, v{l16}
    v_xor_b32 v{T+4}, s{t1}, v{T+4}
    v_xor_b32 v{T+5}, 2048, v{T+4}"""
    tl = [x.strip() for x in txt.split("\n")]
    while tl:
        x = tl.pop(0)
        if x.startswith("s_cmp"): op(x + "\n" + tl.pop(0), 2)
        else: op(x)
    gate[0] = 82
    for i in range(4): op(f"v_add_f32 v{sq[0]+i}, v{sq[0]+i}, v{sq[1]+i}")
    op(f"v_and_b32 v{T}, 3, v{ln}")
    fill = [(f"v_mul_f32 v{T+1}, {F(-1/640)}, v{sx}", f"v_cvt_pk_bf16_f32 v{xe}, v{T+1}, v{T+1}"),
            (f"v_and_b32 v{T+3}, 0xffff0000, v{xe}", f"v_sub_f32 v{T+3}, v{T+1}, v{T+3}"),
            (f"v_cvt_pk_bf16_f32 v{xe+1}, v{T+3}, 0", f"v_mul_f32 v{T+1}, v{T+1}, v{T+1}")]
    for i in range(1, 4):
        op(f"v_cmp_eq_u32 vcc, {i}, v{T}"); op(fill[i-1][0]); op(fill[i-1][1]); op(f"v_cndmask_b32 v{sq[0]}, v{sq[0]}, v{sq[0]+i}, vcc")
    nxe = len(Q)
    ops(f"""v_mov_b32 v{T+2}, v{sq[0]}
    s_mov_b32 s{t0}, {F(1/640)}
    s_nop 0
    v_permlane32_swap_b32 v{T+2}, v{sq[0]}
    s_nop 1
    v_add_f32 v{T+2}, v{T+2}, v{sq[0]}
    v_fma_f32 v{T+2}, v{T+2}, s{t0}, -v{T+1}
    v_max_f32 v{T+2}, 0, v{T+2}
    v_add_f32 v{T+2}, {F(1e-5)}, v{T+2}
    v_rsq_f32 v{rr}, v{T+2}
    s_nop 0
    v_mul_f32 v{ir}, v{T+2}, v{rr}
    v_mul_f32 v{c1}, {F(-2*0.7978845608028654*1.4426950408889634)}, v{rr}
    v_mul_f32 v{c2}, v{rr}, v{rr}
    v_mul_f32 v{c2}, v{c1}, v{c2}
    v_mul_f32 v{c2}, {F(0.044715)}, v{c2}""")
    op(f"s_cmp_lt_u32 s{scg}, 10\ns_cselect_b32 s{t0}, {F(20**-0.5*1.4426950408889634)}, 1.0\nv_mul_f32 v{cq}, s{t0}, v{rr}", 3)
    pfs = f"""s_and_b32 s{t1}, s2, 7
            s_lshl_b32 s{t1}, s{t1}, 5
            s_lshr_b32 s{t2}, s2, 3
            s_add_u32 s{t1}, s{t1}, s{t2}
            s_lshl_b32 s{t1}, s{t1}, 15
            s_add_u32 s{rX}, s{pSp}, s{t1}
            s_addc_u32 s{rX+1}, s{pSp+1}, 0
            s_mov_b32 s{rX+2}, 32768
            v_lshrrev_b32 v{T+11}, 5, v0
            v_and_b32 v{T+12}, 31, v0
            v_lshlrev_b32 v{T+11}, 12, v{T+11}
            v_lshl_add_u32 v{T+11}, v{T+12}, {7 - PFS.bit_length() + 1}, v{T+11}
            v_and_b32 v{T+11}, {os.environ.get('PM', '-1')}, v{T+11}
            s_and_b32 s{t2}, s2, {os.environ.get('RM', '0')}
            s_lshl_b32 s{t2}, s{t2}, 9
            v_xor_b32 v{T+11}, s{t2}, v{T+11}
            v_lshlrev_b32 v{T+12}, 7, v{T+12}
            v_lshlrev_b32 v254, 6, v0
            v_min_u32 v254, k2_end-k2_go, v254
            v_add_u32 v254, k2_go-k1_pc, v254"""
    def pf(i):
        if i < PFS: a.vmem(f"buffer_load_dword v255, v{T+11}, {S(rX,4)}, 0 offen offset:{i*4096//PFS}", 'pf')
        elif i == PFS: a.vmem(f"global_load_dword v255, v254, s[96:97]", 'pf')
        else: a.vmem(f"global_load_dword v255, v{T+12}, {S(pB,2)}", 'pf')
    if PFS:
        tl = [x.strip() for x in pfs.split("\n")]
        while tl:
            x = tl.pop(0)
            if tl and tl[0].startswith("s_addc"): op(x + "\n" + tl.pop(0), 2)
            else: op(x)
        npf = len(Q)
    def gelu(r0, stats):
        R = range(4)
        for i in R: op(f"v_mul_f32 v{T+i}, v{r0+i}, v{r0+i}")
        for i in R: op(f"v_fma_f32 v{T+i}, v{T+i}, v{c2}, v{c1}")
        for i in R: op(f"v_mul_f32 v{T+i}, v{T+i}, v{r0+i}")
        for i in R: op(f"v_exp_f32 v{T+i}, v{T+i}", 2)
        for i in R: op(f"v_fma_f32 v{T+i}, v{T+i}, v{ir}, v{ir}")
        for i in R: op(f"v_rcp_f32 v{T+i}, v{T+i}", 2)
        for i in R: op(f"v_mul_f32 v{r0+i}, v{r0+i}, v{T+i}")
        if stats:
            for i in R: op(f"v_add_f32 v{s1}, v{s1}, v{r0+i}"); op(f"v_fmac_f32 v{s2}, v{r0+i}, v{r0+i}")
    TOT = int(os.environ.get('TOT', '7')); DC = int(os.environ.get('DC', '2')); C16 = int(os.environ.get('C16', '2')); PH = int(os.environ.get('PH', '0')); CR = int(os.environ.get('CR', '20')); FG = int(os.environ.get('FG', '8')); R1 = float(os.environ.get('R1', '0.25'))
    gate[0] = 80 + FG + 5
    for p in range(2):
        for b in range(4): gelu(acc[p] + 4 * b, True)
    def chk(N=N):
        a.need(vm=['cnt'])
        a(f"""{N}_c0:
        v_cmp_ne_u32 vcc, 15, v{T+10}
        s_nop 1
        s_cbranch_vccz {N}_c1
        s_add_u32 s{spin}, s{spin}, 0x4000
        s_cbranch_scc1 {N}_c1
        buffer_load_dword v{T+10}, v{gD}, {S(rD,4)}, 0 offen sc1
        s_waitcnt vmcnt(0)
        s_branch {N}_c0
        {N}_c1:""")
    op(chk, 3); op(f"v_permlane32_swap_b32 v{s1}, v{s2}"); op("s_nop 1"); op(f"v_add_f32 v{s1}, v{s1}, v{s2}"); op(f"v_min_u32 v{s1}, -2, v{s1}")
    op(lambda: a.vmem(f"buffer_store_dword v{s1}, v{gS}, {S(rS,4)}, s{scs} offen sc0 sc1", 'pub'))
    st4 = lambda r, ad, so, off: 'S' in X or a.vmem(f"buffer_store_dwordx4 {V(r,4)}, v{ad}, {S(rS,4)}, {so} offen offset:{off}{WT}", 'st')
    gate[0] = 160 + FG + 5
    for p in range(2, 4):
        for b in range(4):
            gelu(acc[p] + 4 * b, False)
            for i in range(2): op(f"v_cvt_pk_bf16_f32 v{acc[p]+2*b+i}, v{acc[p]+4*b+2*i}, v{acc[p]+4*b+2*i+1}")
            if b % 2: op(lambda p=p, b=b: st4(acc[p] + 2 * b - 2, gX[p], 0, b // 2 * 1024), STC)
    PS = [P + i for i in range(14)]
    def ldS(lo=0, hi=14):
        for i in range(lo, hi): a.vmem(f"buffer_load_dword v{PS[i]}, v{gS}, {S(rS,4)}, 0 offen offset:{256*i} sc1", 'S')
    gate[0] = 240 + FG + 5
    for t in range(2):
        d = acc[4 + t]
        for r in range(2):
            for i in range(8): op(f"v_mul_f32 v{d+8*r+i}, v{d+8*r+i}, v{cq}")
            for i in range(4): op(f"v_cvt_pk_bf16_f32 v{d+4*r+i}, v{d+8*r+2*i}, v{d+8*r+2*i+1}")
            op(lambda d=d, t=t, r=r: st4(d + 4 * r, T + 4 + t, 0, 1024 * r), STC)
    def poll():
        a.need(vm=['S'])
        a(f"{N}_s0:\nv_max_u32 v{T}, v{PS[0]}, v{PS[1]}")
        for i in range(1, 7): a(f"v_max3_u32 v{T}, v{PS[2*i]}, v{PS[2*i+1]}, v{T}")
        a(f"v_cmp_eq_u32 vcc, -1, v{T}\ns_nop 1\ns_cbranch_vccz {N}_s1\ns_add_u32 s{spin}, s{spin}, 0x4000\ns_cbranch_scc1 {N}_s1")
        sv = list(a.vm); ldS(); a.vm = sv; a(f"s_waitcnt vmcnt(0)\ns_branch {N}_s0\n{N}_s1:")
    gate[0] = max(gate[0], SG + 14 * SS + int(os.environ.get('SL', '20'))); op(poll, 11)
    for i in range(7): op(f"v_add_f32 v{PS[i]}, v{PS[i]}, v{PS[i+7]}")
    for i, k in ((0, 1), (2, 3), (4, 5), (0, 6), (2, 4), (0, 2)): op(f"v_add_f32 v{PS[i]}, v{PS[i]}, v{PS[k]}")
    ops(f"""v_mul_f32 v{T}, {F(1/864)}, v{PS[0]}
    v_mov_b32 v{T+1}, v{T}
    s_nop 1
    v_permlane32_swap_b32 v{T}, v{T+1}
    s_nop 1
    v_fma_f32 v{T+1}, -v{T}, v{T}, v{T+1}
    v_max_f32 v{T+1}, 0, v{T+1}
    v_add_f32 v{T+1}, {F(1e-5)}, v{T+1}
    v_rsq_f32 v{T+2}, v{T+1}
    s_nop 0
    v_mul_f32 v{T}, v{T}, v{T+2}""")
    def trw(src, slot, r): a.ds(f"ds_write_b128 v{(aTw,aTw2)[r]}, {V(src+4*r,4)} offset:{slot*2048}", ('tw', slot))
    def trr(dst, slot):
        for i in range(4): a.ds(f"ds_read_b64_tr_b16 {V(dst+2*i,2)}, v{(aTr,aTr2)[i%2]} offset:{slot*2048 + i//2*1024 + i%2*256}", ('tr', slot))
    def z2st(p, r):
        a.need(lg=[('tr', 4 + p)]); st4(acc[p] + 8 + 4 * r, gX[p], 0, 1024 * r)
    for p in range(2):
        d = acc[p]
        for r in range(2):
            for i in range(8): op(f"v_fma_f32 v{d+8*r+i}, v{d+8*r+i}, v{T+2}, -v{T}")
            for i in range(4): op(f"v_cvt_pk_bf16_f32 v{d+4*r+i}, v{d+8*r+2*i}, v{d+8*r+2*i+1}")
            op(lambda d=d, p=p, r=r: trw(d, 4 + p, r), 2)
            if p == 1 and r == 0: op(lambda: trr(acc[0] + 8, 4), 4)
    op(lambda: trr(acc[1] + 8, 5), 4); [op(lambda p=p, r=r: z2st(p, r), max(STC, 6)) for p in range(2) for r in range(2)]
    print("k1 filler slots", sum(c for c, _, _ in Q))
    def pop(budget, m):
        while Q and budget >= min(Q[0][0], MB) and Q[0][2] <= m:
            c, t, _ = Q.pop(0); budget -= c
            t() if callable(t) else a(t if 'f' not in X else '')
        return min(budget, 0)
    credit = 0; dcredit = 0.0; nq0 = len(Q)
    for m in range(320):
        P_, G, h, j, t = dec(m); q = m % 80 // 2; d = acc[2 * P_ + t]; mm = m % 80
        a(f"v_mfma_f32_32x32x16_bf16 {V(d,16)}, {A(Wf[m%8],4)}, {A(xf[q],4)}, {V(d,16) if q else 0}")
        vm, lg = [], []; L0 = len(a.L)
        if m % 2 == 1: lg += [('W', m + 1), ('W', m + 2), ('X', q + 1)]
        if (m + 6) % 8 == 0: vm += [('X', (m + 6) // 8)]
        bar = (m + 6) % 16 == 0 and m + 6 < 320
        if bar: vm += [('W', (m + 6) // 16)]
        if P_ and mm == FG - 3: lg += [('cw', P_ - 1)]; bar = True
        if P_ and mm == FG: lg += [('we', P_ - 1)]
        a.need(vm=vm, lg=lg)
        if bar and 'n' not in X: a("s_barrier")
        bud = BUD
        if P_ and mm == FG - 3: rdE(P_ - 1); bud -= 2
        if P_ and mm == 2: wrC(P_ - 1); bud -= 1
        if P_ == 0 and m % 8 in (2, 3): rdX((m + 6) // 8 * 4 + m % 2 * 2); rdX((m + 6) // 8 * 4 + m % 2 * 2 + 1)
        rdW(m + 6)
        dcredit += RATE if P_ == 0 else R1
        if (dcredit >= 1 if P_ == 0 else m % 4 == PH) and dma_ok(m): dma(); dcredit -= 1; bud -= 1
        dcredit = min(dcredit, 1.5 if P_ == 0 else 1 - R1)
        if m == 70: a.vmem(f"buffer_load_dword v{T+10}, v{gD}, {S(rD,4)}, 0 offen", 'cnt')
        if m == TW: a.vmem(f"buffer_load_dword v255, v253, {S(rS,4)}, 0 offen", 'pf')
        if m == TP: a(f"s_and_b32 s{oX}, s2, 7\ns_lshl_b32 s{oX}, s{oX}, 20\nv_mov_b32 v254, s{oX}"); a.vmem(f"global_load_dword v255, v254, {S(pSp,2)}", 'pf')
        if m == TP + 1: a("v_mov_b32 v254, 0"); a.vmem(f"global_load_dword v255, v254, {S(pB,2)}", 'pf')
        if m == TP + 2: a("v_lshlrev_b32 v254, 6, v0\nv_add_u32 v254, k2_go-k1_pc, v254"); a.vmem("global_load_dword v255, v254, s[96:97]", 'pf')
        if m == ZG: assert not any(k == 'X' for _, k, g, i in DQ)
        if SG <= m < SG + 14 * SS and (m - SG) % SS == 0 and 'L' not in X: ldS((m - SG) // SS, (m - SG) // SS + 1)
        if PFS and m == PG: assert len(Q) <= nq0 - npf
        if PFS and m >= PG and (m - PG) % PD == 0 and (m - PG) // PD < PFS + 2: pf((m - PG) // PD)
        if P_ and mm == 1: split_cs(P_ - 1); bud -= 5
        used = sum((1 if x.text() else 0) if isinstance(x, Wait) else (DC if 'buffer' in x else 1) for x in a.L[L0:])
        credit = pop(max(credit, -CR) + TOT - used, m)
        if j % 2 == 0 and t == 0 and 'c' not in X:
            a(f"v_mfma_f32_16x16x32_bf16 {V(cs[P_%2],4)}, {V(sel,4)}, {A(Wf[m%8],4)}, {V(cs[P_%2],4) if q else 0}"); credit = pop(credit + C16, m)
        if P_ == 0 and t == 0 and 's' not in X: a(f"v_mfma_f32_16x16x32_bf16 {V(sx,4)}, {V(sel,4)}, {A(xf[q],4)}, {V(sx,4) if q else 0}")
        if P_ == 0 and t == 1 and 'q' not in X:
            for r in range(2): a(f"v_mfma_f32_4x4x4_16b_bf16 {V(sq[r],4)}, {A(xf[q]+2*r,2)}, {A(xf[q]+2*r,2)}, {V(sq[r],4) if q else 0}")
        if P_ and mm in (FG, FG + 1):
            assert len(Q) <= nq0 - nxe
            a("s_nop 1"); fold(P_ - 1, mm - FG); credit = pop(credit + 5, m)
        if m == 79: stamp(a, 2)
        if m in ST: stamp(a, 7 + ST.index(m))
        if m == 159: stamp(a, 3)
        if m == 239: stamp(a, 4)
    print("k1 filler left", sum(c for c, _, _ in Q)); assert not DQ
    stamp(a, 5)
    a("s_nop 3"); split_cs(3); wrC(3)
    pop(1e9, 999)
    a.need(lg=[('cw', 3)]); a("s_barrier"); rdE(3)
    a(f"""v_and_b32 v{T}, 19, v{ln}
    v_bfe_u32 v{T+1}, v{ln}, 2, 1
    v_bfe_u32 v{T+2}, v{ln}, 3, 1
    v_lshl_add_u32 v{T}, v{T+1}, 3, v{T}
    v_lshl_add_u32 v{T}, v{T+2}, 2, v{T}
    s_sub_u32 s{t1}, s{scg}, 5
    s_lshl_b32 s{t1}, s{t1}, 1
    s_add_u32 s{t1}, s{t1}, s{b0}
    s_lshl_b32 s{t1}, s{t1}, 5
    v_add_u32 v{T}, s{t1}, v{T}
    v_lshrrev_b32 v{T+1}, 5, v{ln}
    v_mul_u32_u24 v{T+1}, 320, v{T+1}
    s_mul_i32 s{t1}, s{sblk}, 1280
    s_add_u32 s{t1}, s{t1}, {WS_VT}
    v_add_u32 v{T+1}, s{t1}, v{T+1}
    v_mov_b32 v{c1}, v{rr}
    v_mov_b32 v{c2}, v{rr}""")
    assert c1 % 2 == 0 and c2 == c1 + 1
    a.need(lg=[('we', 3)])
    for t in range(2): fold(3, t)
    for t in range(2):
        a(f"""v_xor_b32 v{T+2}, {32*t}, v{T}
        v_mul_u32_u24 v{T+3}, 52429, v{T+2}
        v_lshrrev_b32 v{T+3}, 20, v{T+3}
        v_mul_u32_u24 v{T+3}, {81920-320}, v{T+3}
        v_lshl_add_u32 v{T+2}, v{T+2}, 4, v{T+3}
        v_add_u32 v{T+6+t}, v{T+2}, v{T+1}""")
    def scale(t, r):
        d = acc[6 + t]
        for i in range(4): a(f"v_pk_mul_f32 {V(d+8*r+2*i,2)}, {V(d+8*r+2*i,2)}, {V(c1,2)}")
        for i in range(4): a(f"v_cvt_pk_bf16_f32 v{d+4*r+i}, v{d+8*r+2*i}, v{d+8*r+2*i+1}")
    a(f"s_mov_b32 s{t1}, {15*4096}\ns_cmp_ge_u32 s{scg}, 5\ns_cbranch_scc1 {N}_v")
    for t in range(2):
        for r in range(2): scale(t, r); st4(acc[6 + t] + 4 * r, T + 4 + t, f"s{t1}", 1024 * r)
    a(f"s_branch {N}_fin\n{N}_v:")
    for t in range(2):
        for r in range(2): scale(t, r); trw(acc[6 + t], t, r)
    for t in range(2): trr(acc[6 + t] + 8, t)
    for t in range(2):
        a.need(lg=[('tr', t)])
        for r in range(2): st4(acc[6 + t] + 8 + 4 * r, T + 6 + t, 0, 640 * r)
    a(f"{N}_fin:")
    a("s_branch k2_go")
    a.vm = []; a.lg = []
    a(f"""{N}_side:
    s_lshl_b32 s{sblk}, s{srb}, 2
    s_add_u32 s{sblk}, s{sblk}, s{sw}
    s_lshl_b32 s{t0}, s{sblk}, 12
    s_add_u32 s{t0}, s{t0}, {WS_ST}
    s_lshl_b32 s{sblk}, s{sblk}, 2
    v_mov_b32 v{T+4}, -1
    v_mov_b32 v{T+5}, -1
    v_mov_b32 v{T+6}, -1
    v_mov_b32 v{T+7}, -1
    v_mov_b32 v{T+8}, 15
    v_mov_b32 v{T+9}, s{sblk}
    s_waitcnt lgkmcnt(0)""")
    srd(a, rS, pWS, f"s{t0}", 4096); srd(a, rD, pD, 0, 256)
    for i in range(4): a(f"buffer_store_dwordx4 {V(T+4,4)}, v{l16}, {S(rS,4)}, 0 offen offset:{1024*i} sc0 sc1")
    a(f"s_lshl_b32 s{t0}, s{sblk}, 8\ns_add_u32 s{t0}, s{t0}, 0x11e0000\nv_add_u32 v{T+10}, s{t0}, v{l16}\nglobal_store_dwordx4 v{T+10}, {V(T+4,4)}, {S(pWS,2)} sc0 sc1")
    a(f"""s_mul_i32 s{mX}, s{sw}, 10240
    v_add_u32 v{T}, s{mX}, v{l16}
    s_mul_i32 s{srb}, s{srb}, 3""")
    srd(a, rS, pWS, WS_WT, 8 * 47 * 5120)
    for kk in range(3):
        a(f"""s_add_u32 s{t0}, s{srb}, {kk}
        s_sub_u32 s{t1}, s{t0}, 27
        s_cmp_lt_u32 s{t0}, 27
        s_cselect_b32 s{t1}, s{t0}, s{t1}
        s_cselect_b32 s{t2}, s{pWout}, s{pWo}
        s_cselect_b32 s{t3}, s{pWout+1}, s{pWo+1}
        s_mul_i32 s{t1}, s{t1}, 40960
        s_add_u32 s{rX}, s{t2}, s{t1}
        s_addc_u32 s{rX+1}, s{t3}, 0
        s_cmp_lt_u32 s{t0}, 47
        s_cselect_b32 s{rX+2}, 40960, 0
        s_mov_b32 s{rX+3}, 0x20000""")
        for i in range(10):
            if i % 4 == 0: a(f"s_add_u32 m0, s{mX}, {kk*40960 + i*1024}\ns_mov_b32 s{oX}, {i*1024}")
            a(f"buffer_load_dwordx4 v{T}, {S(rX,4)}, s{oX} offen offset:{i%4*1024} lds")
        if kk == 0: a(f"s_waitcnt vmcnt(10)\nbuffer_store_dword v{T+8}, v{T+9}, {S(rD,4)}, 0 offen sc0 sc1")
    a(f"""v_lshrrev_b32 v{T+1}, 4, v{ln}
    v_bfe_u32 v{T+2}, v{ln}, 2, 2
    v_lshl_add_u32 v{T+1}, v{T+1}, 3, v{T+2}
    v_mul_u32_u24 v{T+1}, 1280, v{T+1}
    v_and_b32 v{T+2}, 3, v{ln}
    v_mul_u32_u24 v{T+2}, 40, v{T+2}
    s_mul_i32 s{t0}, s{sw}, 320
    v_add3_u32 v{T+1}, v{T+1}, v{T+2}, s{t0}""")
    for kk in range(3):
        a(f"s_waitcnt vmcnt({(21, 20, 20)[kk]})\ns_barrier")
        for c in range(2):
            for nt in range(5):
                for h in range(2): a(f"ds_read_b64_tr_b16 {V(acc[0]+40*kk+20*c+4*nt+2*h,2)}, v{T+1} offset:{160*c + 8*nt + 5120*h}")
        a(f"v_add_u32 v{T+1}, 40960, v{T+1}")
        a(f"""s_add_u32 s{t0}, s{srb}, {kk}
        s_cmp_lt_u32 s{t0}, 47
        s_cselect_b32 s{rS+2}, s{rS+2}, 0
        s_mul_i32 s{t1}, s{sw}, 94
        s_add_u32 s{t0}, s{t0}, s{t1}
        s_mul_i32 s{t0}, s{t0}, 5120
        s_waitcnt lgkmcnt(0)""")
        for c in range(2):
            for nt in range(5):
                a(f"s_add_u32 s{t1}, s{t0}, {c*47*5120 + nt*1024}\nbuffer_store_dwordx4 {V(acc[0]+40*kk+20*c+4*nt,4)}, v{l16}, {S(rS,4)}, s{t1} offen{WT}")
    NP = int(os.environ.get('NP', '2'))
    if NP:
        a(f"""s_lshr_b32 s{t0}, s{sblk}, 4
        s_lshl_b32 s{t1}, s{t0}, 19
        s_mul_i32 s{t0}, s{sblk}, 10240
        s_add_u32 s{t0}, s{t0}, {WS_O + 1024}
        v_lshrrev_b32 v{T}, 1, v0
        v_and_b32 v{T+1}, 1, v0
        v_lshlrev_b32 v{T}, 12, v{T}
        v_lshl_add_u32 v{T}, v{T+1}, 7, v{T}
        v_add_u32 v{T}, s{t1}, v{T}
        v_lshrrev_b32 v{T+1}, 2, v{ln}
        v_and_b32 v{T+2}, 3, v{ln}
        v_mul_u32_u24 v{T+1}, 2560, v{T+1}
        v_lshl_add_u32 v{T+1}, v{T+2}, 7, v{T+1}
        v_add_u32 v{T+1}, s{t0}, v{T+1}
        s_lshl_b32 s{t0}, s{sblk}, 7
        v_lshl_add_u32 v{T+2}, v{T+2}, 7, s{t0}
        v_min_u32 v{T+3}, k2_end-k2_go, v{T+2}
        v_add_u32 v{T+3}, k2_go-k1_pc, v{T+3}
        v_and_b32 v{T+2}, 0xf80, v{T+2}
        global_load_dword v255, v{T+3}, s[96:97]
        global_load_dword v255, v{T+2}, {S(pB,2)}""")
        for i in range(NP):
            a(f"global_load_dword v255, v{T}, {S(pSp,2)} offset:{256*i}")
    a(f"v_lshlrev_b32 v{gD}, 2, v{ln}\nv_mov_b32 v{T+10}, 0\ns_mov_b32 s{spin}, 0"); chk(N + "s")
    a(f"s_branch k2_go\n{N}_end:\ns_endpgm")
    return a
```

```python
from asm import *
KVB, ONES, FLAG = 65536, 114688, 114688 + 5120
LDS2 = 163840
from k3f import tail3
X = os.environ.get('X2', ''); PFW = int(os.environ.get('PFW', '0')); PFO = int(os.environ.get('PFO', '0')); RM = int(os.environ.get('RM', '0')); WI = int(os.environ.get('WI', '0')); ZL = int(os.environ.get('ZL', '12'))
def k2():
    a = Asm(); N = "k2"
    a(f"{N}_go:\ns_getpc_b64 s[96:97]\n{N}_pc:"); stamp(a, 9); a.vm = ['st']
    pWS, pX, pO = [a.sg(2) for _ in range(3)]; sw, shd, sqg = [a.sg() for _ in range(3)]; sfree = a.ns; pW, pB, oE = [a.sg(2) for _ in range(3)]
    a(f"""s_load_dwordx2 {S(pW,2)}, s[0:1], 40
    s_load_dwordx2 {S(pB,2)}, s[0:1], 48
    s_load_dwordx2 {S(pWS,2)}, s[0:1], 80
    s_load_dwordx2 {S(pX,2)}, s[0:1], 0
    s_load_dwordx2 {S(pO,2)}, s[0:1], 64""")
    rW, rKV, rZ, rE, rO, rB = [a.sg(4) for _ in range(6)]
    sfb, sodd, sm5, t0, t1, t2, oW, oKV, oZ, incKV, mW, mKV, cnt, retry, szW, szZ, szE = [a.sg() for _ in range(17)]
    SB = [a.v(16), a.v(16)]; O = [a.v(16), a.v(16)]; G = [a.v(16), a.v(16)]
    Qm = [a.v(4), a.v(4)]; Qr = [a.v(2), a.v(2)]
    Km = [a.v(4), a.v(4)]; Kr = [a.v(2), a.v(2)]
    V1 = [a.v(4), a.v(4)]; V2 = [a.v(4), a.v(4)]; W0 = [a.v(4), a.v(4)]; W1 = [a.v(4), a.v(4)]
    Z1 = [a.v(8), a.v(8)]; bs = [a.v(), a.v()]
    aW = [a.v() for _ in range(8)]; aKm = a.v(); aKr = [a.v() for _ in range(4)]; aV = [a.v() for _ in range(4)]
    gW = [a.v() for _ in range(4)]; gKV = [a.v() for _ in range(3)]; gZ = a.v(); gQm, gQr, gE, gOm, gOr = [a.v() for _ in range(5)]
    idx, ln, l31, hf = [a.v() for _ in range(4)]; T = a.v(8, 4)
    Z = [a.a(4) for _ in range(16)]
    a(f"""v_lshrrev_b32 v{T}, 6, v0
    v_and_b32 v{ln}, 63, v0
    v_readfirstlane_b32 s{sw}, v{T}
    s_and_b32 s{t0}, s2, 7
    s_lshr_b32 s{t1}, s2, 6
    s_lshl_b32 s{t0}, s{t0}, 2
    s_add_u32 s{shd}, s{t0}, s{t1}
    s_bfe_u32 s{sqg}, s2, 0x30003
    s_lshl_b32 s{sfb}, s{sqg}, 2
    s_add_u32 s{sfb}, s{sfb}, s{sw}
    s_and_b32 s{sodd}, s{shd}, 1
    s_lshr_b32 s{sm5}, s{shd}, 1
    s_mul_i32 s{sm5}, s{sm5}, 2560
    s_mov_b32 s{retry}, 0
    v_and_b32 v{l31}, 31, v0
    v_bfe_u32 v{hf}, v0, 5, 1
    v_mov_b32 v{idx}, 0xdddddddd
    s_cmp_lt_u32 s{sqg}, 7
    s_cselect_b32 s{szW}, {64*4096}, 0
    s_cmp_lt_u32 s{sfb}, 27
    s_cselect_b32 s{szZ}, 0x20000, 0
    s_cselect_b32 s{szE}, {WS_WT}, 0
    s_lshl_b32 s{mW}, s{sw}, 12
    s_mul_i32 s{mKV}, s{sw}, 3072
    s_add_u32 s{mKV}, s{mKV}, {KVB}
    s_mov_b32 s{incKV}, 5120
    s_cmp_lt_u32 s{sw}, 2
    s_cselect_b32 s{incKV}, 327680, s{incKV}
    s_lshl_b32 s{t0}, s{shd}, 18
    s_lshl_b32 s{t1}, s{sfb}, 17
    s_add_u32 s{t1}, s{t1}, {WS_Z2}
    s_waitcnt lgkmcnt(0)""")
    srd(a, rW, pW, f"s{t0}", f"s{szW}"); srd(a, rKV, pWS, 0, WS_Z1); srd(a, rZ, pWS, f"s{t1}", f"s{szZ}")
    srd(a, rE, pWS, 0, f"s{szE}"); srd(a, rO, pWS, 0, WS_VT)
    a(f"""s_lshl_b32 s{t0}, s{sqg}, 2
    s_add_u32 s{t0}, s{t0}, s{sw}
    s_mul_i32 s{t1}, s{t0}, 163840
    s_add_u32 s{t1}, s{t1}, s{sm5}
    s_mul_i32 s{t2}, s{sodd}, 1536
    s_add_u32 s{t2}, s{t2}, s{t1}
    v_lshlrev_b32 v{gZ}, 4, v{ln}
    v_add_u32 v{gQm}, s{t2}, v{gZ}
    s_lshl_b32 s{t2}, s{sodd}, 3
    s_add_u32 s{t2}, s{t2}, s{t1}
    s_add_u32 s{t2}, s{t2}, 1024
    v_add_u32 v{gQr}, s{t2}, v{gZ}
    v_mov_b32 v{T}, {OOB}
    v_cmp_gt_u32 vcc, 32, v{ln}
    s_mov_b32 s{t2}, 81920
    s_nop 0
    v_cndmask_b32 v{gQr}, v{T}, v{gQr}, vcc""")
    gOm, gOr = gQm, gQr
    a(f"{N}_restart:")
    a(f"""s_mul_i32 s{t0}, s{sw}, 163840
    s_add_u32 s{t0}, s{t0}, s{sm5}
    s_lshl_b32 s{t1}, s{sodd}, 10
    s_add_u32 s{t0}, s{t0}, s{t1}
    s_add_u32 s{t0}, s{t0}, 40960
    s_mul_i32 s{t1}, s{shd}, 81920
    s_mul_i32 s{t2}, s{sw}, 3072
    s_add_u32 s{t1}, s{t1}, s{t2}
    s_add_u32 s{t1}, s{t1}, {WS_VT - 6144}
    s_cmp_lt_u32 s{sw}, 2
    s_cselect_b32 s{t0}, s{t0}, s{t1}
    s_cselect_b32 s{t1}, 80384, 0
    s_cmp_eq_u32 s{sw}, 3
    s_cselect_b32 s{t2}, {OOB}, s{t1}
    v_add_u32 v{gKV[0]}, s{t0}, v{gZ}
    v_mul_lo_u32 v{T}, v{hf}, s{t1}
    v_add_u32 v{gKV[2]}, s{t2}, v{gKV[0]}
    v_add_u32 v{gKV[1]}, v{T}, v{gKV[0]}""")
    a(f"""v_lshrrev_b32 v{T}, 4, v{ln}
    v_and_b32 v{T+1}, 15, v{ln}
    s_lshl_b32 s{t0}, s{sw}, 16""")
    for i in range(4):
        a(f"""v_add_u32 v{T+2}, {4*i}, v{T}
        v_xor_b32 v{T+3}, v{T+1}, v{T+2}
        v_lshlrev_b32 v{T+2}, 12, v{T+2}
        v_lshl_add_u32 v{T+2}, v{T+3}, 4, v{T+2}
        v_add_u32 v{gW[i]}, s{t0}, v{T+2}""")
        if i: a(f"v_subrev_u32 v{gW[i]}, {1024*i}, v{gW[i]}")
    def dmaW(i, st): 'D' in X or a.vmem(f"buffer_load_dwordx4 v{gW[i]}, {S(rW,4)}, s{oW} offen offset:{1024*i} sc1 lds", ('D', st))
    def dmaKV(i, st): 'd' in X or a.vmem(f"buffer_load_dwordx4 v{gKV[i]}, {S(rKV,4)}, s{oKV} offen offset:{1024*i} sc1 lds", ('D', st))
    def ldZ(n): 'Z' in X or a.vmem(f"buffer_load_dwordx4 {A(Z[n%16],4)}, v{gZ}, {S(rZ,4)}, s{oZ} offen offset:{(n%4)*1024} sc1", ('Z', n))
    incW, oP, mP = szW, a.sg(), a.sg()
    a(f"""s_mov_b32 s{oW}, 0
    s_mov_b32 s{oZ}, 0
    s_movk_i32 s{incW}, 256
    s_mov_b32 s{oKV}, 0
    s_mov_b32 s{cnt}, 0""")
    srd(a, rB, pB, 0, 4096)
    def preW():
        a(f"s_mov_b32 m0, s{mW}\ns_lshl_b32 s{t0}, s{shd}, 7\nv_lshl_add_u32 v{T}, v{l31}, 1, s{t0}")
        for i in range(4): dmaW(i, 0)
        for tb in range(2): a.vmem(f"buffer_load_ushort v{bs[tb]}, v{T}, {S(rB,4)}, 0 offen offset:{64*tb}", 'b')
        a(f"s_add_u32 m0, s{mW}, 16384\ns_add_u32 s{oW}, s{oW}, 256")
        for i in range(4): dmaW(i, 1)
        a(f"s_add_u32 m0, s{mW}, 32768\ns_add_u32 s{oW}, s{oW}, 256")
        dmaW(0, 2); dmaW(1, 2)
    PF1 = int(os.environ.get('PF1', '0')); FL1 = 0x11e8000
    a(f"""s_lshr_b32 s{t0}, s2, 2
    s_lshl_b32 s{t0}, s{t0}, 5
    s_and_b32 s{t1}, s2, 3
    s_add_u32 s{t0}, s{t0}, s{t1}
    s_lshl_b32 s{t0}, s{t0}, 2
    s_add_u32 s{t0}, s{t0}, {FL1}
    v_mov_b32 v{T+1}, s{t0}
    v_mov_b32 v{T+2}, 1""")
    if PF1: preW()
    a.need(vm=['st'])
    a(f"""s_barrier
    s_cmp_lg_u32 s{sw}, 0
    s_cbranch_scc1 {N}_ng
    s_mov_b64 exec, 1
    global_store_dword v{T+1}, v{T+2}, {S(pWS,2)} sc0 sc1
    s_mov_b64 exec, -1
    {N}_ng:""")
    if not PF1: preW()
    if int(os.environ.get('TX', '1')):
        a(f"s_mul_i32 s{t0}, s{shd}, 81920\nv_mov_b32 v254, s{t0}")
        for p in (pX, pO): a.vmem(f"global_load_dword v255, v254, {S(p,2)}", 'pf')
    a(f"""s_mul_i32 s{t0}, s{shd}, {2*55296}
    s_lshl_b32 s{t1}, s{sfb}, 11
    s_add_u32 s{t0}, s{t0}, s{t1}
    v_add_u32 v{gE}, s{t0}, v{gZ}
    s_mov_b32 s{oE}, {WS_Z1}
    s_mov_b32 s{oE+1}, {WS_Z1 + 55296}""")
    if int(os.environ.get('TK', '0')):
        a(f"v_min_u32 v254, 5, v{ln}\nv_cmp_gt_u32 vcc, 32, v{ln}\nv_mul_u32_u24 v254, {12*81920}, v254\nv_add_u32 v254, {3*81920+40960}, v254\nv_mov_b32 v253, {WS_WT}\nv_cndmask_b32 v254, v253, v254, vcc")
        a.vmem(f"global_load_dword v255, v254, {S(pWS,2)}", 'pf'); a.vmem(f"buffer_load_dword v255, v{gE}, {S(rE,4)}, s{oE} offen", 'pf')
    rP = rB; gP = a.v()
    def mkP():
        a(f"s_mul_i32 s{t0}, s{sqg}, {47*5120}\ns_add_u32 s{t0}, s{t0}, {WS_WT}\nv_lshlrev_b32 v{gP}, 4, v0\ns_lshl_b32 s{mP}, s{sw}, 10\ns_mov_b32 s{oP}, {131072-4096}")
        srd(a, rP, pWS, f"s{t0}", 47 * 5120)
    def ldE(tb, r): a.vmem(f"buffer_load_dwordx4 {V(Z1[tb]+4*r,4)}, v{gE}, {S(rE,4)}, s{oE+tb} offen offset:{1024*r} sc1", 'z1')
    a(f"v_and_b32 v{T+1}, 15, v{ln}\nv_lshlrev_b32 v{T+2}, 8, v{l31}")
    for j in range(8):
        a(f"""v_add_u32 v{T}, {2*j}, v{hf}
        v_xor_b32 v{T}, v{T}, v{T+1}
        v_lshl_add_u32 v{aW[j]}, v{T}, 4, v{T+2}""")
    a(f"""s_lshl_b32 s{t0}, s{sodd}, 9
    s_add_u32 s{t0}, s{t0}, {KVB}
    v_add_u32 v{aKm}, s{t0}, v{gZ}
    s_cmp_eq_u32 s{sodd}, 0
    s_cselect_b32 s{t0}, 1024, 8
    s_cselect_b32 s{t1}, 0, 4
    s_cselect_b32 s{t2}, 0, 16
    s_add_u32 s{t0}, s{t0}, {KVB}
    v_cmp_gt_u32 vcc, 32, v{ln}
    v_mov_b32 v{T+4}, {ONES}
    v_add_u32 v{T}, s{t0}, v{gZ}""")
    for s in range(4):
        a(f"v_cndmask_b32 v{aKr[s]}, v{T+4}, v{T}, vcc")
        if s < 3: a(f"v_add_u32 v{T}, 12288, v{T}")
    a(f"""v_and_b32 v{T}, 3, v{l31}
    v_bfe_u32 v{T+1}, v{l31}, 2, 1
    v_bfe_u32 v{T+2}, v{l31}, 3, 1
    v_lshl_add_u32 v{T}, v{T+1}, 3, v{T}
    v_lshl_add_u32 v{T}, v{T+2}, 2, v{T}
    v_add_u32 v{T}, s{t1}, v{T}
    v_subrev_u32 v{T+1}, s{t2}, v{l31}
    v_cmp_gt_u32 vcc, 16, v{l31}
    v_mul_u32_u24 v{T+2}, 320, v{hf}
    v_add_u32 v{T+2}, {KVB+6144}, v{T+2}
    v_cndmask_b32 v{T}, v{T+1}, v{T}, vcc
    v_cmp_gt_u32 vcc, 20, v{l31}
    v_lshl_add_u32 v{T}, v{T}, 4, v{T+2}
    s_nop 0""")
    for s in range(4):
        a(f"v_cndmask_b32 v{aV[s]}, v{T+4}, v{T}, vcc")
        if s < 3: a(f"v_add_u32 v{T}, 12288, v{T}")
    for i in range(4): a(f"v_mov_b32 v{T+i}, {0 if '0' in X else 0x3f803f80}")
    a(f"v_lshl_add_u32 v{T+4}, v0, 4, v{T+4}\nv_mov_b32 v{T+5}, {FLAG}\nv_mov_b32 v{T+6}, 0")
    a.ds(f"ds_write_b128 v{T+4}, {V(T,4)}"); a.ds(f"ds_write_b128 v{T+4}, {V(T,4)} offset:1024"); a.ds(f"ds_write_b32 v{T+5}, v{T+6}")
    for r in list(range(O[0], O[0]+16)) + list(range(O[1], O[1]+16)) + list(range(SB[1]+8, SB[1]+16)) + list(range(V2[1], V2[1]+4)) + list(range(W1[1], W1[1]+4)):
        a(f"v_mov_b32 v{r}, 0")
    for i in range(4): a(f"v_accvgpr_write_b32 a{Z[15]+i}, 0")
    a.need(vm=['b']); mkP()
    for tb in range(2):
        a(f"v_lshlrev_b32 v{G[tb]}, 16, v{bs[tb]}")
        for i in range(1, 16): a(f"v_mov_b32 v{G[tb]+i}, v{G[tb]}")
    a(f"""v_lshlrev_b32 v{T+4}, 7, v{ln}
    v_add_u32 v{T+4}, {FL1}, v{T+4}
    s_mov_b32 s{t2}, 0
    s_cmp_lg_u32 s{sw}, 0
    s_cbranch_scc1 {N}_g1
    {N}_g0:
    global_load_dwordx4 {V(T,4)}, v{T+4}, {S(pWS,2)} sc1
    s_add_u32 s{t2}, s{t2}, 0x2000
    s_cbranch_scc1 {N}_g1
    s_waitcnt vmcnt(0)
    v_or3_b32 v{T}, v{T}, v{T+1}, v{T+2}
    v_or_b32 v{T}, v{T}, v{T+3}
    v_cmp_ne_u32 vcc, 1, v{T}
    s_nop 1
    s_cbranch_vccnz {N}_g0
    {N}_g1:""")
    a.drain(); a(f"s_barrier\ns_mov_b32 m0, s{mKV}\ns_mov_b32 s{t2}, 81920\ns_cmp_lg_u32 s{retry}, 0\ns_cbranch_scc1 {N}_nq"); stamp(a, 10)
    for q in range(2):
        so = f"s{t2}" if q else "0"
        a.vmem(f"buffer_load_dwordx4 {V(Qm[q],4)}, v{gQm}, {S(rKV,4)}, {so} offen sc1", ('Q', q))
        a.vmem(f"buffer_load_dwordx2 {V(Qr[q],2)}, v{gQr}, {S(rKV,4)}, {so} offen sc1", ('Q', q))
    a(f"{N}_nq:")
    for i in range(3): dmaKV(i, 0)
    ldZ(0); ldZ(1)
    a(f"s_add_u32 s{oKV}, s{oKV}, s{incKV}\ns_add_u32 m0, s{mKV}, 12288\ns_nop 0")
    for i in range(3): dmaKV(i, 1)
    a(f"s_add_u32 m0, s{mW}, 32768")
    for n in range(2, ZL):
        if n % 4 == 0: a(f"s_add_u32 s{oZ}, s{oZ}, 4096")
        ldZ(n)
    a.need(vm=[('D', 0)])
    a("s_barrier"); stamp(a, 1); a("s_waitcnt lgkmcnt(0)" if PROF else "")
    def rdKm(kb): 'K' in X or a.ds(f"ds_read_b128 {V(Km[kb%2],4)}, v{aKm} offset:{(kb//4%4)*12288 + kb%4*1536}", ('Km', kb))
    def rdKr(kb): 'K' in X or a.ds(f"ds_read_b64 {V(Kr[kb%2],2)}, v{aKr[kb//4%4]} offset:{kb%4*1536}", ('Kr', kb))
    def rdV(h, kb): 'V' in X or a.ds(f"ds_read_b128 {V((V1,V2)[h][kb%2],4)}, v{aV[kb//4%4]} offset:{kb%4*1280 + 640*h}", ('V', h, kb))
    def rdW(tb, n): 'W' in X or a.ds(f"ds_read_b128 {V((W0,W1)[tb][n%2],4)}, v{aW[n%8]} offset:{(n//8%4)*16384 + 8192*tb}", ('W', tb, n))
    def mM(n): 'M' in X or a(f"v_mfma_f32_32x32x16_bf16 {V(SB[n%2],16)}, {V(Km[n//2%2],4)}, {V(Qm[n%2],4)}, 0")
    def mm(n): 'm' in X or a(f"v_mfma_f32_32x32x8_bf16 {V(SB[n%2],16)}, {V(Kr[n//2%2],2)}, {V(Qr[n%2],2)}, {V(SB[n%2],16)}")
    def mS(h, n): 'S' in X or a(f"v_smfmac_f32_32x32x32_bf16 {V(O[n%2],16)}, {V((V1,V2)[h][n//2%2],4)}, {V(SB[n%2]+8*h,8)}, v{idx}")
    def mG(tb, n): 'G' in X or a(f"v_mfma_f32_32x32x16_bf16 {V(G[tb],16)}, {A(Z[n%16],4)}, {V((W0,W1)[tb][n%2],4)}, {V(G[tb],16)}")
    rdKm(0); rdKr(0); rdW(0, 0); rdV(0, 0); rdV(1, 0)
    a.need(lg=[('Kr', 0)])
    mM(0); a("s_nop 1"); mm(0); a("s_nop 7\ns_nop 3")
    a(f"{N}_loop:")
    def body(it):
        for t in range(32):
            n = it * 32 + t; kb = n // 2; st = n // 8; tt = t % 8; ev = t % 2 == 0
            ex = lambda lo, hi: [a(f"v_exp_f32 v{SB[n%2]+i}, v{SB[n%2]+i}") for i in range(lo, hi) if 'E' not in X]
            sF, sA, sC, sE = [], [], [], []
            if t == 13: sF.append(f"s_cbranch_scc1 {N}_sw\n{N}_swr:")
            if tt == 5: sF.append(f"s_add_u32 s{oW}, s{oW}, s{incW}")
            if t in (21, 29): sA.append(f"s_add_u32 s{oP}, s{oP}, 4096"); sC.append(f"s_add_u32 m0, s{mP}, s{oP}")
            if tt == 6: sC.append(f"s_add_u32 m0, s{mW}, {(st+3)%4*16384}")
            if tt == 2: sA.append(f"s_add_u32 s{oKV}, s{oKV}, s{incKV}"); sC.append(f"s_add_u32 m0, s{mKV}, {(st+2)%4*12288}")
            if (n + ZL) % 4 == 0: sF.append(f"s_add_u32 s{oZ}, s{oZ}, 4096")
            cmp3 = f"s_cmp_eq_u32 s{cnt}, 3"
            if t == 0: sA.append(cmp3); sC.append(f"s_cselect_b32 s{rE+2}, s{szE}, 0")
            if t == 12: sA.append(cmp3)
            if t == 31 - ZL: sF.append(cmp3); sC.append(f"s_cselect_b32 s{rZ+2}, 0, s{rZ+2}")
            if t == 28: sA.append(f"s_add_u32 s{cnt}, s{cnt}, 1")
            if t == 31: sC.append(f"s_cmp_lt_u32 s{cnt}, 4")
            mG(1, n - 1); a.need(lg=[('V', 1, (n - 1) // 2)]); [a(x) for x in sF]
            rdW(1, n); ex(0, 3)
            mS(1, n - 1); a.need(lg=[('Km', (n + 1) // 2)], vm=[('D', st + 1)] if tt == 6 else []); [a(x) for x in sA]
            if tt == 6 and 'B' not in X: a("s_barrier")
            ldZ(n + ZL); ex(3, 5)
            mM(n + 1); a.need(lg=[('W', 0, n)], vm=[('Z', n)])
            if ev: rdKm(kb + 1); rdKr(kb + 1)
            else: rdV(0, kb + 1); rdV(1, kb + 1)
            ex(5, 7)
            mG(0, n); a.need(lg=[('V', 0, kb), ('Kr', (n + 1) // 2)]); [a(x) for x in sC]
            rdW(0, n + 1); ex(7, 10)
            mm(n + 1); ex(10, 14)
            mS(0, n); a.need(lg=[('W', 1, n)]); [a(x) for x in sE]
            if tt >= 6: dmaW(tt - 6, st + 3)
            elif tt < 2: dmaW(tt + 2, st + 2)
            elif tt < 5: dmaKV(tt - 2, st + 2)
            elif t < 16: ldE(t // 8, 0); ldE(t // 8, 1)
            else: a.vmem(f"buffer_load_dwordx4 v{gP}, {S(rP,4)}, s{oP} offen sc1 lds", 'pf')
            ex(14, 16)
        a(f"s_cbranch_scc1 {N}_loop")
    a.loop(body, 3)
    a(f"{N}_lx:"); mG(1, 127); dmaW(2, 18); mS(1, 127); dmaW(3, 18); stamp(a, 2)
    U = [SB[0], V1[0]]
    a(f"s_mov_b32 s{t0}, 0x2b800000\ns_mov_b32 s{t1}, 0x53800000\ns_mov_b32 s{t2}, 0xffff0000")
    def unpack(tb, d):
        for i in range(8): a(f"v_lshlrev_b32 v{d+2*i}, 16, v{Z1[tb]+i}\nv_and_b32 v{d+2*i+1}, s{t2}, v{Z1[tb]+i}")
    a.need(vm=['z1']); a.lg = []; a("s_waitcnt lgkmcnt(0)")
    unpack(0, SB[0])
    sA, sB = a.sg(2), a.sg(2)
    a(f"""v_cmp_le_f32 vcc, s{t0}, v{O[0]+12}
    v_cmp_ge_f32 {S(sA,2)}, s{t1}, v{O[0]+12}
    s_and_b64 {S(sB,2)}, vcc, {S(sA,2)}
    v_cmp_le_f32 vcc, s{t0}, v{O[1]+12}
    v_cmp_ge_f32 {S(sA,2)}, s{t1}, v{O[1]+12}
    s_and_b64 {S(sB,2)}, vcc, {S(sB,2)}
    s_and_b64 {S(sB,2)}, {S(sA,2)}, {S(sB,2)}
    v_mov_b32 v{T+5}, {FLAG}
    s_cmp_eq_u64 {S(sB,2)}, -1
    s_cbranch_scc1 {N}_ok
    ds_write_b32 v{T+5}, v{T+5}
    s_waitcnt lgkmcnt(0)
    {N}_ok:
    s_barrier
    ds_read_b32 v{T+6}, v{T+5}""")
    unpack(1, SB[1])
    a(f"s_mov_b32 s{t0}, {WS_H}\ns_mov_b32 s{t1}, {WS_H + 55296}")
    for tb in range(2):
        for i in range(8): a(f"v_pk_mul_f32 {V(G[tb]+2*i,2)}, {V(G[tb]+2*i,2)}, {V(SB[tb]+2*i,2)}")
        for i in range(8): a(f"v_cvt_pk_bf16_f32 v{SB[tb]+i}, v{G[tb]+2*i}, v{G[tb]+2*i+1}")
        for r in range(2): a(f"buffer_store_dwordx4 {V(SB[tb]+4*r,4)}, v{gE}, {S(rE,4)}, s{t0+tb} offen offset:{1024*r}{WT}")
    a(f"""s_waitcnt lgkmcnt(0)
    s_barrier
    v_readfirstlane_b32 s{t2}, v{T+6}
    s_mov_b32 s{t0}, 81920
    s_andn2_b32 s{t2}, s{t2}, s{retry}
    {'s_nop 0 ;' if X else ''}s_cbranch_scc1 {N}_fall""")
    for q in range(2):
        a(f"v_rcp_f32 v{T}, v{O[q]+12}\ns_nop 0")
        for i in range(12): a(f"v_mul_f32 v{O[q]+i}, v{O[q]+i}, v{T}")
        for i in range(6): a(f"v_cvt_pk_bf16_f32 v{G[q]+i}, v{O[q]+2*i}, v{O[q]+2*i+1}")
        so = f"s{t0}" if q else "0"
        a(f"buffer_store_dwordx4 {V(G[q],4)}, v{gOm}, {S(rO,4)}, {so} offen{WT}\nbuffer_store_dwordx2 {V(G[q]+4,2)}, v{gOr}, {S(rO,4)}, {so} offen{WT}")
    stamp(a, 3); a.vm = ['st']; nv, ns = a.nv, a.ns; a("s_nop 1")
    tail3(a, N, pX, pO, pWS, sw, shd, sqg, ln, sfree, 2); a.nv, a.ns = nv, ns
    a(f"""{N}_sw:
    s_mov_b64 {S(rW,2)}, {S(rP,2)}
    s_mov_b64 {S(rKV,2)}, {S(rP,2)}
    s_mov_b32 s{rW+2}, s{rP+2}
    s_mov_b32 s{rKV+2}, s{rP+2}
    s_movk_i32 s{incW}, 16384
    s_movk_i32 s{incKV}, 12288
    s_movk_i32 s{oW}, -16384
    s_movk_i32 s{oKV}, -12288""")
    for r in gW: a(f"v_add_u32 v{r}, s{mW}, v{gZ}")
    for r in gKV: a(f"v_add_u32 v{r}, s{mKV}, v{gZ}")
    a(f"v_lshlrev_b32 v254, 6, v0\nv_min_u32 v254, {N}_sw-{N}_lx, v254\nv_add_u32 v254, {N}_lx-{N}_pc, v254\nglobal_load_dword v255, v254, s[96:97]\ns_branch {N}_swr")
    mx = [G[0], G[0] + 1]; gK, gKr = G[0] + 2, G[0] + 3
    a(f"""{N}_fall:
    s_waitcnt vmcnt(0)
    s_mov_b32 s{retry}, -1
    s_mov_b32 s{szE}, 0
    s_lshl_b32 s{t0}, s{shd}, 18
    s_add_u32 s{rW}, s{pW}, s{t0}
    s_addc_u32 s{rW+1}, s{pW+1}, 0
    s_cmp_lt_u32 s{sqg}, 7
    s_cselect_b32 s{rW+2}, {64*4096}, 0
    s_mov_b64 {S(rKV,2)}, {S(pWS,2)}
    s_mov_b32 s{rKV+2}, {WS_Z1}
    s_mov_b32 s{incKV}, 5120
    s_cmp_lt_u32 s{sw}, 2
    s_cselect_b32 s{incKV}, 327680, s{incKV}
    s_mov_b32 s{rZ+2}, s{szZ}
    s_lshl_b32 s{t0}, s{sqg}, 2
    s_add_u32 s{t0}, s{t0}, s{sw}
    s_mul_i32 s{t0}, s{t0}, 163840
    v_subrev_u32 v{gK}, s{t0}, v{gQm}
    v_subrev_u32 v{gKr}, s{t0}, v{gQr}
    v_mov_b32 v{mx[0]}, 0xff800000
    v_mov_b32 v{mx[1]}, 0xff800000
    s_mov_b32 s{t0}, 40960
    {N}_fl:
    buffer_load_dwordx4 {V(Km[0],4)}, v{gK}, {S(rKV,4)}, s{t0} offen sc1
    buffer_load_dwordx2 {V(Kr[0],2)}, v{gKr}, {S(rKV,4)}, s{t0} offen sc1
    s_waitcnt vmcnt(0)""")
    mM(0); mM(1); mm(0); mm(1); a("s_nop 7\ns_nop 7")
    for q in range(2):
        for i in range(8): a(f"v_max3_f32 v{mx[q]}, v{SB[q]+2*i}, v{SB[q]+2*i+1}, v{mx[q]}")
    a(f"""s_add_u32 s{t0}, s{t0}, 81920
    s_cmp_lt_u32 s{t0}, {64*81920}
    s_cbranch_scc1 {N}_fl
    v_cmp_gt_u32 vcc, 32, v{ln}
    s_mov_b32 s{t2}, 0xffff0000""")
    for q in range(2):
        a(f"""v_mov_b32 v{T}, v{mx[q]}
        s_nop 1
        v_permlane32_swap_b32 v{T}, v{mx[q]}
        s_nop 1
        v_max_f32 v{T}, v{T}, v{mx[q]}
        v_sub_f32 v{T}, 0, v{T}
        v_and_b32 v{T+1}, s{t2}, v{T}
        v_sub_f32 v{T}, v{T}, v{T+1}
        v_and_b32 v{T+2}, s{t2}, v{T}
        v_sub_f32 v{T}, v{T}, v{T+2}
        v_lshrrev_b32 v{T+1}, 16, v{T+1}
        v_or_b32 v{T+1}, v{T+1}, v{T+2}
        v_lshrrev_b32 v{T}, 16, v{T}
        v_cndmask_b32 v{Qr[q]}, v{T+1}, v{Qr[q]}, vcc
        v_cndmask_b32 v{Qr[q]+1}, v{T}, v{Qr[q]+1}, vcc""")
    a(f"s_barrier\ns_branch {N}_restart\n{N}_end:\ns_endpgm")
    return a
```

```python
from asm import *
import struct
LDS1 = 163840
XB = 98304
F = lambda x: hex(struct.unpack("<I", struct.pack("<f", x))[0])
PRE = int(os.environ.get("K1PRE", "4")); RATE = float(os.environ.get("RATE", "0.8")); BUD = float(os.environ.get("BUD", "4")); SG = int(os.environ.get("SG", "226"))
X = os.environ.get('X1', '')
PFM = int(os.environ.get('PFM', '0'))
ROT = eval(os.environ.get('ROT', '(2,1)')); NT = os.environ.get('NT', '')
ST = eval(os.environ.get('ST', '[]'))
SS = int(os.environ.get('SS', '2'))
STC = int(os.environ.get('STC', '6')); MB = int(os.environ.get('MB', '4'))
PFS = int(os.environ.get('PFS', '0')); PG = int(os.environ.get('PG', '254')); PD = int(os.environ.get('PD', '2'))
def k1():
    a = Asm(); N = "k1"
    head(a, N, 2); stamp0(a)
    pX, pQ, pI, pD, pWS, pWo, pWout, pSp, pB = [a.sg(2) for _ in range(9)]
    for p, o in ((pX, 0), (pQ, 8), (pI, 32), (pD, 72), (pWS, 80), (pWo, 16), (pWout, 56), (pSp, 40), (pB, 48)): a(f"s_load_dwordx2 {S(p,2)}, s[0:1], {o}")
    rX, rWA, rWB, rS, rD = [a.sg(4) for _ in range(5)]
    sw, srb, scg, b0, b1, t0, t1, t2, t3, oX, oW, mX, mW, sblk, scs, spin, phi = [a.sg() for _ in range(17)]; kk = [phi] + [a.sg() for _ in range(4)]
    acc = [a.v(16) for _ in range(8)]
    aW = [[[a.v() for _ in range(4)] for jp in range(2)] for hh in range(2)]
    aX = [a.v() for _ in range(4)]; gX = [a.v() for _ in range(4)]; gW = [[a.v() for _ in range(4)] for ph in range(3)]
    sel = a.v(4); cs = [a.v(4), a.v(4)]; sx = a.v(4); sq = [a.v(4), a.v(4)]
    xe = a.v(2); we = [a.v(2) for _ in range(2)]; aCr = [a.v(), a.v()]
    ln, l16, c1, c2, ir, rr, s1, s2, gS, aC, aTw, aTr, gD, cq, aTw2, aTr2 = [a.v() for _ in range(16)]
    T = a.v(16, 4); P = a.v(14, 4)
    xf = [a.a(4) for _ in range(40)]; Wf = [a.a(4) for _ in range(8)]
    a(f"""v_lshrrev_b32 v{T}, 6, v0
    v_and_b32 v{ln}, 63, v0
    v_readfirstlane_b32 s{sw}, v{T}
    s_and_b32 s{t0}, s2, 1
    s_bfe_u32 s{t1}, s2, 0x30003
    s_lshl_b32 s{t0}, s{t0}, 3
    s_add_u32 s{srb}, s{t0}, s{t1}
    s_bfe_u32 s{t0}, s2, 0x20001
    s_lshr_b32 s{t1}, s2, 6
    s_lshl_b32 s{t0}, s{t0}, 2
    s_add_u32 s{scg}, s{t0}, s{t1}
    v_lshlrev_b32 v{l16}, 4, v{ln}
    s_cmp_eq_u32 s{scg}, 15
    s_cbranch_scc1 {N}_side
    s_and_b32 s{b0}, s{sw}, 1
    s_mov_b32 s{spin}, 0
    s_lshr_b32 s{b1}, s{sw}, 1
    s_lshl_b32 s{sblk}, s{srb}, 2
    s_add_u32 s{sblk}, s{sblk}, s{sw}
    s_mul_i32 s{t0}, s{sblk}, 40960
    s_lshl_b32 s{mX}, s{sw}, 14
    s_add_u32 s{mX}, s{mX}, {XB}
    s_lshl_b32 s{mW}, s{sw}, 12
    v_lshrrev_b32 v{T}, 3, v{ln}
    v_lshrrev_b32 v{T+1}, 4, v{ln}
    v_and_b32 v{T+2}, 7, v{ln}
    v_mul_u32_u24 v{T}, 1280, v{T}
    v_xor_b32 v{T+2}, v{T+2}, v{T+1}
    v_lshl_add_u32 v{gX[0]}, v{T+2}, 4, v{T}
    v_xor_b32 v{gX[1]}, 64, v{gX[0]}
    v_add_u32 v{gX[1]}, {10240-1024}, v{gX[1]}
    v_add_u32 v{gX[2]}, {20480-2048}, v{gX[0]}
    v_add_u32 v{gX[3]}, {20480-2048}, v{gX[1]}
    s_cmp_lt_u32 s{scg}, 14
    s_cselect_b32 s{t1}, {640*3456}, 0
    s_movk_i32 s{t3}, 3456
    s_waitcnt lgkmcnt(0)""")
    ST or stamp(a, 7)
    srd(a, rX, pX, f"s{t0}", 0 if 'x' in X else 40960); srd(a, rWA, pI, 0, 0 if 'w' in X else f"s{t1}"); srd(a, rWB, pQ, 0, 0 if 'b' in X else 640 * 3840)
    a(f"""v_bfe_u32 v{T+2}, v{ln}, 2, 2
    v_xor_b32 v{T+2}, v{T+2}, v{T+1}
    v_and_b32 v{T+3}, 3, v{ln}
    v_and_b32 v{T+4}, 1, v{T+2}
    v_lshlrev_b32 v{T+3}, 4, v{T+3}
    v_lshl_add_u32 v{T+3}, v{T+4}, 6, v{T+3}
    v_lshrrev_b32 v{T+2}, 1, v{T+2}
    s_lshl_b32 s{t0}, s{sw}, 4
    v_lshl_add_u32 v{T+1}, v{T+2}, 6, v{T+1}
    v_add_u32 v{T+1}, s{t0}, v{T+1}
    s_lshl_b32 s{t0}, s{scg}, 7
    v_add_u32 v{T+3}, s{t0}, v{T+3}
    s_cmp_eq_u32 s{scg}, 0
    s_cselect_b32 s{t2}, {OOB}, 0
    v_xor_b32 v{T+4}, 1, v{T+4}
    v_mul_lo_u32 v{T+4}, v{T+4}, s{t2}
    v_mad_u32_u24 v{gW[1][0]}, v{T+1}, s{t3}, v{T+3}
    v_add_u32 v{gW[0][0]}, v{gW[1][0]}, v{T+4}
    v_add_u32 v{gW[0][0]}, 1664, v{gW[0][0]}
    s_bfe_u32 s{t0}, s2, 0x30003
    s_lshr_b32 s{t1}, s2, 6
    s_mul_i32 s{t0}, s{t0}, {ROT[0]}
    s_mul_i32 s{t1}, s{t1}, {ROT[1]}
    s_add_u32 s{t0}, s{t0}, s{t1}
    s_mul_i32 s{t1}, s{t0}, 13108
    s_lshr_b32 s{t1}, s{t1}, 16
    s_mul_i32 s{t1}, s{t1}, 5
    s_sub_u32 s{phi}, s{t0}, s{t1}""")
    for i in range(1, 4): a(f"v_add_u32 v{gW[0][i]}, {i*(4*3456-1024)}, v{gW[0][0]}")
    DQ = sorted([(8 * u - 6.5, 'X', u, i) for u in range(10) for i in range(4)] + [(16 * g - 6, 'W', g, i) for g in range(20) for i in range(4)])
    rot = lambda g, o, mul: f"s_mul_i32 s{o}, s{kk[g]}, {mul}"
    def dma():
        _, k, g, i = DQ.pop(0)
        if k == 'X':
            if i == 0: a(f"s_add_u32 m0, s{mX}, {g%4*4096}\n" + (rot(g // 2, oX, 256) if g % 2 == 0 else f"s_add_u32 s{oX}, s{oX}, 128"))
            a.vmem(f"buffer_load_dwordx4 v{gX[i]}, {S(rX,4)}, s{oX} offen offset:{1024*i} lds", ('X', g))
        else:
            P = g // 5
            if i == 0: a(f"s_add_u32 m0, s{mW}, {g%6*16384}\n" + rot(g % 5, oW, 128 * (3456, 3840)[P // 2]) + (f"\ns_add_u32 s{rWB}, s{rWB}, 1920\ns_addc_u32 s{rWB+1}, s{rWB+1}, 0\ns_sub_u32 s{rWB+2}, s{rWB+2}, 1920" if g == 15 and 'b' not in X else ''))
            a.vmem(f"buffer_load_dwordx4 v{gW[min(P,2)][i]}, {S((rWA,rWB)[P//2],4)}, s{oW} offen offset:{1024*i} lds", ('W', g))
    def dma_ok(gap):
        if not DQ: return False
        _, k, g, i = DQ[0]
        return gap >= (8 * (g - 4) + 1 if k == 'X' else 16 * (g - 4) - 6)
    ST or stamp(a, 8)
    for _ in range(8): dma()
    for g in range(1, 5): a(f"s_cmp_ge_u32 s{phi}, {5-g}\ns_cselect_b32 s{kk[g]}, {g-5}, {g}\ns_add_u32 s{kk[g]}, s{kk[g]}, s{phi}")
    a(f"s_movk_i32 s{t3}, 3840\nv_mad_u32_u24 v{gW[2][0]}, v{T+1}, s{t3}, v{T+3}")
    for i in range(1, 4): a(f"v_add_u32 v{gW[1][i]}, {i*(4*3456-1024)}, v{gW[1][0]}\nv_add_u32 v{gW[2][i]}, {i*(4*3840-1024)}, v{gW[2][0]}")
    NC = int(os.environ.get('NC', '1'))
    if NC:
        a(f"""s_sub_u32 s{t0}, s{srb}, 9
        s_cselect_b32 s{t0}, s{srb}, s{t0}
        s_cselect_b32 s{rD}, s{pWout}, s{pWo}
        s_cselect_b32 s{rD+1}, s{pWout+1}, s{pWo+1}
        s_mul_i32 s{t0}, s{t0}, 122880
        s_add_u32 s{rD}, s{rD}, s{t0}
        s_addc_u32 s{rD+1}, s{rD+1}, 0
        s_mov_b32 s{t0}, 81920
        s_cmp_eq_u32 s{srb}, 15
        s_cselect_b32 s{t0}, s{t0}, 122880
        s_cmp_eq_u32 s{scg}, 14
        s_cselect_b32 s{rD+2}, s{t0}, 0
        s_mov_b32 s{rD+3}, 0x20000
        v_lshlrev_b32 v254, 7, v0""")
        for i in range(NC):
            a(f"v_add_u32 v254, {32768 if i else 122880 - 32768 * NC}, v254"); a.vmem(f"buffer_load_dword v255, v254, {S(rD,4)}, 0 offen", 'pf')
    srd(a, rS, pWS, 0, WS_PROF); srd(a, rD, pD, 0, 256)
    a(f"""s_lshl_b32 s{t0}, s{sblk}, 12
    s_add_u32 s{t0}, s{t0}, {WS_ST}
    s_lshl_b32 s{scs}, s{scg}, 8
    v_lshl_add_u32 v{gS}, v{ln}, 2, s{t0}
    v_lshlrev_b32 v{gD}, 2, v{ln}""")
    for _ in range(4): dma()
    a(f"""v_and_b32 v{T}, 31, v{ln}
    v_lshrrev_b32 v{T+1}, 5, v{ln}
    v_bfe_u32 v{T+2}, v{ln}, 1, 3
    v_xor_b32 v{T+2}, v{T+2}, v{T+1}
    v_lshlrev_b32 v{T+2}, 4, v{T+2}
    v_lshl_add_u32 v{T+2}, v{T}, 7, v{T+2}
    s_lshl_b32 s{t0}, s{b1}, 5
    v_xor_b32 v{T+2}, s{t0}, v{T+2}""")
    for j in range(4): a(f"v_xor_b32 v{T+3}, {32*j}, v{T+2}\nv_add_u32 v{aX[j]}, s{mX}, v{T+3}")
    a(f"""v_lshlrev_b32 v{T+3}, 6, v{T}
    v_lshl_add_u32 v{T+3}, v{T+1}, 4, v{T+3}
    s_add_u32 s{t0}, s{mX}, 4096
    v_bfe_u32 v{T+4}, v{ln}, 1, 2
    v_lshlrev_b32 v{T+4}, 4, v{T+4}
    v_xor_b32 v{T+3}, v{T+3}, v{T+4}
    v_add_u32 v{aTw}, s{t0}, v{T+3}
    v_xor_b32 v{aTw2}, 32, v{aTw}
    v_lshlrev_b32 v{T+3}, 3, v{T}
    v_add_u32 v{aC}, s{mX}, v{T+3}
    v_lshl_add_u32 v{T+9}, v{T+1}, 15, v{T+3}
    v_bfe_u32 v{T+2}, v{ln}, 2, 2
    v_lshl_add_u32 v{T+3}, v{T+1}, 3, v{T+2}
    v_and_b32 v{T+4}, 1, v{ln}
    v_bfe_u32 v{T+5}, v{ln}, 1, 1
    v_bfe_u32 v{T+6}, v{ln}, 4, 1
    v_lshlrev_b32 v{T+4}, 4, v{T+4}
    v_lshl_add_u32 v{T+4}, v{T+5}, 3, v{T+4}
    v_lshl_add_u32 v{T+4}, v{T+6}, 5, v{T+4}
    v_lshl_add_u32 v{T+5}, v{T+3}, 6, v{T+4}
    v_and_b32 v{T+7}, 8, v{ln}
    v_lshlrev_b32 v{T+7}, 1, v{T+7}
    v_xor_b32 v{T+5}, v{T+5}, v{T+7}
    v_add_u32 v{aTr}, s{t0}, v{T+5}
    v_xor_b32 v{aTr2}, 32, v{aTr}
    v_lshl_add_u32 v{T+4}, v{T+3}, 8, v{T+4}
    v_xor_b32 v{T+2}, s{b0}, v{T+2}
    v_lshl_add_u32 v{T+4}, v{T+2}, 6, v{T+4}
    s_lshl_b32 s{t0}, s{b1}, 12
    v_xor_b32 v{T+4}, s{t0}, v{T+4}""")
    for jp in range(2):
        for p in range(4):
            a(f"v_xor_b32 v{aW[0][jp][p]}, {jp*4096 + p*64}, v{T+4}\nv_add_u32 v{aW[1][jp][p]}, 49152, v{aW[0][jp][p]}")
    for _ in range(4 * (PRE - 3)): dma()
    TP = int(os.environ.get('TP', '256'))
    TW = int(os.environ.get('TW', '254'))
    a(f"v_and_b32 v254, 1, v{ln}\nv_bfe_u32 v253, v{ln}, 1, 1\nv_mul_u32_u24 v254, 0x700000, v254\nv_mul_u32_u24 v253, 0x3f0000, v253\nv_add_u32 v253, v253, v254\nv_cmp_eq_u32 vcc, 0, v254\nv_add_u32 v253, 0x500000, v253\nv_mov_b32 v254, 0x500000\nv_cndmask_b32 v253, v253, v254, vcc")
    a(f"""s_lshl_b32 s{t0}, s{b0}, 14
    s_add_u32 s{t1}, s{t0}, {XB}
    s_xor_b32 s{t0}, s{t0}, 16384
    s_add_u32 s{t0}, s{t0}, {XB}
    v_add_u32 v{aCr[0]}, s{t1}, v{T+9}
    v_add_u32 v{aCr[1]}, s{t0}, v{T+9}
    v_bfe_u32 v{T}, v{ln}, 2, 1
    v_and_b32 v{T+1}, 3, v{ln}
    v_xor_b32 v{T}, v{T}, v{T+6}
    v_or_b32 v{T}, v{T}, v{T+1}
    v_cmp_eq_u32 vcc, 0, v{T}
    v_mov_b32 v{T+1}, 0x3f803f80
    v_mov_b32 v{s1}, 0
    v_mov_b32 v{s2}, 0""")
    for i in range(4): a(f"v_cndmask_b32 v{sel+i}, 0, v{T+1}, vcc")
    dec = lambda m: (m // 80, m // 16, m % 16 // 8, m % 8 // 2, m % 2)
    def rdW(m):
        if m >= 320: return
        _, G, h, j, t = dec(m); sl = G % 6
        for r in range(2):
            a.ds(f"ds_read_b64_tr_b16 {A(Wf[m%8]+2*r,2)}, v{aW[sl//3][j%2][2*h+t]} offset:{sl%3*16384 + j//2*8192 + 1024*r}", ('W', m))
    def rdX(q):
        if q < 40: a.ds(f"ds_read_b128 {A(xf[q],4)}, v{aX[q%4]} offset:{q//4%4*4096}", ('X', q))
    ST or stamp(a, 9); a.need(vm=[('X', 0), ('W', 0)]); a("s_barrier"); stamp(a, 1); a("s_waitcnt lgkmcnt(0)" if PROF else "")
    rdX(0); rdW(0); rdW(1); rdX(1); rdW(2); rdW(3); rdX(2); rdX(3); rdW(4); rdW(5)
    a.need(lg=[('W', 1)])
    Q = []; gate = [0]
    op = lambda t, c=1: Q.append((c, t, gate[0]))
    ops = lambda txt: [op(t) for t in txt.split("\n")]
    def split_cs(P_):
        c = cs[P_ % 2]
        a(f"""v_cvt_pk_bf16_f32 v{c+1}, v{c}, v{c}
        v_and_b32 v{c+2}, 0xffff0000, v{c+1}
        v_sub_f32 v{c+2}, v{c}, v{c+2}
        v_cvt_pk_bf16_f32 v{c}, v{c}, v{c+2}
        v_and_b32 v{c+1}, 0xffff, v{c+1}""")
    def wrC(P_): a.ds(f"ds_write_b64 v{aC}, {V(cs[P_%2],2)} offset:{P_*256}", ('cw', P_))
    def rdE(P_):
        for t in range(2): a.ds(f"ds_read_b64 {V(we[t],2)}, v{aCr[t]} offset:{P_*256}", ('we', P_))
    def fold(P_, t): a(f"v_mfma_f32_32x32x8_bf16 {V(acc[2*P_+t],16)}, {V(we[t],2)}, {V(xe,2)}, {V(acc[2*P_+t],16)}")
    def zaddr(p, mul, base, dst):
        return f"""s_xor_b32 s{t1}, s{b0}, {p&1}
        s_lshl_b32 s{t2}, s{scg}, 1
        s_add_u32 s{t1}, s{t1}, s{t2}
        s_sub_u32 s{t1}, s{t1}, {1 if p < 2 else 0}
        s_mul_i32 s{t2}, s{t1}, {mul}
        s_add_u32 s{t2}, s{t2}, s{base}
        s_cmp_lt_u32 s{t1}, 27
        s_cselect_b32 s{t2}, s{t2}, {OOB}
        v_add_u32 v{dst}, s{t2}, v{l16}"""
    ZG = int(os.environ.get('ZG', '68')); gate[0] = ZG
    txt = f"s_mul_i32 s{t3}, s{sblk}, 55296\ns_add_u32 s{t3}, s{t3}, {WS_Z1}\n" + zaddr(2, 2048, t3, gX[2]) + "\n" + zaddr(3, 2048, t3, gX[3])
    txt += f"\ns_lshl_b32 s{t3}, s{sblk}, 11\ns_add_u32 s{t3}, s{t3}, {WS_Z2}\n" + zaddr(0, 131072, t3, gX[0]) + "\n" + zaddr(1, 131072, t3, gX[1])
    txt += f"""
    s_mul_i32 s{t3}, s{sblk}, 81920
    s_lshl_b32 s{t1}, s{scg}, 12
    s_add_u32 s{t3}, s{t3}, s{t1}
    s_lshl_b32 s{t1}, s{b0}, 11
    v_add_u32 v{T+4}, s{t3}, v{l16}
    v_xor_b32 v{T+4}, s{t1}, v{T+4}
    v_xor_b32 v{T+5}, 2048, v{T+4}"""
    tl = [x.strip() for x in txt.split("\n")]
    while tl:
        x = tl.pop(0)
        if x.startswith("s_cmp"): op(x + "\n" + tl.pop(0), 2)
        else: op(x)
    gate[0] = 82
    for i in range(4): op(f"v_add_f32 v{sq[0]+i}, v{sq[0]+i}, v{sq[1]+i}")
    op(f"v_and_b32 v{T}, 3, v{ln}")
    fill = [(f"v_mul_f32 v{T+1}, {F(-1/640)}, v{sx}", f"v_cvt_pk_bf16_f32 v{xe}, v{T+1}, v{T+1}"),
            (f"v_and_b32 v{T+3}, 0xffff0000, v{xe}", f"v_sub_f32 v{T+3}, v{T+1}, v{T+3}"),
            (f"v_cvt_pk_bf16_f32 v{xe+1}, v{T+3}, 0", f"v_mul_f32 v{T+1}, v{T+1}, v{T+1}")]
    for i in range(1, 4):
        op(f"v_cmp_eq_u32 vcc, {i}, v{T}"); op(fill[i-1][0]); op(fill[i-1][1]); op(f"v_cndmask_b32 v{sq[0]}, v{sq[0]}, v{sq[0]+i}, vcc")
    nxe = len(Q)
    ops(f"""v_mov_b32 v{T+2}, v{sq[0]}
    s_mov_b32 s{t0}, {F(1/640)}
    s_nop 0
    v_permlane32_swap_b32 v{T+2}, v{sq[0]}
    s_nop 1
    v_add_f32 v{T+2}, v{T+2}, v{sq[0]}
    v_fma_f32 v{T+2}, v{T+2}, s{t0}, -v{T+1}
    v_max_f32 v{T+2}, 0, v{T+2}
    v_add_f32 v{T+2}, {F(1e-5)}, v{T+2}
    v_rsq_f32 v{rr}, v{T+2}
    s_nop 0
    v_mul_f32 v{ir}, v{T+2}, v{rr}
    v_mul_f32 v{c1}, {F(-2*0.7978845608028654*1.4426950408889634)}, v{rr}
    v_mul_f32 v{c2}, v{rr}, v{rr}
    v_mul_f32 v{c2}, v{c1}, v{c2}
    v_mul_f32 v{c2}, {F(0.044715)}, v{c2}""")
    op(f"s_cmp_lt_u32 s{scg}, 10\ns_cselect_b32 s{t0}, {F(20**-0.5*1.4426950408889634)}, 1.0\nv_mul_f32 v{cq}, s{t0}, v{rr}", 3)
    pfs = f"""s_and_b32 s{t1}, s2, 7
            s_lshl_b32 s{t1}, s{t1}, 5
            s_lshr_b32 s{t2}, s2, 3
            s_add_u32 s{t1}, s{t1}, s{t2}
            s_lshl_b32 s{t1}, s{t1}, 15
            s_add_u32 s{rX}, s{pSp}, s{t1}
            s_addc_u32 s{rX+1}, s{pSp+1}, 0
            s_mov_b32 s{rX+2}, 32768
            v_lshrrev_b32 v{T+11}, 5, v0
            v_and_b32 v{T+12}, 31, v0
            v_lshlrev_b32 v{T+11}, 12, v{T+11}
            v_lshl_add_u32 v{T+11}, v{T+12}, {7 - PFS.bit_length() + 1}, v{T+11}
            v_and_b32 v{T+11}, {os.environ.get('PM', '-1')}, v{T+11}
            s_and_b32 s{t2}, s2, {os.environ.get('RM', '0')}
            s_lshl_b32 s{t2}, s{t2}, 9
            v_xor_b32 v{T+11}, s{t2}, v{T+11}
            v_lshlrev_b32 v{T+12}, 7, v{T+12}
            v_lshlrev_b32 v254, 6, v0
            v_min_u32 v254, k2_end-k2_go, v254
            v_add_u32 v254, k2_go-k1_pc, v254"""
    def pf(i):
        if i < PFS: a.vmem(f"buffer_load_dword v255, v{T+11}, {S(rX,4)}, 0 offen offset:{i*4096//PFS}", 'pf')
        elif i == PFS: a.vmem(f"global_load_dword v255, v254, s[96:97]", 'pf')
        else: a.vmem(f"global_load_dword v255, v{T+12}, {S(pB,2)}", 'pf')
    if PFS:
        tl = [x.strip() for x in pfs.split("\n")]
        while tl:
            x = tl.pop(0)
            if tl and tl[0].startswith("s_addc"): op(x + "\n" + tl.pop(0), 2)
            else: op(x)
        npf = len(Q)
    def gelu(r0, stats):
        R = range(4)
        for i in R: op(f"v_mul_f32 v{T+i}, v{r0+i}, v{r0+i}")
        for i in R: op(f"v_fma_f32 v{T+i}, v{T+i}, v{c2}, v{c1}")
        for i in R: op(f"v_mul_f32 v{T+i}, v{T+i}, v{r0+i}")
        for i in R: op(f"v_exp_f32 v{T+i}, v{T+i}", 2)
        for i in R: op(f"v_fma_f32 v{T+i}, v{T+i}, v{ir}, v{ir}")
        for i in R: op(f"v_rcp_f32 v{T+i}, v{T+i}", 2)
        for i in R: op(f"v_mul_f32 v{r0+i}, v{r0+i}, v{T+i}")
        if stats:
            for i in R: op(f"v_add_f32 v{s1}, v{s1}, v{r0+i}"); op(f"v_fmac_f32 v{s2}, v{r0+i}, v{r0+i}")
    TOT = int(os.environ.get('TOT', '7')); DC = int(os.environ.get('DC', '2')); C16 = int(os.environ.get('C16', '2')); PH = int(os.environ.get('PH', '0')); CR = int(os.environ.get('CR', '20')); FG = int(os.environ.get('FG', '8')); R1 = float(os.environ.get('R1', '0.25'))
    gate[0] = 80 + FG + 5
    for p in range(2):
        for b in range(4): gelu(acc[p] + 4 * b, True)
    def chk(N=N):
        a.need(vm=['cnt'])
        a(f"""{N}_c0:
        v_cmp_ne_u32 vcc, 15, v{T+10}
        s_nop 1
        s_cbranch_vccz {N}_c1
        s_add_u32 s{spin}, s{spin}, 0x4000
        s_cbranch_scc1 {N}_c1
        buffer_load_dword v{T+10}, v{gD}, {S(rD,4)}, 0 offen sc1
        s_waitcnt vmcnt(0)
        s_branch {N}_c0
        {N}_c1:""")
    op(chk, 3); op(f"v_permlane32_swap_b32 v{s1}, v{s2}"); op("s_nop 1"); op(f"v_add_f32 v{s1}, v{s1}, v{s2}"); op(f"v_min_u32 v{s1}, -2, v{s1}")
    op(lambda: a.vmem(f"buffer_store_dword v{s1}, v{gS}, {S(rS,4)}, s{scs} offen sc0 sc1", 'pub'))
    st4 = lambda r, ad, so, off: 'S' in X or a.vmem(f"buffer_store_dwordx4 {V(r,4)}, v{ad}, {S(rS,4)}, {so} offen offset:{off}{WT}", 'st')
    gate[0] = 160 + FG + 5
    for p in range(2, 4):
        for b in range(4):
            gelu(acc[p] + 4 * b, False)
            for i in range(2): op(f"v_cvt_pk_bf16_f32 v{acc[p]+2*b+i}, v{acc[p]+4*b+2*i}, v{acc[p]+4*b+2*i+1}")
            if b % 2: op(lambda p=p, b=b: st4(acc[p] + 2 * b - 2, gX[p], 0, b // 2 * 1024), STC)
    PS = [P + i for i in range(14)]
    def ldS(lo=0, hi=14):
        for i in range(lo, hi): a.vmem(f"buffer_load_dword v{PS[i]}, v{gS}, {S(rS,4)}, 0 offen offset:{256*i} sc1", 'S')
    gate[0] = 240 + FG + 5
    for t in range(2):
        d = acc[4 + t]
        for r in range(2):
            for i in range(8): op(f"v_mul_f32 v{d+8*r+i}, v{d+8*r+i}, v{cq}")
            for i in range(4): op(f"v_cvt_pk_bf16_f32 v{d+4*r+i}, v{d+8*r+2*i}, v{d+8*r+2*i+1}")
            op(lambda d=d, t=t, r=r: st4(d + 4 * r, T + 4 + t, 0, 1024 * r), STC)
    def poll():
        a.need(vm=['S'])
        a(f"{N}_s0:\nv_max_u32 v{T}, v{PS[0]}, v{PS[1]}")
        for i in range(1, 7): a(f"v_max3_u32 v{T}, v{PS[2*i]}, v{PS[2*i+1]}, v{T}")
        a(f"v_cmp_eq_u32 vcc, -1, v{T}\ns_nop 1\ns_cbranch_vccz {N}_s1\ns_add_u32 s{spin}, s{spin}, 0x4000\ns_cbranch_scc1 {N}_s1")
        sv = list(a.vm); ldS(); a.vm = sv; a(f"s_waitcnt vmcnt(0)\ns_branch {N}_s0\n{N}_s1:")
    gate[0] = max(gate[0], SG + 14 * SS + int(os.environ.get('SL', '20'))); op(poll, 11)
    for i in range(7): op(f"v_add_f32 v{PS[i]}, v{PS[i]}, v{PS[i+7]}")
    for i, k in ((0, 1), (2, 3), (4, 5), (0, 6), (2, 4), (0, 2)): op(f"v_add_f32 v{PS[i]}, v{PS[i]}, v{PS[k]}")
    ops(f"""v_mul_f32 v{T}, {F(1/864)}, v{PS[0]}
    v_mov_b32 v{T+1}, v{T}
    s_nop 1
    v_permlane32_swap_b32 v{T}, v{T+1}
    s_nop 1
    v_fma_f32 v{T+1}, -v{T}, v{T}, v{T+1}
    v_max_f32 v{T+1}, 0, v{T+1}
    v_add_f32 v{T+1}, {F(1e-5)}, v{T+1}
    v_rsq_f32 v{T+2}, v{T+1}
    s_nop 0
    v_mul_f32 v{T}, v{T}, v{T+2}""")
    def trw(src, slot, r): a.ds(f"ds_write_b128 v{(aTw,aTw2)[r]}, {V(src+4*r,4)} offset:{slot*2048}", ('tw', slot))
    def trr(dst, slot):
        for i in range(4): a.ds(f"ds_read_b64_tr_b16 {V(dst+2*i,2)}, v{(aTr,aTr2)[i%2]} offset:{slot*2048 + i//2*1024 + i%2*256}", ('tr', slot))
    def z2st(p, r):
        a.need(lg=[('tr', 4 + p)]); st4(acc[p] + 8 + 4 * r, gX[p], 0, 1024 * r)
    for p in range(2):
        d = acc[p]
        for r in range(2):
            for i in range(8): op(f"v_fma_f32 v{d+8*r+i}, v{d+8*r+i}, v{T+2}, -v{T}")
            for i in range(4): op(f"v_cvt_pk_bf16_f32 v{d+4*r+i}, v{d+8*r+2*i}, v{d+8*r+2*i+1}")
            op(lambda d=d, p=p, r=r: trw(d, 4 + p, r), 2)
            if p == 1 and r == 0: op(lambda: trr(acc[0] + 8, 4), 4)
    op(lambda: trr(acc[1] + 8, 5), 4); [op(lambda p=p, r=r: z2st(p, r), max(STC, 6)) for p in range(2) for r in range(2)]
    print("k1 filler slots", sum(c for c, _, _ in Q))
    def pop(budget, m):
        while Q and budget >= min(Q[0][0], MB) and Q[0][2] <= m:
            c, t, _ = Q.pop(0); budget -= c
            t() if callable(t) else a(t if 'f' not in X else '')
        return min(budget, 0)
    credit = 0; dcredit = 0.0; nq0 = len(Q)
    for m in range(320):
        P_, G, h, j, t = dec(m); q = m % 80 // 2; d = acc[2 * P_ + t]; mm = m % 80
        a(f"v_mfma_f32_32x32x16_bf16 {V(d,16)}, {A(Wf[m%8],4)}, {A(xf[q],4)}, {V(d,16) if q else 0}")
        vm, lg = [], []; L0 = len(a.L)
        if m % 2 == 1: lg += [('W', m + 1), ('W', m + 2), ('X', q + 1)]
        if (m + 6) % 8 == 0: vm += [('X', (m + 6) // 8)]
        bar = (m + 6) % 16 == 0 and m + 6 < 320
        if bar: vm += [('W', (m + 6) // 16)]
        if P_ and mm == FG - 3: lg += [('cw', P_ - 1)]; bar = True
        if P_ and mm == FG: lg += [('we', P_ - 1)]
        a.need(vm=vm, lg=lg)
        if bar and 'n' not in X: a("s_barrier")
        bud = BUD
        if P_ and mm == FG - 3: rdE(P_ - 1); bud -= 2
        if P_ and mm == 2: wrC(P_ - 1); bud -= 1
        if P_ == 0 and m % 8 in (2, 3): rdX((m + 6) // 8 * 4 + m % 2 * 2); rdX((m + 6) // 8 * 4 + m % 2 * 2 + 1)
        rdW(m + 6)
        dcredit += RATE if P_ == 0 else R1
        if (dcredit >= 1 if P_ == 0 else m % 4 == PH) and dma_ok(m): dma(); dcredit -= 1; bud -= 1
        dcredit = min(dcredit, 1.5 if P_ == 0 else 1 - R1)
        if m == int(os.environ.get('CG', '70')): a.vmem(f"buffer_load_dword v{T+10}, v{gD}, {S(rD,4)}, 0 offen", 'cnt')
        if m == TW: a.vmem(f"buffer_load_dword v255, v253, {S(rS,4)}, 0 offen", 'pf')
        if m == TP: a(f"s_and_b32 s{oX}, s2, 7\ns_lshl_b32 s{oX}, s{oX}, 20\nv_mov_b32 v254, s{oX}"); a.vmem(f"global_load_dword v255, v254, {S(pSp,2)}", 'pf')
        if m == TP + 1: a("v_mov_b32 v254, 0"); a.vmem(f"global_load_dword v255, v254, {S(pB,2)}", 'pf')
        if m == TP + 2: a("v_lshlrev_b32 v254, 6, v0\nv_add_u32 v254, k2_go-k1_pc, v254" if 1 else "v_lshrrev_b32 v254, 6, v0\nv_lshl_add_u32 v254, s3, 2, v254\nv_lshlrev_b32 v254, 7, v254\nv_add_u32 v254, k2_go-k1_pc, v254"); a.vmem("global_load_dword v255, v254, s[96:97]", 'pf')
        if m == ZG: assert not any(k == 'X' for _, k, g, i in DQ)
        if SG <= m < SG + 14 * SS and (m - SG) % SS == 0 and 'L' not in X: ldS((m - SG) // SS, (m - SG) // SS + 1)
        if PFS and m == PG: assert len(Q) <= nq0 - npf
        if PFS and m >= PG and (m - PG) % PD == 0 and (m - PG) // PD < PFS + 2: pf((m - PG) // PD)
        if P_ and mm == 1: split_cs(P_ - 1); bud -= 5
        used = sum((1 if x.text() else 0) if isinstance(x, Wait) else (DC if 'buffer' in x else 1) for x in a.L[L0:])
        credit = pop(max(credit, -CR) + TOT - used, m)
        if j % 2 == 0 and t == 0 and 'c' not in X:
            a(f"v_mfma_f32_16x16x32_bf16 {V(cs[P_%2],4)}, {V(sel,4)}, {A(Wf[m%8],4)}, {V(cs[P_%2],4) if q else 0}"); credit = pop(credit + C16, m)
        if P_ == 0 and t == 0 and 's' not in X: a(f"v_mfma_f32_16x16x32_bf16 {V(sx,4)}, {V(sel,4)}, {A(xf[q],4)}, {V(sx,4) if q else 0}")
        if P_ == 0 and t == 1 and 'q' not in X:
            for r in range(2): a(f"v_mfma_f32_4x4x4_16b_bf16 {V(sq[r],4)}, {A(xf[q]+2*r,2)}, {A(xf[q]+2*r,2)}, {V(sq[r],4) if q else 0}")
        if P_ and mm in (FG, FG + 1):
            assert len(Q) <= nq0 - nxe
            a("s_nop 1"); fold(P_ - 1, mm - FG); credit = pop(credit + 5, m)
        if m == 79: stamp(a, 2)
        if m in ST: stamp(a, 7 + ST.index(m))
        if m == 159: stamp(a, 3)
        if m == 239: stamp(a, 4)
    print("k1 filler left", sum(c for c, _, _ in Q)); assert not DQ
    stamp(a, 5)
    a("s_nop 3"); split_cs(3); wrC(3)
    pop(1e9, 999)
    a.need(lg=[('cw', 3)]); a("s_barrier"); rdE(3)
    a(f"""v_and_b32 v{T}, 19, v{ln}
    v_bfe_u32 v{T+1}, v{ln}, 2, 1
    v_bfe_u32 v{T+2}, v{ln}, 3, 1
    v_lshl_add_u32 v{T}, v{T+1}, 3, v{T}
    v_lshl_add_u32 v{T}, v{T+2}, 2, v{T}
    s_sub_u32 s{t1}, s{scg}, 5
    s_lshl_b32 s{t1}, s{t1}, 1
    s_add_u32 s{t1}, s{t1}, s{b0}
    s_lshl_b32 s{t1}, s{t1}, 5
    v_add_u32 v{T}, s{t1}, v{T}
    v_lshrrev_b32 v{T+1}, 5, v{ln}
    v_mul_u32_u24 v{T+1}, 320, v{T+1}
    s_mul_i32 s{t1}, s{sblk}, 1280
    s_add_u32 s{t1}, s{t1}, {WS_VT}
    v_add_u32 v{T+1}, s{t1}, v{T+1}
    v_mov_b32 v{c1}, v{rr}
    v_mov_b32 v{c2}, v{rr}""")
    assert c1 % 2 == 0 and c2 == c1 + 1
    a.need(lg=[('we', 3)])
    for t in range(2): fold(3, t)
    for t in range(2):
        a(f"""v_xor_b32 v{T+2}, {32*t}, v{T}
        v_mul_u32_u24 v{T+3}, 52429, v{T+2}
        v_lshrrev_b32 v{T+3}, 20, v{T+3}
        v_mul_u32_u24 v{T+3}, {81920-320}, v{T+3}
        v_lshl_add_u32 v{T+2}, v{T+2}, 4, v{T+3}
        v_add_u32 v{T+6+t}, v{T+2}, v{T+1}""")
    def scale(t, r):
        d = acc[6 + t]
        for i in range(4): a(f"v_pk_mul_f32 {V(d+8*r+2*i,2)}, {V(d+8*r+2*i,2)}, {V(c1,2)}")
        for i in range(4): a(f"v_cvt_pk_bf16_f32 v{d+4*r+i}, v{d+8*r+2*i}, v{d+8*r+2*i+1}")
    a(f"s_mov_b32 s{t1}, {15*4096}\ns_cmp_ge_u32 s{scg}, 5\ns_cbranch_scc1 {N}_v")
    for t in range(2):
        for r in range(2): scale(t, r); st4(acc[6 + t] + 4 * r, T + 4 + t, f"s{t1}", 1024 * r)
    a(f"s_branch {N}_fin\n{N}_v:")
    for t in range(2):
        for r in range(2): scale(t, r); trw(acc[6 + t], t, r)
    for t in range(2): trr(acc[6 + t] + 8, t)
    for t in range(2):
        a.need(lg=[('tr', t)])
        for r in range(2): st4(acc[6 + t] + 8 + 4 * r, T + 6 + t, 0, 640 * r)
    a(f"{N}_fin:")
    a("s_branch k2_go")
    a.vm = []; a.lg = []
    a(f"""{N}_side:
    s_lshl_b32 s{sblk}, s{srb}, 2
    s_add_u32 s{sblk}, s{sblk}, s{sw}
    s_lshl_b32 s{t0}, s{sblk}, 12
    s_add_u32 s{t0}, s{t0}, {WS_ST}
    s_lshl_b32 s{sblk}, s{sblk}, 2
    v_mov_b32 v{T+4}, -1
    v_mov_b32 v{T+5}, -1
    v_mov_b32 v{T+6}, -1
    v_mov_b32 v{T+7}, -1
    v_mov_b32 v{T+8}, 15
    v_mov_b32 v{T+9}, s{sblk}
    s_waitcnt lgkmcnt(0)""")
    srd(a, rS, pWS, f"s{t0}", 4096); srd(a, rD, pD, 0, 256)
    for i in range(4): a(f"buffer_store_dwordx4 {V(T+4,4)}, v{l16}, {S(rS,4)}, 0 offen offset:{1024*i} sc0 sc1")
    a(f"s_lshl_b32 s{t0}, s{sblk}, 8\ns_add_u32 s{t0}, s{t0}, 0x11e0000\nv_add_u32 v{T+10}, s{t0}, v{l16}\nglobal_store_dwordx4 v{T+10}, {V(T+4,4)}, {S(pWS,2)} sc0 sc1")
    a(f"""s_mul_i32 s{mX}, s{sw}, 10240
    v_add_u32 v{T}, s{mX}, v{l16}
    s_mul_i32 s{srb}, s{srb}, 3""")
    srd(a, rS, pWS, WS_WT, 8 * 47 * 5120)
    for kk in range(3):
        a(f"""s_add_u32 s{t0}, s{srb}, {kk}
        s_sub_u32 s{t1}, s{t0}, 27
        s_cmp_lt_u32 s{t0}, 27
        s_cselect_b32 s{t1}, s{t0}, s{t1}
        s_cselect_b32 s{t2}, s{pWout}, s{pWo}
        s_cselect_b32 s{t3}, s{pWout+1}, s{pWo+1}
        s_mul_i32 s{t1}, s{t1}, 40960
        s_add_u32 s{rX}, s{t2}, s{t1}
        s_addc_u32 s{rX+1}, s{t3}, 0
        s_cmp_lt_u32 s{t0}, 47
        s_cselect_b32 s{rX+2}, 40960, 0
        s_mov_b32 s{rX+3}, 0x20000""")
        for i in range(10):
            if i % 4 == 0: a(f"s_add_u32 m0, s{mX}, {kk*40960 + i*1024}\ns_mov_b32 s{oX}, {i*1024}")
            a(f"buffer_load_dwordx4 v{T}, {S(rX,4)}, s{oX} offen offset:{i%4*1024} lds")
        if kk == 0: a(f"s_waitcnt vmcnt(10)\nbuffer_store_dword v{T+8}, v{T+9}, {S(rD,4)}, 0 offen sc0 sc1")
    a(f"""v_lshrrev_b32 v{T+1}, 4, v{ln}
    v_bfe_u32 v{T+2}, v{ln}, 2, 2
    v_lshl_add_u32 v{T+1}, v{T+1}, 3, v{T+2}
    v_mul_u32_u24 v{T+1}, 1280, v{T+1}
    v_and_b32 v{T+2}, 3, v{ln}
    v_mul_u32_u24 v{T+2}, 40, v{T+2}
    s_mul_i32 s{t0}, s{sw}, 320
    v_add3_u32 v{T+1}, v{T+1}, v{T+2}, s{t0}""")
    for kk in range(3):
        a(f"s_waitcnt vmcnt({(21, 20, 20)[kk]})\ns_barrier")
        for c in range(2):
            for nt in range(5):
                for h in range(2): a(f"ds_read_b64_tr_b16 {V(acc[0]+40*kk+20*c+4*nt+2*h,2)}, v{T+1} offset:{160*c + 8*nt + 5120*h}")
        a(f"v_add_u32 v{T+1}, 40960, v{T+1}")
        a(f"""s_add_u32 s{t0}, s{srb}, {kk}
        s_cmp_lt_u32 s{t0}, 47
        s_cselect_b32 s{rS+2}, s{rS+2}, 0
        s_mul_i32 s{t1}, s{sw}, 94
        s_add_u32 s{t0}, s{t0}, s{t1}
        s_mul_i32 s{t0}, s{t0}, 5120
        s_waitcnt lgkmcnt(0)""")
        for c in range(2):
            for nt in range(5):
                a(f"s_add_u32 s{t1}, s{t0}, {c*47*5120 + nt*1024}\nbuffer_store_dwordx4 {V(acc[0]+40*kk+20*c+4*nt,4)}, v{l16}, {S(rS,4)}, s{t1} offen{WT}")
    NP = int(os.environ.get('NP', '0'))
    if NP:
        a(f"""s_lshr_b32 s{t0}, s{sblk}, 4
        s_lshl_b32 s{t1}, s{t0}, 19
        s_mul_i32 s{t0}, s{sblk}, 10240
        s_add_u32 s{t0}, s{t0}, {WS_O + 1024}
        v_lshrrev_b32 v{T}, 1, v0
        v_and_b32 v{T+1}, 1, v0
        v_lshlrev_b32 v{T}, 12, v{T}
        v_lshl_add_u32 v{T}, v{T+1}, 7, v{T}
        v_add_u32 v{T}, s{t1}, v{T}
        v_lshrrev_b32 v{T+1}, 2, v{ln}
        v_and_b32 v{T+2}, 3, v{ln}
        v_mul_u32_u24 v{T+1}, 2560, v{T+1}
        v_lshl_add_u32 v{T+1}, v{T+2}, 7, v{T+1}
        v_add_u32 v{T+1}, s{t0}, v{T+1}
        s_lshl_b32 s{t0}, s{sblk}, 7
        v_lshl_add_u32 v{T+2}, v{T+2}, 7, s{t0}
        v_min_u32 v{T+3}, k2_end-k2_go, v{T+2}
        v_add_u32 v{T+3}, k2_go-k1_pc, v{T+3}
        v_and_b32 v{T+2}, 0xf80, v{T+2}
        global_load_dword v255, v{T+3}, s[96:97]
        global_load_dword v255, v{T+2}, {S(pB,2)}""")
        for i in range(NP):
            a(f"global_load_dword v255, v{T}, {S(pSp,2)} offset:{256*i}")
    a(f"v_lshlrev_b32 v{gD}, 2, v{ln}\nv_mov_b32 v{T+10}, 0\ns_mov_b32 s{spin}, 0"); chk(N + "s")
    a(f"s_branch k2_go\n{N}_end:\ns_endpgm")
    return a
```

```python
class Wait:
    def __init__(s, vm, lg): s.vm, s.lg = vm, lg
    def text(s):
        p = []
        if s.vm is not None: p.append(f"vmcnt({s.vm})")
        if s.lg is not None: p.append(f"lgkmcnt({s.lg})")
        return ("s_waitcnt " + " ".join(p)) if p else None
    def merge(s, o):
        f = lambda a, b: b if a is None else (a if b is None else min(a, b))
        s.vm, s.lg = f(s.vm, o.vm), f(s.lg, o.lg)

class Asm:
    def __init__(s):
        s.L = []; s.vm = []; s.lg = []; s.nv = 1; s.na = 0; s.ns = 4
    def __call__(s, t):
        for x in t.strip().split("\n"):
            x = x.strip()
            if x: s.L.append(x)
    def vmem(s, t, tag=None): s(t); s.vm.append(tag)
    def ds(s, t, tag=None): s(t); s.lg.append(tag)
    def need(s, vm=(), lg=(), alt=None):
        def cnt(q, tags, mx):
            idx = [i for i, t in enumerate(q) if t in tags]
            if not idx: return None
            i = max(idx); n = len(q) - 1 - i
            n = min(n, mx); del q[:len(q) - n]
            return n
        w = Wait(cnt(s.vm, vm, 63), cnt(s.lg, lg, 15)); s.L.append(w); return w
    def drain(s, vm=True, lg=True):
        s.L.append(Wait(0 if vm else None, 0 if lg else None))
        if vm: s.vm = []
        if lg: s.lg = []
    def loop(s, body, n=2):
        st = len(s.L); body(0); first = s.L[st:]
        for it in range(1, n):
            s.L = s.L[:st]; body(it); cur = s.L[st:]
            assert len(cur) == len(first)
            for a, b in zip(first, cur):
                if isinstance(a, Wait): a.merge(b)
                else: assert a == b, (a, b)
        s.L = s.L[:st] + first
    def v(s, n=1, al=None):
        al = al or (2 if n > 1 else 1)
        s.nv = (s.nv + al - 1) // al * al; r = s.nv; s.nv += n; assert s.nv <= 256; return r
    def a(s, n=1):
        s.na = (s.na + 1) // 2 * 2; r = s.na; s.na += n; assert s.na <= 256; return r
    def sg(s, n=1):
        al = 4 if n >= 4 else n
        s.ns = (s.ns + al - 1) // al * al; r = s.ns; s.ns += n; assert s.ns <= 100; return r
    def text(s):
        o = []
        for x in s.L:
            if isinstance(x, Wait): x = x.text()
            if x is None: continue
            o.append(x if x.endswith(":") else "  " + x)
        return "\n".join(o)
def V(r, n=1): return f"v{r}" if n == 1 else f"v[{r}:{r+n-1}]"
def A(r, n=1): return f"a{r}" if n == 1 else f"a[{r}:{r+n-1}]"
def S(r, n=1): return f"s{r}" if n == 1 else f"s[{r}:{r+n-1}]"

WS_QK, WS_VT, WS_Z1, WS_Z2, WS_O, WS_H, WS_WT, WS_ST = 0, 0x540000, 0x800000, 0xC10000, 0, 0x800000, 0x1000000, 0x7C0000
OOB = 0x7ff00000

def srd(a, d, base, off, size):
    if off == 0: a(f"s_mov_b32 s{d}, s{base}\ns_mov_b32 s{d+1}, s{base+1}")
    else: a(f"s_add_u32 s{d}, s{base}, {off}\ns_addc_u32 s{d+1}, s{base+1}, 0")
    a(f"s_mov_b32 s{d+2}, {size}\ns_mov_b32 s{d+3}, 0x20000")

def head(a, name, nkb=1):
    a(f"""s_cmp_ge_u32 s2, 256
    s_cbranch_scc1 {name}_end
    s_getpc_b64 s[96:97]
    {name}_pc:
    v_lshlrev_b32 v253, 6, v0""")
    if int(os.environ.get('HP', '0')):
        a(f"""s_lshr_b32 s3, s2, 3
        v_lshrrev_b32 v254, 4, v0
        v_lshl_add_u32 v254, s3, 4, v254
        v_lshlrev_b32 v254, 7, v254
        v_min_u32 v254, k2_end-{name}_pc, v254""")
        a.vmem(f"global_load_dword v255, v254, s[96:97]", 'pf'); return
    for i in range(nkb):
        a(f"v_min_u32 v254, {name}_end-{name}_pc, v253")
        a.vmem(f"global_load_dword v255, v254, s[96:97]", 'pf')
        if i + 1 < nkb: a("v_add_u32 v253, 0x4000, v253")

import os
PROF = int(os.environ.get("PROF", "0"))
WS_PROF = 0x1A00000
def stamp(a, i, real=False):
    real = real or os.environ.get('RT')
    if PROF: a(f"s_mem{'real' if real else ''}time s[{70+2*i}:{71+2*i}]")
def stamp0(a):
    if PROF: a("s_memrealtime s[68:69]\ns_memtime s[70:71]")
def stamp_out(a, kid, n):
    if not PROF: return
    a(f"""s_memtime s[{70+2*n}:{71+2*n}]
    s_memrealtime s[66:67]
    s_load_dwordx2 s[98:99], s[0:1], 80
    v_lshrrev_b32 v253, 6, v0
    v_lshlrev_b32 v253, 6, v253
    s_lshl_b32 s94, s2, 8
    s_add_u32 s94, s94, {WS_PROF + kid*65536}
    v_add_u32 v253, s94, v253
    s_waitcnt lgkmcnt(0)""")
    for i, r in enumerate([68, 66] + [70 + 2*j for j in range(n + 1)]):
        a(f"v_mov_b32 v254, s{r}\nglobal_store_dword v253, v254, s[98:99] offset:{4*i}")
    a("s_waitcnt vmcnt(0)")

WT = os.environ.get("WT", " sc0 sc1")
```

```python
from asm import *
KVB, ONES, FLAG = 65536, 114688, 114688 + 5120
LDS2 = 163840
from k3f import tail3
X = os.environ.get('X2', ''); PFW = int(os.environ.get('PFW', '0')); PFO = int(os.environ.get('PFO', '0')); RM = int(os.environ.get('RM', '0')); WI = int(os.environ.get('WI', '0')); ZL = int(os.environ.get('ZL', '12'))
def k2():
    a = Asm(); N = "k2"
    a(f"{N}_go:\ns_getpc_b64 s[96:97]\n{N}_pc:"); stamp(a, 9); a.vm = ['st']
    pWS, pX, pO = [a.sg(2) for _ in range(3)]; sw, shd, sqg = [a.sg() for _ in range(3)]; sfree = a.ns; pW, pB, oE = [a.sg(2) for _ in range(3)]
    a(f"""s_load_dwordx2 {S(pW,2)}, s[0:1], 40
    s_load_dwordx2 {S(pB,2)}, s[0:1], 48
    s_load_dwordx2 {S(pWS,2)}, s[0:1], 80
    s_load_dwordx2 {S(pX,2)}, s[0:1], 0
    s_load_dwordx2 {S(pO,2)}, s[0:1], 64""")
    rW, rKV, rZ, rE, rO, rB = [a.sg(4) for _ in range(6)]
    sfb, sodd, sm5, t0, t1, t2, oW, oKV, oZ, incKV, mW, mKV, cnt, retry, szW, szZ, szE = [a.sg() for _ in range(17)]
    SB = [a.v(16), a.v(16)]; O = [a.v(16), a.v(16)]; G = [a.v(16), a.v(16)]
    Qm = [a.v(4), a.v(4)]; Qr = [a.v(2), a.v(2)]
    Km = [a.v(4), a.v(4)]; Kr = [a.v(2), a.v(2)]
    V1 = [a.v(4), a.v(4)]; V2 = [a.v(4), a.v(4)]; W0 = [a.v(4), a.v(4)]; W1 = [a.v(4), a.v(4)]
    Z1 = [a.v(8), a.v(8)]; bs = [a.v(), a.v()]
    aW = [a.v() for _ in range(8)]; aKm = a.v(); aKr = [a.v() for _ in range(4)]; aV = [a.v() for _ in range(4)]
    gW = [a.v() for _ in range(4)]; gKV = [a.v() for _ in range(3)]; gZ = a.v(); gQm, gQr, gE, gOm, gOr = [a.v() for _ in range(5)]
    idx, ln, l31, hf = [a.v() for _ in range(4)]; T = a.v(8, 4)
    Z = [a.a(4) for _ in range(16)]
    a(f"""v_lshrrev_b32 v{T}, 6, v0
    v_and_b32 v{ln}, 63, v0
    v_readfirstlane_b32 s{sw}, v{T}
    s_and_b32 s{t0}, s2, 7
    s_lshr_b32 s{t1}, s2, 6
    s_lshl_b32 s{t0}, s{t0}, 2
    s_add_u32 s{shd}, s{t0}, s{t1}
    s_bfe_u32 s{sqg}, s2, 0x30003
    s_lshl_b32 s{sfb}, s{sqg}, 2
    s_add_u32 s{sfb}, s{sfb}, s{sw}
    s_and_b32 s{sodd}, s{shd}, 1
    s_lshr_b32 s{sm5}, s{shd}, 1
    s_mul_i32 s{sm5}, s{sm5}, 2560
    s_mov_b32 s{retry}, 0
    v_and_b32 v{l31}, 31, v0
    v_bfe_u32 v{hf}, v0, 5, 1
    v_mov_b32 v{idx}, 0xdddddddd
    s_cmp_lt_u32 s{sqg}, 7
    s_cselect_b32 s{szW}, {64*4096}, 0
    s_cmp_lt_u32 s{sfb}, 27
    s_cselect_b32 s{szZ}, 0x20000, 0
    s_cselect_b32 s{szE}, {WS_WT}, 0
    s_lshl_b32 s{mW}, s{sw}, 12
    s_mul_i32 s{mKV}, s{sw}, 3072
    s_add_u32 s{mKV}, s{mKV}, {KVB}
    s_mov_b32 s{incKV}, 5120
    s_cmp_lt_u32 s{sw}, 2
    s_cselect_b32 s{incKV}, 327680, s{incKV}
    s_lshl_b32 s{t0}, s{shd}, 18
    s_lshl_b32 s{t1}, s{sfb}, 17
    s_add_u32 s{t1}, s{t1}, {WS_Z2}
    s_waitcnt lgkmcnt(0)""")
    srd(a, rW, pW, f"s{t0}", f"s{szW}"); srd(a, rKV, pWS, 0, WS_Z1); srd(a, rZ, pWS, f"s{t1}", f"s{szZ}")
    srd(a, rE, pWS, 0, f"s{szE}"); srd(a, rO, pWS, 0, WS_VT)
    a(f"""s_lshl_b32 s{t0}, s{sqg}, 2
    s_add_u32 s{t0}, s{t0}, s{sw}
    s_mul_i32 s{t1}, s{t0}, 163840
    s_add_u32 s{t1}, s{t1}, s{sm5}
    s_mul_i32 s{t2}, s{sodd}, 1536
    s_add_u32 s{t2}, s{t2}, s{t1}
    v_lshlrev_b32 v{gZ}, 4, v{ln}
    v_add_u32 v{gQm}, s{t2}, v{gZ}
    s_lshl_b32 s{t2}, s{sodd}, 3
    s_add_u32 s{t2}, s{t2}, s{t1}
    s_add_u32 s{t2}, s{t2}, 1024
    v_add_u32 v{gQr}, s{t2}, v{gZ}
    v_mov_b32 v{T}, {OOB}
    v_cmp_gt_u32 vcc, 32, v{ln}
    s_mov_b32 s{t2}, 81920
    s_nop 0
    v_cndmask_b32 v{gQr}, v{T}, v{gQr}, vcc""")
    gOm, gOr = gQm, gQr
    a(f"{N}_restart:")
    a(f"""s_mul_i32 s{t0}, s{sw}, 163840
    s_add_u32 s{t0}, s{t0}, s{sm5}
    s_lshl_b32 s{t1}, s{sodd}, 10
    s_add_u32 s{t0}, s{t0}, s{t1}
    s_add_u32 s{t0}, s{t0}, 40960
    s_mul_i32 s{t1}, s{shd}, 81920
    s_mul_i32 s{t2}, s{sw}, 3072
    s_add_u32 s{t1}, s{t1}, s{t2}
    s_add_u32 s{t1}, s{t1}, {WS_VT - 6144}
    s_cmp_lt_u32 s{sw}, 2
    s_cselect_b32 s{t0}, s{t0}, s{t1}
    s_cselect_b32 s{t1}, 80384, 0
    s_cmp_eq_u32 s{sw}, 3
    s_cselect_b32 s{t2}, {OOB}, s{t1}
    v_add_u32 v{gKV[0]}, s{t0}, v{gZ}
    v_mul_lo_u32 v{T}, v{hf}, s{t1}
    v_add_u32 v{gKV[2]}, s{t2}, v{gKV[0]}
    v_add_u32 v{gKV[1]}, v{T}, v{gKV[0]}""")
    a(f"""v_lshrrev_b32 v{T}, 4, v{ln}
    v_and_b32 v{T+1}, 15, v{ln}
    s_lshl_b32 s{t0}, s{sw}, 16""")
    for i in range(4):
        a(f"""v_add_u32 v{T+2}, {4*i}, v{T}
        v_xor_b32 v{T+3}, v{T+1}, v{T+2}
        v_lshlrev_b32 v{T+2}, 12, v{T+2}
        v_lshl_add_u32 v{T+2}, v{T+3}, 4, v{T+2}
        v_add_u32 v{gW[i]}, s{t0}, v{T+2}""")
        if i: a(f"v_subrev_u32 v{gW[i]}, {1024*i}, v{gW[i]}")
    def dmaW(i, st): 'D' in X or a.vmem(f"buffer_load_dwordx4 v{gW[i]}, {S(rW,4)}, s{oW} offen offset:{1024*i} sc1 lds", ('D', st))
    def dmaKV(i, st): 'd' in X or a.vmem(f"buffer_load_dwordx4 v{gKV[i]}, {S(rKV,4)}, s{oKV} offen offset:{1024*i} sc1 lds", ('D', st))
    def ldZ(n): 'Z' in X or a.vmem(f"buffer_load_dwordx4 {A(Z[n%16],4)}, v{gZ}, {S(rZ,4)}, s{oZ} offen offset:{(n%4)*1024} sc1", ('Z', n))
    incW, oP, mP = szW, a.sg(), a.sg()
    a(f"""s_and_b32 s{oW}, s2, {RM}
    s_lshl_b32 s{oZ}, s{oW}, 14
    s_lshl_b32 s{oW}, s{oW}, 9
    s_movk_i32 s{incW}, 256
    s_mov_b32 s{oKV}, 0
    s_mov_b32 s{cnt}, 0""")
    srd(a, rB, pB, 0, 4096)
    def preW():
        a(f"s_mov_b32 m0, s{mW}\ns_lshl_b32 s{t0}, s{shd}, 7\nv_lshl_add_u32 v{T}, v{l31}, 1, s{t0}")
        for i in range(4): dmaW(i, 0)
        for tb in range(2): a.vmem(f"buffer_load_ushort v{bs[tb]}, v{T}, {S(rB,4)}, 0 offen offset:{64*tb}", 'b')
        a(f"s_add_u32 m0, s{mW}, 16384\ns_add_u32 s{oW}, s{oW}, 256")
        for i in range(4): dmaW(i, 1)
        a(f"s_add_u32 m0, s{mW}, 32768\ns_add_u32 s{oW}, s{oW}, 256\ns_bitset0_b32 s{oW}, 12")
        dmaW(0, 2); dmaW(1, 2)
    PF1 = int(os.environ.get('PF1', '0')); FL1 = 0x11e8000
    a(f"""s_lshr_b32 s{t0}, s2, 2
    s_lshl_b32 s{t0}, s{t0}, 5
    s_and_b32 s{t1}, s2, 3
    s_add_u32 s{t0}, s{t0}, s{t1}
    s_lshl_b32 s{t0}, s{t0}, 2
    s_add_u32 s{t0}, s{t0}, {FL1}
    v_mov_b32 v{T+1}, s{t0}
    v_mov_b32 v{T+2}, 1""")
    if PF1: preW()
    a.need(vm=['st'])
    a(f"""s_barrier
    s_cmp_lg_u32 s{sw}, 0
    s_cbranch_scc1 {N}_ng
    s_mov_b64 exec, 1
    global_store_dword v{T+1}, v{T+2}, {S(pWS,2)} sc0 sc1
    s_mov_b64 exec, -1
    {N}_ng:""")
    if not PF1: preW()
    if int(os.environ.get('TX', '1')):
        a(f"s_mul_i32 s{t0}, s{shd}, 81920\nv_mov_b32 v254, s{t0}")
        for p in (pX, pO): a.vmem(f"global_load_dword v255, v254, {S(p,2)}", 'pf')
    a(f"""s_mul_i32 s{t0}, s{shd}, {2*55296}
    s_lshl_b32 s{t1}, s{sfb}, 11
    s_add_u32 s{t0}, s{t0}, s{t1}
    v_add_u32 v{gE}, s{t0}, v{gZ}
    s_mov_b32 s{oE}, {WS_Z1}
    s_mov_b32 s{oE+1}, {WS_Z1 + 55296}""")
    if int(os.environ.get('TK', '0')):
        a(f"v_min_u32 v254, 5, v{ln}\nv_cmp_gt_u32 vcc, 32, v{ln}\nv_mul_u32_u24 v254, {12*81920}, v254\nv_add_u32 v254, {3*81920+40960}, v254\nv_mov_b32 v253, {WS_WT}\nv_cndmask_b32 v254, v253, v254, vcc")
        a.vmem(f"global_load_dword v255, v254, {S(pWS,2)}", 'pf'); a.vmem(f"buffer_load_dword v255, v{gE}, {S(rE,4)}, s{oE} offen", 'pf')
    rP = rB; gP = a.v()
    def mkP():
        a(f"s_mul_i32 s{t0}, s{sqg}, {47*5120}\ns_add_u32 s{t0}, s{t0}, {WS_WT}\nv_lshlrev_b32 v{gP}, 4, v0\ns_lshl_b32 s{mP}, s{sw}, 10\ns_mov_b32 s{oP}, {131072-4096}")
        srd(a, rP, pWS, f"s{t0}", 47 * 5120)
    def ldE(tb, r): a.vmem(f"buffer_load_dwordx4 {V(Z1[tb]+4*r,4)}, v{gE}, {S(rE,4)}, s{oE+tb} offen offset:{1024*r} sc1", 'z1')
    a(f"v_and_b32 v{T+1}, 15, v{ln}\nv_lshlrev_b32 v{T+2}, 8, v{l31}")
    for j in range(8):
        a(f"""v_add_u32 v{T}, {2*j}, v{hf}
        v_xor_b32 v{T}, v{T}, v{T+1}
        v_lshl_add_u32 v{aW[j]}, v{T}, 4, v{T+2}""")
    a(f"""s_lshl_b32 s{t0}, s{sodd}, 9
    s_add_u32 s{t0}, s{t0}, {KVB}
    v_add_u32 v{aKm}, s{t0}, v{gZ}
    s_cmp_eq_u32 s{sodd}, 0
    s_cselect_b32 s{t0}, 1024, 8
    s_cselect_b32 s{t1}, 0, 4
    s_cselect_b32 s{t2}, 0, 16
    s_add_u32 s{t0}, s{t0}, {KVB}
    v_cmp_gt_u32 vcc, 32, v{ln}
    v_mov_b32 v{T+4}, {ONES}
    v_add_u32 v{T}, s{t0}, v{gZ}""")
    for s in range(4):
        a(f"v_cndmask_b32 v{aKr[s]}, v{T+4}, v{T}, vcc")
        if s < 3: a(f"v_add_u32 v{T}, 12288, v{T}")
    a(f"""v_and_b32 v{T}, 3, v{l31}
    v_bfe_u32 v{T+1}, v{l31}, 2, 1
    v_bfe_u32 v{T+2}, v{l31}, 3, 1
    v_lshl_add_u32 v{T}, v{T+1}, 3, v{T}
    v_lshl_add_u32 v{T}, v{T+2}, 2, v{T}
    v_add_u32 v{T}, s{t1}, v{T}
    v_subrev_u32 v{T+1}, s{t2}, v{l31}
    v_cmp_gt_u32 vcc, 16, v{l31}
    v_mul_u32_u24 v{T+2}, 320, v{hf}
    v_add_u32 v{T+2}, {KVB+6144}, v{T+2}
    v_cndmask_b32 v{T}, v{T+1}, v{T}, vcc
    v_cmp_gt_u32 vcc, 20, v{l31}
    v_lshl_add_u32 v{T}, v{T}, 4, v{T+2}
    s_nop 0""")
    for s in range(4):
        a(f"v_cndmask_b32 v{aV[s]}, v{T+4}, v{T}, vcc")
        if s < 3: a(f"v_add_u32 v{T}, 12288, v{T}")
    for i in range(4): a(f"v_mov_b32 v{T+i}, {0 if '0' in X else 0x3f803f80}")
    a(f"v_lshl_add_u32 v{T+4}, v0, 4, v{T+4}\nv_mov_b32 v{T+5}, {FLAG}\nv_mov_b32 v{T+6}, 0")
    a.ds(f"ds_write_b128 v{T+4}, {V(T,4)}"); a.ds(f"ds_write_b128 v{T+4}, {V(T,4)} offset:1024"); a.ds(f"ds_write_b32 v{T+5}, v{T+6}")
    for r in list(range(O[0], O[0]+16)) + list(range(O[1], O[1]+16)) + list(range(SB[1]+8, SB[1]+16)) + list(range(V2[1], V2[1]+4)) + list(range(W1[1], W1[1]+4)):
        a(f"v_mov_b32 v{r}, 0")
    for i in range(4): a(f"v_accvgpr_write_b32 a{Z[15]+i}, 0")
    a.need(vm=['b']); mkP()
    for tb in range(2):
        a(f"v_lshlrev_b32 v{G[tb]}, 16, v{bs[tb]}")
        for i in range(1, 16): a(f"v_mov_b32 v{G[tb]+i}, v{G[tb]}")
    a(f"""v_lshlrev_b32 v{T+4}, 7, v{ln}
    v_add_u32 v{T+4}, {FL1}, v{T+4}
    s_mov_b32 s{t2}, 0
    s_cmp_lg_u32 s{sw}, 0
    s_cbranch_scc1 {N}_g1
    {N}_g0:
    global_load_dwordx4 {V(T,4)}, v{T+4}, {S(pWS,2)} sc1
    s_add_u32 s{t2}, s{t2}, 0x2000
    s_cbranch_scc1 {N}_g1
    s_waitcnt vmcnt(0)
    v_or3_b32 v{T}, v{T}, v{T+1}, v{T+2}
    v_or_b32 v{T}, v{T}, v{T+3}
    v_cmp_ne_u32 vcc, 1, v{T}
    s_nop 1
    s_cbranch_vccz {N}_g1
    s_sleep {os.environ.get('SLP', 0)}
    s_branch {N}_g0
    {N}_g1:""")
    a.drain(); a(f"s_barrier\ns_mov_b32 m0, s{mKV}\ns_mov_b32 s{t2}, 81920\ns_cmp_lg_u32 s{retry}, 0\ns_cbranch_scc1 {N}_nq"); stamp(a, 10)
    for q in range(2):
        so = f"s{t2}" if q else "0"
        a.vmem(f"buffer_load_dwordx4 {V(Qm[q],4)}, v{gQm}, {S(rKV,4)}, {so} offen sc1", ('Q', q))
        a.vmem(f"buffer_load_dwordx2 {V(Qr[q],2)}, v{gQr}, {S(rKV,4)}, {so} offen sc1", ('Q', q))
    a(f"{N}_nq:")
    for i in range(3): dmaKV(i, 0)
    ldZ(0); ldZ(1)
    a(f"s_add_u32 s{oKV}, s{oKV}, s{incKV}\ns_add_u32 m0, s{mKV}, 12288\ns_nop 0")
    for i in range(3): dmaKV(i, 1)
    a(f"s_add_u32 m0, s{mW}, 32768")
    for n in range(2, ZL):
        if n % 4 == 0: a(f"s_add_u32 s{oZ}, s{oZ}, 4096")
        ldZ(n)
    a.need(vm=[('D', 0)])
    a("s_barrier"); stamp(a, 1); a("s_waitcnt lgkmcnt(0)" if PROF else "")
    def rdKm(kb): 'K' in X or a.ds(f"ds_read_b128 {V(Km[kb%2],4)}, v{aKm} offset:{(kb//4%4)*12288 + kb%4*1536}", ('Km', kb))
    def rdKr(kb): 'K' in X or a.ds(f"ds_read_b64 {V(Kr[kb%2],2)}, v{aKr[kb//4%4]} offset:{kb%4*1536}", ('Kr', kb))
    def rdV(h, kb): 'V' in X or a.ds(f"ds_read_b128 {V((V1,V2)[h][kb%2],4)}, v{aV[kb//4%4]} offset:{kb%4*1280 + 640*h}", ('V', h, kb))
    def rdW(tb, n): 'W' in X or a.ds(f"ds_read_b128 {V((W0,W1)[tb][n%2],4)}, v{aW[n%8]} offset:{(n//8%4)*16384 + 8192*tb}", ('W', tb, n))
    def mM(n): 'M' in X or a(f"v_mfma_f32_32x32x16_bf16 {V(SB[n%2],16)}, {V(Km[n//2%2],4)}, {V(Qm[n%2],4)}, 0")
    def mm(n): 'm' in X or a(f"v_mfma_f32_32x32x8_bf16 {V(SB[n%2],16)}, {V(Kr[n//2%2],2)}, {V(Qr[n%2],2)}, {V(SB[n%2],16)}")
    def mS(h, n): 'S' in X or a(f"v_smfmac_f32_32x32x32_bf16 {V(O[n%2],16)}, {V((V1,V2)[h][n//2%2],4)}, {V(SB[n%2]+8*h,8)}, v{idx}")
    def mG(tb, n): 'G' in X or a(f"v_mfma_f32_32x32x16_bf16 {V(G[tb],16)}, {A(Z[n%16],4)}, {V((W0,W1)[tb][n%2],4)}, {V(G[tb],16)}")
    rdKm(0); rdKr(0); rdW(0, 0); rdV(0, 0); rdV(1, 0)
    a.need(lg=[('Kr', 0)])
    mM(0); a("s_nop 1"); mm(0); a("s_nop 7\ns_nop 3")
    a(f"{N}_loop:")
    def body(it):
        for t in range(32):
            n = it * 32 + t; kb = n // 2; st = n // 8; tt = t % 8; ev = t % 2 == 0
            ex = lambda lo, hi: [a(f"v_exp_f32 v{SB[n%2]+i}, v{SB[n%2]+i}") for i in range(lo, hi) if 'E' not in X]
            sF, sA, sC, sE = [], [], [], []
            if t == 13: sF.append(f"s_cbranch_scc1 {N}_sw\n{N}_swr:")
            if tt == 5: sF.append(f"s_add_u32 s{oW}, s{oW}, s{incW}")
            if t in (21, 29): sA.append(f"s_add_u32 s{oP}, s{oP}, 4096"); sC.append(f"s_add_u32 m0, s{mP}, s{oP}")
            if tt == 6: sC.append(f"s_add_u32 m0, s{mW}, {(st+3)%4*16384}")
            if tt == 2: sA.append(f"s_add_u32 s{oKV}, s{oKV}, s{incKV}"); sC.append(f"s_add_u32 m0, s{mKV}, {(st+2)%4*12288}")
            if RM and tt == 5 and st % 2: sE.append(f"s_bitset0_b32 s{oW}, 12")
            if RM and (n + ZL) % 16 == 0: sA.append(f"s_bitset0_b32 s{oZ}, 17")
            if (n + ZL) % 4 == 0: sF.append(f"s_add_u32 s{oZ}, s{oZ}, 4096")
            cmp3 = f"s_cmp_eq_u32 s{cnt}, 3"
            if t == 0: sA.append(cmp3); sC.append(f"s_cselect_b32 s{rE+2}, s{szE}, 0")
            if t == 12: sA.append(cmp3)
            if t == 31 - ZL: sF.append(cmp3); sC.append(f"s_cselect_b32 s{rZ+2}, 0, s{rZ+2}")
            if t == 28: sA.append(f"s_add_u32 s{cnt}, s{cnt}, 1")
            if t == 31: sC.append(f"s_cmp_lt_u32 s{cnt}, 4")
            mG(1, n - 1); a.need(lg=[('V', 1, (n - 1) // 2)]); [a(x) for x in sF]
            rdW(1, n); ex(0, 3)
            mS(1, n - 1); a.need(lg=[('Km', (n + 1) // 2)], vm=[('D', st + 1)] if tt == 6 else []); [a(x) for x in sA]
            if tt == 6 and 'B' not in X: a("s_barrier")
            ldZ(n + ZL); ex(3, 5)
            mM(n + 1); a.need(lg=[('W', 0, n)], vm=[('Z', n)])
            if ev: rdKm(kb + 1); rdKr(kb + 1)
            else: rdV(0, kb + 1); rdV(1, kb + 1)
            ex(5, 7)
            mG(0, n); a.need(lg=[('V', 0, kb), ('Kr', (n + 1) // 2)]); [a(x) for x in sC]
            rdW(0, n + 1); ex(7, 10)
            mm(n + 1); ex(10, 14)
            mS(0, n); a.need(lg=[('W', 1, n)]); [a(x) for x in sE]
            if tt >= 6: dmaW(tt - 6, st + 3)
            elif tt < 2: dmaW(tt + 2, st + 2)
            elif tt < 5: dmaKV(tt - 2, st + 2)
            elif t < 16: ldE(t // 8, 0); ldE(t // 8, 1)
            else: a.vmem(f"buffer_load_dwordx4 v{gP}, {S(rP,4)}, s{oP} offen sc1 lds", 'pf')
            ex(14, 16)
        a(f"s_cbranch_scc1 {N}_loop")
    a.loop(body, 3)
    a(f"{N}_lx:"); mG(1, 127); dmaW(2, 18); mS(1, 127); dmaW(3, 18); stamp(a, 2)
    U = [SB[0], V1[0]]
    a(f"s_mov_b32 s{t0}, 0x2b800000\ns_mov_b32 s{t1}, 0x53800000\ns_mov_b32 s{t2}, 0xffff0000")
    def unpack(tb, d):
        for i in range(8): a(f"v_lshlrev_b32 v{d+2*i}, 16, v{Z1[tb]+i}\nv_and_b32 v{d+2*i+1}, s{t2}, v{Z1[tb]+i}")
    a.need(vm=['z1']); a.lg = []; a("s_waitcnt lgkmcnt(0)")
    unpack(0, SB[0])
    sA, sB = a.sg(2), a.sg(2)
    a(f"""v_cmp_le_f32 vcc, s{t0}, v{O[0]+12}
    v_cmp_ge_f32 {S(sA,2)}, s{t1}, v{O[0]+12}
    s_and_b64 {S(sB,2)}, vcc, {S(sA,2)}
    v_cmp_le_f32 vcc, s{t0}, v{O[1]+12}
    v_cmp_ge_f32 {S(sA,2)}, s{t1}, v{O[1]+12}
    s_and_b64 {S(sB,2)}, vcc, {S(sB,2)}
    s_and_b64 {S(sB,2)}, {S(sA,2)}, {S(sB,2)}
    v_mov_b32 v{T+5}, {FLAG}
    s_cmp_eq_u64 {S(sB,2)}, -1
    s_cbranch_scc1 {N}_ok
    ds_write_b32 v{T+5}, v{T+5}
    s_waitcnt lgkmcnt(0)
    {N}_ok:
    s_barrier
    ds_read_b32 v{T+6}, v{T+5}""")
    unpack(1, SB[1])
    a(f"s_mov_b32 s{t0}, {WS_H}\ns_mov_b32 s{t1}, {WS_H + 55296}")
    for tb in range(2):
        for i in range(8): a(f"v_pk_mul_f32 {V(G[tb]+2*i,2)}, {V(G[tb]+2*i,2)}, {V(SB[tb]+2*i,2)}")
        for i in range(8): a(f"v_cvt_pk_bf16_f32 v{SB[tb]+i}, v{G[tb]+2*i}, v{G[tb]+2*i+1}")
        for r in range(2): a(f"buffer_store_dwordx4 {V(SB[tb]+4*r,4)}, v{gE}, {S(rE,4)}, s{t0+tb} offen offset:{1024*r}{WT}")
    a(f"""s_waitcnt lgkmcnt(0)
    s_barrier
    v_readfirstlane_b32 s{t2}, v{T+6}
    s_mov_b32 s{t0}, 81920
    s_andn2_b32 s{t2}, s{t2}, s{retry}
    {'s_nop 0 ;' if X else ''}s_cbranch_scc1 {N}_fall""")
    for q in range(2):
        a(f"v_rcp_f32 v{T}, v{O[q]+12}\ns_nop 0")
        for i in range(12): a(f"v_mul_f32 v{O[q]+i}, v{O[q]+i}, v{T}")
        for i in range(6): a(f"v_cvt_pk_bf16_f32 v{G[q]+i}, v{O[q]+2*i}, v{O[q]+2*i+1}")
        so = f"s{t0}" if q else "0"
        a(f"buffer_store_dwordx4 {V(G[q],4)}, v{gOm}, {S(rO,4)}, {so} offen{WT}\nbuffer_store_dwordx2 {V(G[q]+4,2)}, v{gOr}, {S(rO,4)}, {so} offen{WT}")
    stamp(a, 3); a.vm = ['st']; nv, ns = a.nv, a.ns; a("s_nop 1")
    tail3(a, N, pX, pO, pWS, sw, shd, sqg, ln, sfree, 2); a.nv, a.ns = nv, ns
    a(f"""{N}_sw:
    s_mov_b64 {S(rW,2)}, {S(rP,2)}
    s_mov_b64 {S(rKV,2)}, {S(rP,2)}
    s_mov_b32 s{rW+2}, s{rP+2}
    s_mov_b32 s{rKV+2}, s{rP+2}
    s_movk_i32 s{incW}, 16384
    s_movk_i32 s{incKV}, 12288
    s_movk_i32 s{oW}, -16384
    s_movk_i32 s{oKV}, -12288""")
    for r in gW: a(f"v_add_u32 v{r}, s{mW}, v{gZ}")
    for r in gKV: a(f"v_add_u32 v{r}, s{mKV}, v{gZ}")
    a(f"v_lshlrev_b32 v254, 6, v0\nv_min_u32 v254, {N}_sw-{N}_lx, v254\nv_add_u32 v254, {N}_lx-{N}_pc, v254\nglobal_load_dword v255, v254, s[96:97]\ns_branch {N}_swr")
    mx = [G[0], G[0] + 1]; gK, gKr = G[0] + 2, G[0] + 3
    a(f"""{N}_fall:
    s_waitcnt vmcnt(0)
    s_mov_b32 s{retry}, -1
    s_mov_b32 s{szE}, 0
    s_lshl_b32 s{t0}, s{shd}, 18
    s_add_u32 s{rW}, s{pW}, s{t0}
    s_addc_u32 s{rW+1}, s{pW+1}, 0
    s_cmp_lt_u32 s{sqg}, 7
    s_cselect_b32 s{rW+2}, {64*4096}, 0
    s_mov_b64 {S(rKV,2)}, {S(pWS,2)}
    s_mov_b32 s{rKV+2}, {WS_Z1}
    s_mov_b32 s{incKV}, 5120
    s_cmp_lt_u32 s{sw}, 2
    s_cselect_b32 s{incKV}, 327680, s{incKV}
    s_mov_b32 s{rZ+2}, s{szZ}
    s_lshl_b32 s{t0}, s{sqg}, 2
    s_add_u32 s{t0}, s{t0}, s{sw}
    s_mul_i32 s{t0}, s{t0}, 163840
    v_subrev_u32 v{gK}, s{t0}, v{gQm}
    v_subrev_u32 v{gKr}, s{t0}, v{gQr}
    v_mov_b32 v{mx[0]}, 0xff800000
    v_mov_b32 v{mx[1]}, 0xff800000
    s_mov_b32 s{t0}, 40960
    {N}_fl:
    buffer_load_dwordx4 {V(Km[0],4)}, v{gK}, {S(rKV,4)}, s{t0} offen sc1
    buffer_load_dwordx2 {V(Kr[0],2)}, v{gKr}, {S(rKV,4)}, s{t0} offen sc1
    s_waitcnt vmcnt(0)""")
    mM(0); mM(1); mm(0); mm(1); a("s_nop 7\ns_nop 7")
    for q in range(2):
        for i in range(8): a(f"v_max3_f32 v{mx[q]}, v{SB[q]+2*i}, v{SB[q]+2*i+1}, v{mx[q]}")
    a(f"""s_add_u32 s{t0}, s{t0}, 81920
    s_cmp_lt_u32 s{t0}, {64*81920}
    s_cbranch_scc1 {N}_fl
    v_cmp_gt_u32 vcc, 32, v{ln}
    s_mov_b32 s{t2}, 0xffff0000""")
    for q in range(2):
        a(f"""v_mov_b32 v{T}, v{mx[q]}
        s_nop 1
        v_permlane32_swap_b32 v{T}, v{mx[q]}
        s_nop 1
        v_max_f32 v{T}, v{T}, v{mx[q]}
        v_sub_f32 v{T}, 0, v{T}
        v_and_b32 v{T+1}, s{t2}, v{T}
        v_sub_f32 v{T}, v{T}, v{T+1}
        v_and_b32 v{T+2}, s{t2}, v{T}
        v_sub_f32 v{T}, v{T}, v{T+2}
        v_lshrrev_b32 v{T+1}, 16, v{T+1}
        v_or_b32 v{T+1}, v{T+1}, v{T+2}
        v_lshrrev_b32 v{T}, 16, v{T}
        v_cndmask_b32 v{Qr[q]}, v{T+1}, v{Qr[q]}, vcc
        v_cndmask_b32 v{Qr[q]+1}, v{T}, v{Qr[q]+1}, vcc""")
    a(f"s_barrier\ns_branch {N}_restart\n{N}_end:\ns_endpgm")
    return a
```

```python
from asm import *
KVB, ONES, FLAG = 65536, 114688, 114688 + 5120
LDS2 = 163840
from k3f import tail3
X = os.environ.get('X2', ''); PFW = int(os.environ.get('PFW', '0')); PFO = int(os.environ.get('PFO', '0')); RM = int(os.environ.get('RM', '0')); WI = int(os.environ.get('WI', '0')); ZL = int(os.environ.get('ZL', '12'))
def k2():
    a = Asm(); N = "k2"
    a(f"{N}_go:\ns_getpc_b64 s[96:97]\n{N}_pc:"); stamp(a, 9); a.vm = ['st']
    pWS, pX, pO = [a.sg(2) for _ in range(3)]; sw, shd, sqg = [a.sg() for _ in range(3)]; sfree = a.ns; pW, pB, oE = [a.sg(2) for _ in range(3)]
    a(f"""s_load_dwordx2 {S(pW,2)}, s[0:1], 40
    s_load_dwordx2 {S(pB,2)}, s[0:1], 48
    s_load_dwordx2 {S(pWS,2)}, s[0:1], 80
    s_load_dwordx2 {S(pX,2)}, s[0:1], 0
    s_load_dwordx2 {S(pO,2)}, s[0:1], 64""")
    rW, rKV, rZ, rE, rO, rB = [a.sg(4) for _ in range(6)]
    sfb, sodd, sm5, t0, t1, t2, oW, oKV, oZ, incKV, mW, mKV, cnt, retry, szW, szZ, szE = [a.sg() for _ in range(17)]
    SB = [a.v(16), a.v(16)]; O = [a.v(16), a.v(16)]; G = [a.v(16), a.v(16)]
    Qm = [a.v(4), a.v(4)]; Qr = [a.v(2), a.v(2)]
    Km = [a.v(4), a.v(4)]; Kr = [a.v(2), a.v(2)]
    V1 = [a.v(4), a.v(4)]; V2 = [a.v(4), a.v(4)]; W0 = [a.v(4), a.v(4)]; W1 = [a.v(4), a.v(4)]
    Z1 = [a.v(8), a.v(8)]; bs = [a.v(), a.v()]
    aW = [a.v() for _ in range(8)]; aKm = a.v(); aKr = [a.v() for _ in range(4)]; aV = [a.v() for _ in range(4)]
    gW = [a.v() for _ in range(4)]; gKV = [a.v() for _ in range(3)]; gZ = a.v(); gQm, gQr, gE, gOm, gOr = [a.v() for _ in range(5)]
    idx, ln, l31, hf = [a.v() for _ in range(4)]; T = a.v(8, 4)
    Z = [a.a(4) for _ in range(16)]
    a(f"""v_lshrrev_b32 v{T}, 6, v0
    v_and_b32 v{ln}, 63, v0
    v_readfirstlane_b32 s{sw}, v{T}
    s_and_b32 s{t0}, s2, 7
    s_lshr_b32 s{t1}, s2, 6
    s_lshl_b32 s{t0}, s{t0}, 2
    s_add_u32 s{shd}, s{t0}, s{t1}
    s_bfe_u32 s{sqg}, s2, 0x30003
    s_lshl_b32 s{sfb}, s{sqg}, 2
    s_add_u32 s{sfb}, s{sfb}, s{sw}
    s_and_b32 s{sodd}, s{shd}, 1
    s_lshr_b32 s{sm5}, s{shd}, 1
    s_mul_i32 s{sm5}, s{sm5}, 2560
    s_mov_b32 s{retry}, 0
    v_and_b32 v{l31}, 31, v0
    v_bfe_u32 v{hf}, v0, 5, 1
    v_mov_b32 v{idx}, 0xdddddddd
    s_cmp_lt_u32 s{sqg}, 7
    s_cselect_b32 s{szW}, {64*4096}, 0
    s_cmp_lt_u32 s{sfb}, 27
    s_cselect_b32 s{szZ}, 0x20000, 0
    s_cselect_b32 s{szE}, {WS_WT}, 0
    s_lshl_b32 s{mW}, s{sw}, 12
    s_mul_i32 s{mKV}, s{sw}, 3072
    s_add_u32 s{mKV}, s{mKV}, {KVB}
    s_mov_b32 s{incKV}, 5120
    s_cmp_lt_u32 s{sw}, 2
    s_cselect_b32 s{incKV}, 327680, s{incKV}
    s_lshl_b32 s{t0}, s{shd}, 18
    s_lshl_b32 s{t1}, s{sfb}, 17
    s_add_u32 s{t1}, s{t1}, {WS_Z2}
    s_waitcnt lgkmcnt(0)""")
    srd(a, rW, pW, f"s{t0}", f"s{szW}"); srd(a, rKV, pWS, 0, WS_Z1); srd(a, rZ, pWS, f"s{t1}", f"s{szZ}")
    srd(a, rE, pWS, 0, f"s{szE}"); srd(a, rO, pWS, 0, WS_VT)
    FL1 = 0x11e8000; FP = int(os.environ.get('FP', '0'))
    def flag():
        a(f"""s_lshr_b32 s{t0}, s2, 2
        s_lshl_b32 s{t0}, s{t0}, 5
        s_and_b32 s{t1}, s2, 3
        s_add_u32 s{t0}, s{t0}, s{t1}
        s_lshl_b32 s{t0}, s{t0}, 2
        s_add_u32 s{t0}, s{t0}, {FL1}
        v_mov_b32 v{T+1}, s{t0}
        v_mov_b32 v{T+2}, 1""")
        a.need(vm=['st'])
        a(f"""s_barrier
        s_cmp_lg_u32 s{sw}, 0
        s_cbranch_scc1 {N}_ng
        s_mov_b64 exec, 1
        global_store_dword v{T+1}, v{T+2}, {S(pWS,2)} sc0 sc1
        s_mov_b64 exec, -1
        {N}_ng:""")
    if FP == 0: flag()
    a(f"""s_lshl_b32 s{t0}, s{sqg}, 2
    s_add_u32 s{t0}, s{t0}, s{sw}
    s_mul_i32 s{t1}, s{t0}, 163840
    s_add_u32 s{t1}, s{t1}, s{sm5}
    s_mul_i32 s{t2}, s{sodd}, 1536
    s_add_u32 s{t2}, s{t2}, s{t1}
    v_lshlrev_b32 v{gZ}, 4, v{ln}
    v_add_u32 v{gQm}, s{t2}, v{gZ}
    s_lshl_b32 s{t2}, s{sodd}, 3
    s_add_u32 s{t2}, s{t2}, s{t1}
    s_add_u32 s{t2}, s{t2}, 1024
    v_add_u32 v{gQr}, s{t2}, v{gZ}
    v_mov_b32 v{T}, {OOB}
    v_cmp_gt_u32 vcc, 32, v{ln}
    s_mov_b32 s{t2}, 81920
    s_nop 0
    v_cndmask_b32 v{gQr}, v{T}, v{gQr}, vcc""")
    gOm, gOr = gQm, gQr
    a(f"{N}_restart:")
    a(f"""s_mul_i32 s{t0}, s{sw}, 163840
    s_add_u32 s{t0}, s{t0}, s{sm5}
    s_lshl_b32 s{t1}, s{sodd}, 10
    s_add_u32 s{t0}, s{t0}, s{t1}
    s_add_u32 s{t0}, s{t0}, 40960
    s_mul_i32 s{t1}, s{shd}, 81920
    s_mul_i32 s{t2}, s{sw}, 3072
    s_add_u32 s{t1}, s{t1}, s{t2}
    s_add_u32 s{t1}, s{t1}, {WS_VT - 6144}
    s_cmp_lt_u32 s{sw}, 2
    s_cselect_b32 s{t0}, s{t0}, s{t1}
    s_cselect_b32 s{t1}, 80384, 0
    s_cmp_eq_u32 s{sw}, 3
    s_cselect_b32 s{t2}, {OOB}, s{t1}
    v_add_u32 v{gKV[0]}, s{t0}, v{gZ}
    v_mul_lo_u32 v{T}, v{hf}, s{t1}
    v_add_u32 v{gKV[2]}, s{t2}, v{gKV[0]}
    v_add_u32 v{gKV[1]}, v{T}, v{gKV[0]}""")
    a(f"""v_lshrrev_b32 v{T}, 4, v{ln}
    v_and_b32 v{T+1}, 15, v{ln}
    s_lshl_b32 s{t0}, s{sw}, 16""")
    for i in range(4):
        a(f"""v_add_u32 v{T+2}, {4*i}, v{T}
        v_xor_b32 v{T+3}, v{T+1}, v{T+2}
        v_lshlrev_b32 v{T+2}, 12, v{T+2}
        v_lshl_add_u32 v{T+2}, v{T+3}, 4, v{T+2}
        v_add_u32 v{gW[i]}, s{t0}, v{T+2}""")
        if i: a(f"v_subrev_u32 v{gW[i]}, {1024*i}, v{gW[i]}")
    def dmaW(i, st): 'D' in X or a.vmem(f"buffer_load_dwordx4 v{gW[i]}, {S(rW,4)}, s{oW} offen offset:{1024*i} sc1 lds", ('D', st))
    def dmaKV(i, st): 'd' in X or a.vmem(f"buffer_load_dwordx4 v{gKV[i]}, {S(rKV,4)}, s{oKV} offen offset:{1024*i} sc1 lds", ('D', st))
    def ldZ(n): 'Z' in X or a.vmem(f"buffer_load_dwordx4 {A(Z[n%16],4)}, v{gZ}, {S(rZ,4)}, s{oZ} offen offset:{(n%4)*1024} sc1", ('Z', n))
    incW, oP, mP = szW, a.sg(), a.sg()
    a(f"""s_and_b32 s{oW}, s2, {RM}
    s_lshl_b32 s{oZ}, s{oW}, 14
    s_lshl_b32 s{oW}, s{oW}, 9
    s_movk_i32 s{incW}, 256
    s_mov_b32 s{oKV}, 0
    s_mov_b32 s{cnt}, 0""")
    srd(a, rB, pB, 0, 4096)
    def preW():
        a(f"s_mov_b32 m0, s{mW}\ns_lshl_b32 s{t0}, s{shd}, 7\nv_lshl_add_u32 v{T}, v{l31}, 1, s{t0}")
        for i in range(4): dmaW(i, 0)
        for tb in range(2): a.vmem(f"buffer_load_ushort v{bs[tb]}, v{T}, {S(rB,4)}, 0 offen offset:{64*tb}", 'b')
        a(f"s_add_u32 m0, s{mW}, 16384\ns_add_u32 s{oW}, s{oW}, 256")
        for i in range(4): dmaW(i, 1)
        a(f"s_add_u32 m0, s{mW}, 32768\ns_add_u32 s{oW}, s{oW}, 256\ns_bitset0_b32 s{oW}, 12")
        dmaW(0, 2); dmaW(1, 2)
    PF1 = int(os.environ.get('PF1', '0')); FL1 = 0x11e8000
    if FP == 1: flag()
    if not PF1: preW()
    if int(os.environ.get('TX', '1')):
        a(f"s_mul_i32 s{t0}, s{shd}, 81920\nv_mov_b32 v254, s{t0}")
        for p in (pX, pO): a.vmem(f"global_load_dword v255, v254, {S(p,2)}", 'pf')
    a(f"""s_mul_i32 s{t0}, s{shd}, {2*55296}
    s_lshl_b32 s{t1}, s{sfb}, 11
    s_add_u32 s{t0}, s{t0}, s{t1}
    v_add_u32 v{gE}, s{t0}, v{gZ}
    s_mov_b32 s{oE}, {WS_Z1}
    s_mov_b32 s{oE+1}, {WS_Z1 + 55296}""")
    if int(os.environ.get('TK', '0')):
        a(f"v_min_u32 v254, 5, v{ln}\nv_cmp_gt_u32 vcc, 32, v{ln}\nv_mul_u32_u24 v254, {12*81920}, v254\nv_add_u32 v254, {3*81920+40960}, v254\nv_mov_b32 v253, {WS_WT}\nv_cndmask_b32 v254, v253, v254, vcc")
        a.vmem(f"global_load_dword v255, v254, {S(pWS,2)}", 'pf'); a.vmem(f"buffer_load_dword v255, v{gE}, {S(rE,4)}, s{oE} offen", 'pf')
    rP = rB; gP = a.v()
    def mkP():
        a(f"s_mul_i32 s{t0}, s{sqg}, {47*5120}\ns_add_u32 s{t0}, s{t0}, {WS_WT}\nv_lshlrev_b32 v{gP}, 4, v0\ns_lshl_b32 s{mP}, s{sw}, 10\ns_mov_b32 s{oP}, {131072-4096}")
        srd(a, rP, pWS, f"s{t0}", 47 * 5120)
    def ldE(tb, r): a.vmem(f"buffer_load_dwordx4 {V(Z1[tb]+4*r,4)}, v{gE}, {S(rE,4)}, s{oE+tb} offen offset:{1024*r} sc1", 'z1')
    a(f"v_and_b32 v{T+1}, 15, v{ln}\nv_lshlrev_b32 v{T+2}, 8, v{l31}")
    for j in range(8):
        a(f"""v_add_u32 v{T}, {2*j}, v{hf}
        v_xor_b32 v{T}, v{T}, v{T+1}
        v_lshl_add_u32 v{aW[j]}, v{T}, 4, v{T+2}""")
    a(f"""s_lshl_b32 s{t0}, s{sodd}, 9
    s_add_u32 s{t0}, s{t0}, {KVB}
    v_add_u32 v{aKm}, s{t0}, v{gZ}
    s_cmp_eq_u32 s{sodd}, 0
    s_cselect_b32 s{t0}, 1024, 8
    s_cselect_b32 s{t1}, 0, 4
    s_cselect_b32 s{t2}, 0, 16
    s_add_u32 s{t0}, s{t0}, {KVB}
    v_cmp_gt_u32 vcc, 32, v{ln}
    v_mov_b32 v{T+4}, {ONES}
    v_add_u32 v{T}, s{t0}, v{gZ}""")
    for s in range(4):
        a(f"v_cndmask_b32 v{aKr[s]}, v{T+4}, v{T}, vcc")
        if s < 3: a(f"v_add_u32 v{T}, 12288, v{T}")
    a(f"""v_and_b32 v{T}, 3, v{l31}
    v_bfe_u32 v{T+1}, v{l31}, 2, 1
    v_bfe_u32 v{T+2}, v{l31}, 3, 1
    v_lshl_add_u32 v{T}, v{T+1}, 3, v{T}
    v_lshl_add_u32 v{T}, v{T+2}, 2, v{T}
    v_add_u32 v{T}, s{t1}, v{T}
    v_subrev_u32 v{T+1}, s{t2}, v{l31}
    v_cmp_gt_u32 vcc, 16, v{l31}
    v_mul_u32_u24 v{T+2}, 320, v{hf}
    v_add_u32 v{T+2}, {KVB+6144}, v{T+2}
    v_cndmask_b32 v{T}, v{T+1}, v{T}, vcc
    v_cmp_gt_u32 vcc, 20, v{l31}
    v_lshl_add_u32 v{T}, v{T}, 4, v{T+2}
    s_nop 0""")
    for s in range(4):
        a(f"v_cndmask_b32 v{aV[s]}, v{T+4}, v{T}, vcc")
        if s < 3: a(f"v_add_u32 v{T}, 12288, v{T}")
    for i in range(4): a(f"v_mov_b32 v{T+i}, {0 if '0' in X else 0x3f803f80}")
    a(f"v_lshl_add_u32 v{T+4}, v0, 4, v{T+4}\nv_mov_b32 v{T+5}, {FLAG}\nv_mov_b32 v{T+6}, 0")
    a.ds(f"ds_write_b128 v{T+4}, {V(T,4)}"); a.ds(f"ds_write_b128 v{T+4}, {V(T,4)} offset:1024"); a.ds(f"ds_write_b32 v{T+5}, v{T+6}")
    for r in list(range(O[0], O[0]+16)) + list(range(O[1], O[1]+16)) + list(range(SB[1]+8, SB[1]+16)) + list(range(V2[1], V2[1]+4)) + list(range(W1[1], W1[1]+4)):
        a(f"v_mov_b32 v{r}, 0")
    for i in range(4): a(f"v_accvgpr_write_b32 a{Z[15]+i}, 0")
    mkP()
    a(f"""v_lshlrev_b32 v{T+4}, 7, v{ln}
    v_add_u32 v{T+4}, {FL1}, v{T+4}
    s_mov_b32 s{t2}, 0
    s_cmp_lg_u32 s{sw}, 0
    s_cbranch_scc1 {N}_g1
    {N}_g0:
    global_load_dwordx4 {V(T,4)}, v{T+4}, {S(pWS,2)} sc1
    s_add_u32 s{t2}, s{t2}, 0x2000
    s_cbranch_scc1 {N}_g1
    s_waitcnt vmcnt(0)
    v_or3_b32 v{T}, v{T}, v{T+1}, v{T+2}
    v_or_b32 v{T}, v{T}, v{T+3}
    v_cmp_ne_u32 vcc, 1, v{T}
    s_nop 1
    s_cbranch_vccnz {N}_g0
    {N}_g1:""")
    a.drain(); a(f"s_barrier\ns_mov_b32 m0, s{mKV}\ns_mov_b32 s{t2}, 81920\ns_cmp_lg_u32 s{retry}, 0\ns_cbranch_scc1 {N}_nq"); stamp(a, 10)
    for q in range(2):
        so = f"s{t2}" if q else "0"
        a.vmem(f"buffer_load_dwordx4 {V(Qm[q],4)}, v{gQm}, {S(rKV,4)}, {so} offen sc1", ('Q', q))
        a.vmem(f"buffer_load_dwordx2 {V(Qr[q],2)}, v{gQr}, {S(rKV,4)}, {so} offen sc1", ('Q', q))
    a(f"{N}_nq:")
    for i in range(3): dmaKV(i, 0)
    ldZ(0); ldZ(1)
    a(f"s_add_u32 s{oKV}, s{oKV}, s{incKV}\ns_add_u32 m0, s{mKV}, 12288\ns_nop 0")
    for i in range(3): dmaKV(i, 1)
    a(f"s_add_u32 m0, s{mW}, 32768")
    ZS = ZL - int(os.environ.get('ZD', '5'))
    def zl(lo, hi):
        for n in range(lo, hi):
            if n % 4 == 0: a(f"s_add_u32 s{oZ}, s{oZ}, 4096")
            ldZ(n)
            if n < 6:
                tb = (n - 2) // 2
                if n % 2 == 0: a(f"v_lshlrev_b32 v{G[tb]}, 16, v{bs[tb]}")
                for i in range(max(1, n % 2 * 8), n % 2 * 8 + 8): a(f"v_mov_b32 v{G[tb]+i}, v{G[tb]}")
    zl(2, ZS)
    a.need(vm=[('D', 0)])
    a("s_barrier"); stamp(a, 1); a("s_waitcnt lgkmcnt(0)" if PROF else "")
    def rdKm(kb): 'K' in X or a.ds(f"ds_read_b128 {V(Km[kb%2],4)}, v{aKm} offset:{(kb//4%4)*12288 + kb%4*1536}", ('Km', kb))
    def rdKr(kb): 'K' in X or a.ds(f"ds_read_b64 {V(Kr[kb%2],2)}, v{aKr[kb//4%4]} offset:{kb%4*1536}", ('Kr', kb))
    def rdV(h, kb): 'V' in X or a.ds(f"ds_read_b128 {V((V1,V2)[h][kb%2],4)}, v{aV[kb//4%4]} offset:{kb%4*1280 + 640*h}", ('V', h, kb))
    def rdW(tb, n): 'W' in X or a.ds(f"ds_read_b128 {V((W0,W1)[tb][n%2],4)}, v{aW[n%8]} offset:{(n//8%4)*16384 + 8192*tb}", ('W', tb, n))
    def mM(n): 'M' in X or a(f"v_mfma_f32_32x32x16_bf16 {V(SB[n%2],16)}, {V(Km[n//2%2],4)}, {V(Qm[n%2],4)}, 0")
    def mm(n): 'm' in X or a(f"v_mfma_f32_32x32x8_bf16 {V(SB[n%2],16)}, {V(Kr[n//2%2],2)}, {V(Qr[n%2],2)}, {V(SB[n%2],16)}")
    def mS(h, n): 'S' in X or a(f"v_smfmac_f32_32x32x32_bf16 {V(O[n%2],16)}, {V((V1,V2)[h][n//2%2],4)}, {V(SB[n%2]+8*h,8)}, v{idx}")
    def mG(tb, n): 'G' in X or a(f"v_mfma_f32_32x32x16_bf16 {V(G[tb],16)}, {A(Z[n%16],4)}, {V((W0,W1)[tb][n%2],4)}, {V(G[tb],16)}")
    rdKm(0); rdKr(0); rdW(0, 0); rdV(0, 0); rdV(1, 0)
    zm = (ZS + ZL + 1) // 2; zl(ZS, zm); a.need(lg=[('Kr', 0)])
    mM(0); a("s_nop 1"); mm(0); zl(zm, ZL); a("s_nop 7\ns_nop 3")
    a(f"{N}_loop:")
    def body(it):
        for t in range(32):
            n = it * 32 + t; kb = n // 2; st = n // 8; tt = t % 8; ev = t % 2 == 0
            ex = lambda lo, hi: [a(f"v_exp_f32 v{SB[n%2]+i}, v{SB[n%2]+i}") for i in range(lo, hi) if 'E' not in X]
            sF, sA, sC, sE = [], [], [], []
            if t == 13: sF.append(f"s_cbranch_scc1 {N}_sw\n{N}_swr:")
            if tt == 5: sF.append(f"s_add_u32 s{oW}, s{oW}, s{incW}")
            if t in (21, 29): sA.append(f"s_add_u32 s{oP}, s{oP}, 4096"); sC.append(f"s_add_u32 m0, s{mP}, s{oP}")
            if tt == 6: sC.append(f"s_add_u32 m0, s{mW}, {(st+3)%4*16384}")
            if tt == 2: sA.append(f"s_add_u32 s{oKV}, s{oKV}, s{incKV}"); sC.append(f"s_add_u32 m0, s{mKV}, {(st+2)%4*12288}")
            if RM and tt == 5 and st % 2: sE.append(f"s_bitset0_b32 s{oW}, 12")
            if RM and (n + ZL) % 16 == 0: sA.append(f"s_bitset0_b32 s{oZ}, 17")
            if (n + ZL) % 4 == 0: sF.append(f"s_add_u32 s{oZ}, s{oZ}, 4096")
            cmp3 = f"s_cmp_eq_u32 s{cnt}, 3"
            if t == 0: sA.append(cmp3); sC.append(f"s_cselect_b32 s{rE+2}, s{szE}, 0")
            if t == 12: sA.append(cmp3)
            if t == 31 - ZL: sF.append(cmp3); sC.append(f"s_cselect_b32 s{rZ+2}, 0, s{rZ+2}")
            if t == 28: sA.append(f"s_add_u32 s{cnt}, s{cnt}, 1")
            if t == 31: sC.append(f"s_cmp_lt_u32 s{cnt}, 4")
            mG(1, n - 1); a.need(lg=[('V', 1, (n - 1) // 2)]); [a(x) for x in sF]
            rdW(1, n); ex(0, 3)
            mS(1, n - 1); a.need(lg=[('Km', (n + 1) // 2)], vm=[('D', st + 1)] if tt == 6 else []); [a(x) for x in sA]
            if tt == 6 and 'B' not in X: a("s_barrier")
            ldZ(n + ZL); ex(3, 5)
            mM(n + 1); a.need(lg=[('W', 0, n)], vm=[('Z', n)])
            if ev: rdKm(kb + 1); rdKr(kb + 1)
            else: rdV(0, kb + 1); rdV(1, kb + 1)
            ex(5, 7)
            mG(0, n); a.need(lg=[('V', 0, kb), ('Kr', (n + 1) // 2)]); [a(x) for x in sC]
            rdW(0, n + 1); ex(7, 10)
            mm(n + 1); ex(10, 14)
            mS(0, n); a.need(lg=[('W', 1, n)]); [a(x) for x in sE]
            if tt >= 6: dmaW(tt - 6, st + 3)
            elif tt < 2: dmaW(tt + 2, st + 2)
            elif tt < 5: dmaKV(tt - 2, st + 2)
            elif t < 16: ldE(t // 8, 0); ldE(t // 8, 1)
            else: a.vmem(f"buffer_load_dwordx4 v{gP}, {S(rP,4)}, s{oP} offen sc1 lds", 'pf')
            ex(14, 16)
        a(f"s_cbranch_scc1 {N}_loop")
    a.loop(body, 3)
    a(f"{N}_lx:"); mG(1, 127); dmaW(2, 18); mS(1, 127); dmaW(3, 18); stamp(a, 2)
    U = [SB[0], V1[0]]
    a(f"s_mov_b32 s{t0}, 0x2b800000\ns_mov_b32 s{t1}, 0x53800000\ns_mov_b32 s{t2}, 0xffff0000")
    def unpack(tb, d):
        for i in range(8): a(f"v_lshlrev_b32 v{d+2*i}, 16, v{Z1[tb]+i}\nv_and_b32 v{d+2*i+1}, s{t2}, v{Z1[tb]+i}")
    a.need(vm=['z1']); a.lg = []; a("s_waitcnt lgkmcnt(0)")
    unpack(0, SB[0])
    sA, sB = a.sg(2), a.sg(2)
    a(f"""v_cmp_le_f32 vcc, s{t0}, v{O[0]+12}
    v_cmp_ge_f32 {S(sA,2)}, s{t1}, v{O[0]+12}
    s_and_b64 {S(sB,2)}, vcc, {S(sA,2)}
    v_cmp_le_f32 vcc, s{t0}, v{O[1]+12}
    v_cmp_ge_f32 {S(sA,2)}, s{t1}, v{O[1]+12}
    s_and_b64 {S(sB,2)}, vcc, {S(sB,2)}
    s_and_b64 {S(sB,2)}, {S(sA,2)}, {S(sB,2)}
    v_mov_b32 v{T+5}, {FLAG}
    s_cmp_eq_u64 {S(sB,2)}, -1
    s_cbranch_scc1 {N}_ok
    ds_write_b32 v{T+5}, v{T+5}
    s_waitcnt lgkmcnt(0)
    {N}_ok:
    s_barrier
    ds_read_b32 v{T+6}, v{T+5}""")
    unpack(1, SB[1])
    a(f"s_mov_b32 s{t0}, {WS_H}\ns_mov_b32 s{t1}, {WS_H + 55296}")
    for tb in range(2):
        for i in range(8): a(f"v_pk_mul_f32 {V(G[tb]+2*i,2)}, {V(G[tb]+2*i,2)}, {V(SB[tb]+2*i,2)}")
        for i in range(8): a(f"v_cvt_pk_bf16_f32 v{SB[tb]+i}, v{G[tb]+2*i}, v{G[tb]+2*i+1}")
        for r in range(2): a(f"buffer_store_dwordx4 {V(SB[tb]+4*r,4)}, v{gE}, {S(rE,4)}, s{t0+tb} offen offset:{1024*r}{WT}")
    a(f"""s_waitcnt lgkmcnt(0)
    v_readfirstlane_b32 s{t2}, v{T+6}
    s_mov_b32 s{t0}, 81920
    s_andn2_b32 s{t2}, s{t2}, s{retry}
    {'s_nop 0 ;' if X else ''}s_cbranch_scc1 {N}_fall""")
    for q in range(2):
        a(f"v_rcp_f32 v{T}, v{O[q]+12}\ns_nop 0")
        for i in range(12): a(f"v_mul_f32 v{O[q]+i}, v{O[q]+i}, v{T}")
        for i in range(6): a(f"v_cvt_pk_bf16_f32 v{G[q]+i}, v{O[q]+2*i}, v{O[q]+2*i+1}")
        so = f"s{t0}" if q else "0"
        a(f"buffer_store_dwordx4 {V(G[q],4)}, v{gOm}, {S(rO,4)}, {so} offen{WT}\nbuffer_store_dwordx2 {V(G[q]+4,2)}, v{gOr}, {S(rO,4)}, {so} offen{WT}")
    stamp(a, 3); a.vm = ['st']; nv, ns = a.nv, a.ns; a("s_nop 1")
    tail3(a, N, pX, pO, pWS, sw, shd, sqg, ln, sfree, 2); a.nv, a.ns = nv, ns
    a(f"""{N}_sw:
    s_mov_b64 {S(rW,2)}, {S(rP,2)}
    s_mov_b64 {S(rKV,2)}, {S(rP,2)}
    s_mov_b32 s{rW+2}, s{rP+2}
    s_mov_b32 s{rKV+2}, s{rP+2}
    s_movk_i32 s{incW}, 16384
    s_movk_i32 s{incKV}, 12288
    s_movk_i32 s{oW}, -16384
    s_movk_i32 s{oKV}, -12288""")
    for r in gW: a(f"v_add_u32 v{r}, s{mW}, v{gZ}")
    for r in gKV: a(f"v_add_u32 v{r}, s{mKV}, v{gZ}")
    a(f"v_lshlrev_b32 v254, 6, v0\nv_min_u32 v254, {N}_sw-{N}_lx, v254\nv_add_u32 v254, {N}_lx-{N}_pc, v254\nglobal_load_dword v255, v254, s[96:97]\ns_branch {N}_swr")
    mx = [G[0], G[0] + 1]; gK, gKr = G[0] + 2, G[0] + 3
    a(f"""{N}_fall:
    s_waitcnt vmcnt(0)
    s_mov_b32 s{retry}, -1
    s_mov_b32 s{szE}, 0
    s_lshl_b32 s{t0}, s{shd}, 18
    s_add_u32 s{rW}, s{pW}, s{t0}
    s_addc_u32 s{rW+1}, s{pW+1}, 0
    s_cmp_lt_u32 s{sqg}, 7
    s_cselect_b32 s{rW+2}, {64*4096}, 0
    s_mov_b64 {S(rKV,2)}, {S(pWS,2)}
    s_mov_b32 s{rKV+2}, {WS_Z1}
    s_mov_b32 s{incKV}, 5120
    s_cmp_lt_u32 s{sw}, 2
    s_cselect_b32 s{incKV}, 327680, s{incKV}
    s_mov_b32 s{rZ+2}, s{szZ}
    s_lshl_b32 s{t0}, s{sqg}, 2
    s_add_u32 s{t0}, s{t0}, s{sw}
    s_mul_i32 s{t0}, s{t0}, 163840
    v_subrev_u32 v{gK}, s{t0}, v{gQm}
    v_subrev_u32 v{gKr}, s{t0}, v{gQr}
    v_mov_b32 v{mx[0]}, 0xff800000
    v_mov_b32 v{mx[1]}, 0xff800000
    s_mov_b32 s{t0}, 40960
    {N}_fl:
    buffer_load_dwordx4 {V(Km[0],4)}, v{gK}, {S(rKV,4)}, s{t0} offen sc1
    buffer_load_dwordx2 {V(Kr[0],2)}, v{gKr}, {S(rKV,4)}, s{t0} offen sc1
    s_waitcnt vmcnt(0)""")
    mM(0); mM(1); mm(0); mm(1); a("s_nop 7\ns_nop 7")
    for q in range(2):
        for i in range(8): a(f"v_max3_f32 v{mx[q]}, v{SB[q]+2*i}, v{SB[q]+2*i+1}, v{mx[q]}")
    a(f"""s_add_u32 s{t0}, s{t0}, 81920
    s_cmp_lt_u32 s{t0}, {64*81920}
    s_cbranch_scc1 {N}_fl
    v_cmp_gt_u32 vcc, 32, v{ln}
    s_mov_b32 s{t2}, 0xffff0000""")
    for q in range(2):
        a(f"""v_mov_b32 v{T}, v{mx[q]}
        s_nop 1
        v_permlane32_swap_b32 v{T}, v{mx[q]}
        s_nop 1
        v_max_f32 v{T}, v{T}, v{mx[q]}
        v_sub_f32 v{T}, 0, v{T}
        v_and_b32 v{T+1}, s{t2}, v{T}
        v_sub_f32 v{T}, v{T}, v{T+1}
        v_and_b32 v{T+2}, s{t2}, v{T}
        v_sub_f32 v{T}, v{T}, v{T+2}
        v_lshrrev_b32 v{T+1}, 16, v{T+1}
        v_or_b32 v{T+1}, v{T+1}, v{T+2}
        v_lshrrev_b32 v{T}, 16, v{T}
        v_cndmask_b32 v{Qr[q]}, v{T+1}, v{Qr[q]}, vcc
        v_cndmask_b32 v{Qr[q]+1}, v{T}, v{Qr[q]+1}, vcc""")
    a(f"s_barrier\ns_branch {N}_restart\n{N}_end:\ns_endpgm")
    return a
```

```python
from asm import *
WS_FL = 0x11e0000
E_ = lambda k, d: int(os.environ.get(k, d))
P1, PC, A0, LR = E_('P1', 14), E_('PC', 8), E_('A0', 12), float(os.environ.get('LR', 3.5))
def tail3(a, N, pX, pO, pWS, sw, srb, scb, ln, sfree, vfree):
    a.ns, a.nv = sfree, vfree
    rA, rW, rX, rO = [a.sg(4) for _ in range(4)]
    t0, t1, t2, oA, oW, mW = [a.sg() for _ in range(6)]
    s0, y0 = a.v(40), a.v(40); Wf = [a.v(4) for _ in range(10)]
    xr = a.v(10); gO, gH = a.v(2), a.v(2); gW, gX, gF, aE, aF = [a.v() for _ in range(5)]; aW = [a.v() for _ in range(4)]; T = a.v(20); xu = a.v(20); sp = a.sg()
    assert a.nv <= ln
    a.na = 192
    a(f"""{N}_tl:
    s_mul_i32 s{t0}, s{scb}, {47*5120}
    s_add_u32 s{t0}, s{t0}, {WS_WT}
    v_lshlrev_b32 v{gW}, 4, v0
    s_lshl_b32 s{mW}, s{sw}, 10""")
    srd(a, rW, pWS, f"s{t0}", 47 * 5120)
    def dW(c, i):
        a(f"s_add_u32 m0, s{mW}, {(c % 8) * 20480 + i * 4096}\ns_mov_b32 s{oW}, {c * 20480 + i * 4096}")
        a.vmem(f"buffer_load_dwordx4 v{gW}, {S(rW,4)}, s{oW} offen sc1 lds", ('C', c))
    assert P1 <= 4
    PL = [divmod(j, 5) for j in list(range(12, 16)) + list(range(22, 32))]
    def lA(p, r):
        if r == 0: a(f"s_mov_b32 s{oA}, {p % 14 * 4096}")
        if p == 13: a(f"v_or_b32 v{gH+r}, s{sp}, v{gH+r}")
        a.vmem(f"buffer_load_dwordx4 {A(8*p+4*r,4)}, v{(gH if p < 14 else gO)+r}, {S(rA,4)}, s{oA} offen sc1", ('A', p))
    su = [x.strip() for x in f"""s_and_b32 s{sp}, s{sw}, 1
    s_mul_i32 s{t0}, s{sp}, 5120
    v_lshl_add_u32 v{aW[0]}, v{ln}, 4, s{t0}
    v_add_u32 v{aW[1]}, 0x10000, v{aW[0]}
    v_add_u32 v{aW[2]}, 0x20000, v{aW[0]}
    s_mul_i32 s{t0}, s{sp}, 163840
    v_subrev_u32 v{aW[3]}, s{t0}, v{aW[2]}
    v_add_u32 v{aW[3]}, {158720 - 0x20000}, v{aW[3]}
    s_mul_i32 s{t0}, s{sw}, 5120
    s_xor_b32 s{t1}, s{sw}, 1
    s_mul_i32 s{t1}, s{t1}, 5120
    s_add_u32 s{t0}, s{t0}, 81920
    s_add_u32 s{t1}, s{t1}, 81920
    v_lshl_add_u32 v{aE}, v{ln}, 4, s{t0}
    v_lshl_add_u32 v{aF}, v{ln}, 4, s{t1}
    s_lshr_b32 s{t0}, s{srb}, 2
    s_lshl_b32 s{t0}, s{t0}, 5
    v_add_u32 v{T}, s{t0}, v{ln}
    v_min_u32 v{T+1}, 38, v{ln}
    v_cmp_gt_u32 vcc, 32, v{ln}
    v_lshl_add_u32 v{T+1}, v{T+1}, 5, s{srb}
    v_subrev_u32 v{T+1}, 1024, v{T+1}
    v_cndmask_b32 v{gF}, v{T+1}, v{T}, vcc
    v_lshlrev_b32 v{gF}, 7, v{gF}
    v_add_u32 v{gF}, {WS_FL}, v{gF}
    v_and_b32 v{T}, 15, v0
    v_bfe_u32 v{T+1}, v0, 4, 2
    v_bfe_u32 v{T+2}, v0, 6, 1
    v_lshl_add_u32 v{T+2}, v{T+2}, 4, v{T}
    v_lshlrev_b32 v{T+2}, 4, v{T+2}
    v_lshl_add_u32 v{T+2}, v{T+1}, 9, v{T+2}
    v_lshl_add_u32 v{T+2}, s{sp}, 11, v{T+2}
    s_mul_i32 s{sp}, s{sp}, {OOB}
    s_lshr_b32 s{t1}, s{sw}, 1
    s_lshl_b32 s{t2}, s{srb}, 1
    s_add_u32 s{t1}, s{t1}, s{t2}
    s_mul_i32 s{t2}, s{t1}, 81920
    v_add_u32 v{gO}, s{t2}, v{T+2}
    s_mul_i32 s{t2}, s{t1}, 55296
    s_add_u32 s{t2}, s{t2}, {WS_H}
    v_add_u32 v{gH}, s{t2}, v{T+2}
    v_xor_b32 v{gO+1}, 256, v{gO}
    v_xor_b32 v{gH+1}, 256, v{gH}
    s_lshl_b32 s{t1}, s{srb}, 2
    s_add_u32 s{t1}, s{t1}, s{sw}
    s_mul_i32 s{t1}, s{t1}, {16*1280}
    s_mul_i32 s{t2}, s{scb}, 160
    s_add_u32 s{t1}, s{t1}, s{t2}
    v_mul_u32_u24 v{T}, 1280, v{T}
    v_mul_u32_u24 v{T+1}, 40, v{T+1}
    v_add3_u32 v{gX}, v{T}, v{T+1}, s{t1}""".split("\n")]
    EF = E_('EF', 0)
    def rest(pl):
        for c, i in pl: dW(c, i); [a(su.pop(0)) for _ in range(4) if su]
        while su: a(su.pop(0))
        srd(a, rA, pWS, 0, WS_PROF); srd(a, rX, pX, 0, 2621440); srd(a, rO, pO, 0, 2621440)
        for o, n in ((0, 4), (4, 4), (8, 2)): a.vmem(f"buffer_load_dwordx{n} {V(xr+o,n)}, v{gX}, {S(rX,4)}, 0 offen offset:{4*o}", 'x')
    a(f"""s_lshl_b32 s{t0}, s{scb}, 5
    s_add_u32 s{t0}, s{t0}, s{srb}
    s_lshl_b32 s{t0}, s{t0}, 7
    s_add_u32 s{t0}, s{t0}, {WS_FL}
    v_mov_b32 v{T+4}, s{t0}
    v_mov_b32 v{T+5}, 1""")
    if not EF: rest([])
    a.need(vm=['st']); a("s_barrier"); stamp(a, 4)
    a(f"""s_cmp_lg_u32 s{sw}, 0
    s_cbranch_scc1 {N}_nf
    s_mov_b64 exec, 1
    global_store_dword v{T+4}, v{T+5}, {S(pWS,2)} sc0 sc1
    s_mov_b64 exec, -1
    {N}_nf:""")
    if EF: rest(PL)
    else: [dW(c, i) for c, i in PL]
    a(f"""s_mov_b32 s{t2}, 0
    s_cmp_lg_u32 s{sw}, 0
    s_cbranch_scc1 {N}_p1
    {N}_p0:
    buffer_load_dword v{T}, v{gF}, {S(rA,4)}, 0 offen sc1
    s_add_u32 s{t2}, s{t2}, 0x2000
    s_cbranch_scc1 {N}_p1
    s_waitcnt vmcnt(0)
    v_cmp_ne_u32 vcc, 1, v{T}
    s_nop 1
    s_cbranch_vccnz {N}_p0
    {N}_p1:""")
    a.drain(); a("s_barrier"); stamp(a, 5)
    L = []
    for p in range(24):
        for c in {15: (8,), 17: (9,), 19: (10,), 21: (11,)}.get(p, ()): L += [(40 if c < 10 else 100, ('C', c), lambda c=c, i=i: dW(c, i)) for i in range(5 if c < 11 else 4)]
        L += [(0, ('A', p), lambda p=p, r=r: lA(p, r)) for r in range(2)]
    RA = 6
    def rd(g):
        p, nt = divmod(g, 5); o = ((10 * p - (5 if p >= 14 else 0) + nt) % 160) * 1024
        if g < 120: a.ds(f"ds_read_b128 {V(Wf[g % 10],4)}, v{aW[3] if p == 16 else aW[o >> 16]} offset:{nt * 1024 if p == 16 else o & 65535}", ('W', g))
    for i in range(A0):
        L.pop(0)[2]()
        if i < RA: rd(i)
        if i < 10: a(f"v_lshlrev_b32 v{xu+2*i}, 16, v{xr+i}\nv_and_b32 v{xu+2*i+1}, 0xffff0000, v{xr+i}")
    a(f"s_mov_b32 s{t0}, 0xbfb8aa3b\ns_mov_b32 s{t1}, 0xffff0000")
    wrE = lambda r, i, o: a.ds(f"ds_write_b128 v{aE}, {V(r+20+4*i,4)} offset:{o + 1024*i}", 'ew')
    rdE = lambda r, i, o: a.ds(f"ds_read_b128 {V(r+20+4*i,4)}, v{aF} offset:{o + 1024*i}", 'er')
    Q = []
    for b in range(0, 20, 4):
        R = range(b, b + 4)
        Q += [f"v_add_f32 v{y0+i}, v{y0+i}, v{y0+20+i}" for i in R]
        Q += [f"v_mul_f32 v{T+i}, s{t0}, v{y0+i}" for i in R] + [f"v_exp_f32 v{T+i}, v{T+i}" for i in R] + [f"v_add_f32 v{T+i}, 1.0, v{T+i}" for i in R]
        Q += [f"v_rcp_f32 v{T+i}, v{T+i}" for i in R] + [f"v_mul_f32 v{y0+i}, v{y0+i}, v{T+i}" for i in R]
    for f in range(240):
        p = f // 10; g, r = f // 2, f % 2
        if p in (13, 23): g, r = 5 * p + f % 5, 1 - f % 10 // 5
        d = (y0 if p < 14 else s0) + 20 * r + 4 * (g % 5)
        vm = [('A', p)] if f % 10 == 0 else []; lg = [('W', g), ('W', g + 1)] if f % 4 == 0 or p in (13, 23) else []
        arr = {2 * (10 * c - RA): (c,) for c in range(8, 12)}.get(f, ())
        vm += [('C', c) for c in arr]
        if 8 in arr: lg += ['ew']
        if f == 158: lg += ['er']
        assert not [1 for e, t, _ in L if t in vm], (f, vm)
        a.need(lg=lg, vm=vm)
        if arr or f in (40, 100): a("s_barrier")
        if f == 0: stamp(a, 6)
        if E_('FS', 0) and f in (40, 100, 140, 160, 200): stamp(a, 1 + (40, 100, 140, 160, 200).index(f))
        a(f"v_mfma_f32_16x16x32_bf16 {V(d,4)}, {V(Wf[g % 10],4)}, {A(8*p+4*r,4)}, {V(d,4) if p not in (0, 14) else 0}")
        n1 = len(a.L)
        if f % 2 == 0: rd(f // 2 + RA)
        if 137 <= f < 146 and f % 2: wrE(y0, (f - 137) // 2, 0)
        if 148 <= f < 153: rdE(y0, f - 148, 0)
        if f >= 237: wrE(s0, f - 237, 20480)
        if int((f + 1) / LR) > int(f / LR) and L:
            k = next(i for i, e in enumerate(L + [(0,)]) if e[0] <= f)
            if k < len(L): n0 = len(a.L); L.pop(k)[2](); a.L = a.L[:n0] if E_('NL', 0) else a.L
        bud = E_('QB', 3) - (len(a.L) - n1) - (f % 4 == 3)
        while f >= 158 and Q and bud >= 1 + ('exp' in Q[0] or 'rcp' in Q[0]): bud -= 1 + ('exp' in Q[0] or 'rcp' in Q[0]); a(Q.pop(0))
    print("k3 left", len(Q)); Q2 = Q; Q = []
    assert not Q and not L
    stamp(a, 7); wrE(s0, 3, 20480); wrE(s0, 4, 20480); [a(x) for x in Q2]; a.need(lg=['ew']); a("s_barrier")
    for i in range(5): rdE(s0, i, 20480)
    for i in range(10): a(f"v_pk_fma_f32 {V(T+2*i,2)}, {V(s0+2*i,2)}, {V(y0+2*i,2)}, {V(xu+2*i,2)}")
    a.need(lg=['er'])
    for i in range(10): a(f"v_pk_fma_f32 {V(s0+2*i,2)}, {V(s0+20+2*i,2)}, {V(y0+2*i,2)}, {V(T+2*i,2)}")
    for o, n in ((0, 4), (4, 4), (8, 2)):
        for i in range(o, o + n): a(f"v_cvt_pk_bf16_f32 v{xr+i}, v{s0+2*i}, v{s0+2*i+1}")
        a(f"buffer_store_dwordx{n} {V(xr+o,n)}, v{gX}, {S(rO,4)}, 0 offen offset:{4*o}{os.environ.get('WO','')}")
    stamp(a, 8); a("s_waitcnt vmcnt(0)"); stamp_out(a, 1, 11)
    if E_('DBG', 0): a(f"""s_load_dwordx2 s[20:21], s[0:1], 72
        s_waitcnt vmcnt(0) lgkmcnt(0)
        s_cmp_lg_u32 s2, 8
        s_cbranch_scc1 {N}_end
        v_cmp_gt_u32 vcc, 6, v0
        v_lshlrev_b32 v1, 2, v0
        v_add_u32 v2, {WS_PROF + 65536 + 2048}, v1
        v_add_u32 v3, {WS_PROF + 2*65536 + 2048 - 24}, v1
        v_cndmask_b32 v2, v3, v2, vcc
        v_cmp_gt_u32 vcc, 16, v0
        s_and_saveexec_b64 s[22:23], vcc
        s_cbranch_execz {N}_end
        global_load_dword v2, v2, {S(pWS,2)} sc1
        s_waitcnt vmcnt(0)
        global_store_dword v1, v2, s[20:21]
        s_waitcnt vmcnt(0)""")
    a("s_endpgm")
```
